```python
import torch

def _softmax(x, axis=-1):
    return torch.softmax(x, dim=axis)

def _gelu(x):
    return torch.nn.functional.gelu(x, approximate='tanh')

def _silu(x):
    return torch.nn.functional.silu(x)

def _sigmoid(x):
    return torch.sigmoid(x)

def _layernorm(x, axis=-1, eps=1e-05):
    m = x.mean(dim=axis, keepdim=True)
    v = x.var(dim=axis, keepdim=True, unbiased=False)
    return (x - m) / torch.sqrt(v + eps)

def _scatter_add(tgt, idx, src, axis=0):
    return tgt.clone().index_add_(axis, idx, src)

def _segment_sum(src, seg, n):
    out = torch.zeros((n,) + src.shape[1:], dtype=src.dtype)
    return out.index_add_(0, seg, src)

def _pad(x, pw):
    flat = tuple((v for pair in reversed(pw) for v in pair))
    return torch.nn.functional.pad(x, flat)
kernel_name = 'parallel_sum__sliding_local_dilated__mixer_gmlp__prompt'

def setup_inputs():

    _w = lambda a: (lambda t: t.to(torch.bfloat16) if t.is_floating_point() else t)(torch.as_tensor(a))

    def _A_setup():
        B, S, D = (1, 2048, 448)
        return {'x': _w((lambda *s: torch.randn(*s, dtype=torch.bfloat16) * 0.05)(B, S, D)), 'wqkv': _w((lambda *s: torch.randn(*s, dtype=torch.bfloat16) * 0.1)(D, 3 * D)), 'wo': _w((lambda *s: torch.randn(*s, dtype=torch.bfloat16) * 0.05)(D, D))}
    _A_in = _A_setup()

    def _B_setup():
        B, S, D, F = (1, 2048, 448, 1792)
        Fh = F // 2
        return {'x': _w((lambda *s: torch.randn(*s, dtype=torch.bfloat16) * 0.05)(B, S, D)), 'w_in': _w((lambda *s: torch.randn(*s, dtype=torch.bfloat16) * 0.4)(D, 2 * Fh)), 'w_sp': _w(0.01 * (lambda *s: torch.randn(*s, dtype=torch.bfloat16) * 0.4)(S, S)), 'b_sp': _w(1.0 + 0.01 * (lambda *s: torch.randn(*s, dtype=torch.bfloat16) * 0.05)(S)), 'w_out': _w((lambda *s: torch.randn(*s, dtype=torch.bfloat16) * 0.05)(Fh, D))}
    _B_in = _B_setup()
    return {'A_x': _A_in['x'], 'A_wqkv': _A_in['wqkv'], 'A_wo': _A_in['wo'], 'B_x': _B_in['x'], 'B_w_in': _B_in['w_in'], 'B_w_sp': _B_in['w_sp'], 'B_b_sp': _B_in['b_sp'], 'B_w_out': _B_in['w_out']}

def reference(A_x, A_wqkv, A_wo, B_x, B_w_in, B_w_sp, B_b_sp, B_w_out):

    def _A_ref(x, wqkv, wo):
        B, S, D = x.shape
        H = 16
        Dh = D // H
        W, dil = (8, 2)
        qkv = (lambda x, *d: x.permute(*d))((x @ wqkv).reshape(B, S, 3, H, Dh), 2, 0, 3, 1, 4)
        q, k, v = (qkv[0], qkv[1], qkv[2])
        scale = Dh ** (-0.5)
        pos = torch.arange(S)
        off = torch.arange(W) * dil
        idx = pos[:, None] - off[None, :]
        mask = idx >= 0
        idx_c = torch.where(mask, idx, 0).reshape(-1)
        kg = k[:, :, idx_c, :].reshape(B, H, S, W, Dh)
        vg = v[:, :, idx_c, :].reshape(B, H, S, W, Dh)
        logits = torch.einsum('bhsd,bhswd->bhsw', q, kg) * scale
        logits = torch.where(mask[None, None, :, :], logits, -1000000000.0)
        attn = _softmax(logits, axis=-1)
        o = torch.einsum('bhsw,bhswd->bhsd', attn, vg)
        return (lambda x, *d: x.permute(*d))(o, 0, 2, 1, 3).reshape(B, S, D) @ wo

    def _B_ref(x, w_in, w_sp, b_sp, w_out):
        B, S, D = x.shape
        F = w_in.shape[-1]
        Fh = F // 2
        z = _gelu(torch.einsum('bsd,df->bsf', x, w_in))
        z1 = z[..., :Fh].clone()
        z2 = _layernorm(z[..., Fh:], axis=-1)
        g = torch.einsum('ts,bsf->btf', w_sp, z2) + b_sp[None, :, None]
        return torch.einsum('bsf,fd->bsd', z1 * g, w_out)
    x = A_x
    xn = _layernorm(x, axis=-1)
    return x + _A_ref(xn, A_wqkv, A_wo) + _B_ref(xn, B_w_in, B_w_sp, B_b_sp, B_w_out)
```

```python
class E:
    def __init__(self, name, grid, block, lds, vgpr=256, sgpr=96, accum=None):
        self.name, self.grid, self.block, self.lds = name, grid, block, lds
        self.vgpr, self.sgpr, self.accum = vgpr, sgpr, accum
        self.lines = []
        self._lbl = 0
        self.lq = []
        self.vq = []
    def __call__(self, s):
        for l in s.strip("\n").split("\n"):
            l = l.strip()
            if not l: continue
            self.lines.append(l if l.endswith(":") else "    " + l)
    def c(self, s): self.lines.append("    ; " + s)
    def label(self, base="L"):
        self._lbl += 1
        return f"{base}_{self.name[:-7]}_{self._lbl}"
    def ds(self, s, tag=None):
        self(s); self.lq.append(tag)
    def vm(self, s, tag=None):
        self(s); self.vq.append(tag)
    def need_l(self, tags):
        if not isinstance(tags, (list, set)): tags = [tags]
        idx = -1
        for i, t in enumerate(self.lq):
            if t in tags: idx = i
        if idx < 0: return
        n = len(self.lq) - 1 - idx
        if n > 15: n = 15
        self(f"s_waitcnt lgkmcnt({n})")
        self.lq = self.lq[len(self.lq) - n:] if n else []
    def need_v(self, tags):
        if not isinstance(tags, (list, set)): tags = [tags]
        idx = -1
        for i, t in enumerate(self.vq):
            if t in tags: idx = i
        if idx < 0: return
        n = len(self.vq) - 1 - idx
        if n > 63: n = 63
        self(f"s_waitcnt vmcnt({n})")
        self.vq = self.vq[len(self.vq) - n:] if n else []
    def wait_l0(self):
        self("s_waitcnt lgkmcnt(0)"); self.lq = []
    def wait_v0(self):
        self("s_waitcnt vmcnt(0)"); self.vq = []
    def wait_all(self):
        self("s_waitcnt vmcnt(0) lgkmcnt(0)"); self.lq = []; self.vq = []
    def nop(self, n):
        while n > 0:
            m = min(n, 16); self(f"s_nop {m-1}"); n -= m
    def text(self):
        return "\n".join([f".globl {self.name}", ".p2align 8", f".type {self.name},@function", f"{self.name}:"] + self.lines)
    def desc(self):
        acc = self.accum if self.accum is not None else (min(256, (self.vgpr + 3) // 4 * 4))
        return "\n".join([".p2align 6", f".amdhsa_kernel {self.name}",
            f"  .amdhsa_next_free_vgpr {self.vgpr}", f"  .amdhsa_next_free_sgpr {self.sgpr}", f"  .amdhsa_accum_offset {acc}",
            "  .amdhsa_group_segment_fixed_size 0", "  .amdhsa_kernarg_size 88", "  .amdhsa_user_sgpr_count 2",
            "  .amdhsa_user_sgpr_kernarg_segment_ptr 1", "  .amdhsa_system_sgpr_workgroup_id_x 1",
            "  .amdhsa_float_denorm_mode_32 3", "  .amdhsa_float_denorm_mode_16_64 3",
            ".end_amdhsa_kernel"])

def build(kernels, launches=None, header=""):
    launches = launches or kernels
    out = []
    if header: out.append(header.rstrip("\n"))
    for k in launches:
        g, b = k.grid, k.block
        out.append(f"; @launch kernel={k.name} grid=({g[0]},{g[1]},{g[2]}) block=({b[0]},{b[1]},{b[2]}) lds={k.lds}")
    out.append('.amdgcn_target "amdgcn-amd-amdhsa--gfx950"')
    out.append(".text")
    for k in kernels: out.append(k.text())
    out.append('.section .rodata,"a"')
    for k in kernels: out.append(k.desc())
    return "\n".join(out) + "\n"

def vr(b, n=1):
    return f"v{b}" if n == 1 else f"v[{b}:{b+n-1}]"
def ar(b, n=1):
    return f"a{b}" if n == 1 else f"a[{b}:{b+n-1}]"
def sr(b, n=1):
    return f"s{b}" if n == 1 else f"s[{b}:{b+n-1}]"

def interleave(e, main, fill, start=0, per=None):
    n = len(main)
    fi = 0
    for i, m in enumerate(main):
        m()
        if i < start: continue
        rem_m = n - i
        rem_f = len(fill) - fi
        cnt = -(-rem_f // rem_m) if per is None else min(per, rem_f)
        for _ in range(cnt):
            fill[fi](); fi += 1
    while fi < len(fill):
        fill[fi](); fi += 1
```

```python
import sys
from emit import *

S, D, F, FH, QK = 2048, 448, 1792, 896, 1344
WS_Z1  = 0x0000000
WS_Z2  = 0x0400000
WS_QKV = 0x0800000
WS_HO  = 0x0E00000
WS_ST  = 0x1400000
WS_SIZE = 0x10000000
K_X, K_WQKV, K_WO, K_WIN, K_WSP, K_BSP, K_WOUT, K_OUT, K_DBG, K_WS = 0, 8, 16, 32, 40, 48, 56, 64, 72, 80
SZ_X = S * D * 2; SZ_WQKV = D * QK * 2; SZ_WO = D * D * 2; SZ_WIN = D * F * 2
SZ_WSP = S * S * 2; SZ_BSP = S * 2; SZ_WOUT = FH * D * 2

def srd(e, s, karg, size):
    e(f"s_load_dwordx2 s[{s}:{s+1}], s[0:1], {karg}")
def srd_fin(e, s, size):
    e(f"s_mov_b32 s{s+2}, {size}")
    e(f"s_mov_b32 s{s+3}, 0x20000")

GELU_K1 = -2.0 * 0.7978845608028654 * 1.4426950408889634
GELU_K2 = GELU_K1 * 0.044715
import struct
def fbits(x): return "0x%08x" % struct.unpack("<I", struct.pack("<f", x))[0]

def gen_k1():
    XR, ZR, QR = 0, 49152, 49152 + 52224
    XS, ZS, QS = 16384, 17408, 12288
    CSP = QR + 3 * QS
    CST = CSP + 7168
    LDS = CST + 896
    e = E("k1_kernel", (224, 1, 1), (256, 1, 1), LDS, vgpr=256, sgpr=96)
    END = "L_end_k1"
    V_XG, V_ZG, V_QG = 2, 6, 10
    V_XA, V_ZA, V_QA = 14, 18, 22
    V_S, V_SS = 26, 27
    V_CS = 28
    V_ONE = 35
    V_T = 36
    V_A = 64
    V_B = 120
    V_ACC = 128
    LANE = 1
    e(f"""
    s_cmp_ge_u32 s2, 224
    s_cbranch_scc1 {END}
    """)
    srd(e, 4, K_X, SZ_X); srd(e, 8, K_WIN, SZ_WIN); srd(e, 12, K_WQKV, SZ_WQKV); srd(e, 16, K_WS, WS_SIZE)
    e(f"""
    v_lshrrev_b32 v2, 6, v0
    v_and_b32 v{LANE}, 63, v0
    v_readfirstlane_b32 s20, v2
    s_and_b32 s24, s2, 7                   ; xcd
    s_lshr_b32 s25, s2, 3                  ; slot
    s_lshr_b32 s26, s24, 1
    s_lshl_b32 s26, s26, 2
    s_and_b32 s27, s25, 3
    s_add_u32 s21, s26, s27                ; Mt
    s_and_b32 s26, s24, 1
    s_mul_i32 s26, s26, 7
    s_lshr_b32 s27, s25, 2
    s_add_u32 s22, s26, s27                ; j
    s_lshl_b32 s26, s22, 7                 ; 128 j
    s_add_u32 s27, s26, 896
    s_sub_u32 s28, s26, 896
    s_cmp_lt_u32 s22, 7
    s_cselect_b32 s23, s27, s28
    s_lshl_b32 s26, s21, 7
    s_lshl_b32 s27, s20, 5
    s_add_u32 s29, s26, s27
    s_mul_i32 s30, s29, 896                ; X base
    s_lshl_b32 s26, s20, 4                 ; 16 w
    s_mul_i32 s31, s26, 3584
    s_lshl_b32 s27, s23, 1
    s_add_u32 s31, s31, s27
    s_mul_i32 s32, s26, 2688
    s_mul_i32 s27, s22, 192
    s_add_u32 s32, s32, s27
    s_lshl_b32 s33, s20, 12
    s_add_u32 s33, s33, {XR}               ; M0 base X
    s_mul_i32 s34, s20, 4352
    s_add_u32 s34, s34, {ZR}
    s_mul_i32 s35, s20, 3072
    s_add_u32 s35, s35, {QR}
    """)
    L = LANE
    t0, t1, t2, t3 = V_T, V_T + 1, V_T + 2, V_T + 3
    e(f"""
    v_lshrrev_b32 v{t0}, 3, v{L}           ; lane>>3
    v_mul_u32_u24 v{t0}, 896, v{t0}
    v_lshrrev_b32 v{t1}, 4, v{L}           ; lane>>4
    v_and_b32 v{t2}, 7, v{L}
    """)
    for i in range(4):
        e(f"""
        v_add_u32 v{t3}, {4*i}, v{t1}
        v_and_b32 v{t3}, 7, v{t3}
        v_xor_b32 v{t3}, v{t2}, v{t3}
        v_lshlrev_b32 v{t3}, 4, v{t3}
        v_add_u32 v{t3}, v{t0}, v{t3}
        v_add_u32 v{V_XG+i}, {i*6144}, v{t3}
        """)
    e(f"""
    v_mul_u32_u24 v{t0}, {4*3584}, v{t1}
    v_and_b32 v{t2}, 15, v{L}
    v_lshlrev_b32 v{t2}, 4, v{t2}
    v_add_u32 v{t0}, v{t0}, v{t2}
    """)
    for r in range(4):
        e(f"v_add_u32 v{V_ZG+r}, {r*2496}, v{t0}")
    for t in range(3):
        e(f"""
        v_add_u32 v{t0}, {64*t}, v{L}
        v_mul_u32_u24 v{t1}, 43691, v{t0}
        v_lshrrev_b32 v{t1}, 19, v{t1}         ; row = p/12
        v_mul_u32_u24 v{t2}, 12, v{t1}
        v_sub_u32 v{t2}, v{t0}, v{t2}          ; pos
        v_lshlrev_b32 v{t2}, 4, v{t2}
        v_mul_u32_u24 v{t1}, 2688, v{t1}
        v_add_u32 v{t1}, v{t1}, v{t2}
        v_subrev_u32 v{V_QG+t}, {1024*t}, v{t1}
        """)
    e("s_waitcnt lgkmcnt(0)")
    srd_fin(e, 4, SZ_X); srd_fin(e, 8, SZ_WIN); srd_fin(e, 12, SZ_WQKV); srd_fin(e, 16, WS_SIZE)

    def dma_ops(c):
        slot = c % 3
        ops = []
        def x_pre():
            e(f"s_add_u32 m0, s33, {slot*XS}")
            e(f"s_add_u32 s36, s30, {c*128}")
        ops.append(x_pre)
        for i in range(4):
            ops.append(lambda i=i: e.vm(f"buffer_load_dwordx4 v{V_XG+i}, s[4:7], s36 offen offset:{1024*i} lds", ("dma", c)))
        def z_pre():
            e(f"s_add_u32 m0, s34, {slot*ZS}")
            e(f"s_add_u32 s37, s31, {c*64*3584}")
        ops.append(z_pre)
        for r in range(4):
            ops.append(lambda r=r: e.vm(f"buffer_load_dwordx4 v{V_ZG+r}, s[8:11], s37 offen offset:{1088*r} lds", ("dma", c)))
        def q_pre():
            e(f"s_add_u32 m0, s35, {slot*QS}")
            e(f"s_add_u32 s38, s32, {c*64*2688}")
        ops.append(q_pre)
        for t in range(3):
            ops.append(lambda t=t: e.vm(f"buffer_load_dwordx4 v{V_QG+t}, s[12:15], s38 offen offset:{1024*t} lds", ("dma", c)))
        return ops
    for c in range(3):
        for op in dma_ops(c): op()

    n_, h_, g_, r_, q_, ch_ = V_T, V_T+1, V_T+2, V_T+3, V_T+4, V_T+5
    u_ = V_T + 6
    e(f"""
    v_and_b32 v{n_}, 31, v{L}
    v_lshrrev_b32 v{h_}, 5, v{L}
    v_and_b32 v{r_}, 15, v{L}
    v_and_b32 v{q_}, 3, v{r_}
    v_lshrrev_b32 v{r_}, 2, v{r_}
    v_lshrrev_b32 v{ch_}, 4, v{L}
    v_and_b32 v{ch_}, 1, v{ch_}
    v_lshlrev_b32 v{ch_}, 5, v{ch_}
    v_lshlrev_b32 v{q_}, 3, v{q_}
    v_add_u32 v{ch_}, v{ch_}, v{q_}
    s_lshl_b32 s39, s20, 12
    s_add_u32 s39, s39, {XR}
    """)
    for pos in range(4):
        e(f"""
        s_add_u32 s40, s20, {pos}
        s_and_b32 s40, s40, 3                  ; g
        s_lshl_b32 s41, s40, 1
        v_add_u32 v{g_}, s41, v{h_}            ; 2g+h
        v_lshrrev_b32 v{u_}, 1, v{n_}
        v_and_b32 v{u_}, 7, v{u_}
        v_xor_b32 v{g_}, v{g_}, v{u_}
        v_lshlrev_b32 v{g_}, 4, v{g_}
        v_lshlrev_b32 v{u_}, 7, v{n_}
        v_add_u32 v{g_}, v{g_}, v{u_}
        v_add_u32 v{V_XA+pos}, s39, v{g_}
        s_mul_i32 s41, s40, 4352
        s_add_u32 s41, s41, {ZR}
        v_mul_u32_u24 v{g_}, 1088, v{r_}
        v_lshlrev_b32 v{u_}, 9, v{h_}
        v_add3_u32 v{g_}, v{g_}, v{u_}, v{ch_}
        v_add_u32 v{V_ZA+pos}, s41, v{g_}
        s_mul_i32 s41, s40, 3072
        s_add_u32 s41, s41, {QR}
        v_lshlrev_b32 v{u_}, 3, v{h_}
        v_add_u32 v{u_}, v{u_}, v{r_}
        v_mul_u32_u24 v{u_}, 192, v{u_}
        v_add_u32 v{u_}, v{u_}, v{ch_}
        v_add_u32 v{V_QA+pos}, s41, v{u_}
        """)
    e(f"v_mov_b32 v{V_ONE}, 0x3f803f80")
    e(f"v_mov_b32 v{V_S}, 0\nv_mov_b32 v{V_SS}, 0")
    for b in range(7): e(f"v_mov_b32 v{V_CS+b}, 0")

    def read_ops(s):
        c, pos = divmod(s, 4); slot = c % 3; buf = s % 2
        ops = []
        ops.append(lambda: e.ds(f"ds_read_b128 v[{V_B+4*buf}:{V_B+4*buf+3}], v{V_XA+pos} offset:{slot*XS}", ("B", s)))
        for b in range(7):
            for t in range(2):
                d = V_A + 28 * buf + 4 * b + 2 * t
                if b < 4:
                    ops.append(lambda d=d, b=b, t=t: e.ds(f"ds_read_b64_tr_b16 v[{d}:{d+1}], v{V_ZA+pos} offset:{slot*ZS + t*256 + b*64}", ("A", s, b)))
                else:
                    ops.append(lambda d=d, b=b, t=t: e.ds(f"ds_read_b64_tr_b16 v[{d}:{d+1}], v{V_QA+pos} offset:{slot*QS + t*768 + (b-4)*64}", ("A", s, b)))
        return ops
    def stat_ops(s):
        c, pos = divmod(s, 4); buf = s % 2
        ops = []
        for i in range(4):
            rb = V_B + 4 * buf + i
            ops.append(lambda rb=rb: (e.need_l(("B", s)), e(f"v_dot2c_f32_bf16 v{V_S}, v{rb}, v{V_ONE}")))
            ops.append(lambda rb=rb: e(f"v_dot2c_f32_bf16 v{V_SS}, v{rb}, v{rb}"))
        if pos == 0:
            for i in range(4):
                for b in range(7):
                    ra = V_A + 28 * buf + 4 * b + i
                    ops.append(lambda ra=ra, b=b: (e.need_l(("A", s, b)), e(f"v_dot2c_f32_bf16 v{V_CS+b}, v{ra}, v{V_ONE}")))
        return ops
    def mfma(s, b):
        buf = s % 2
        a = V_A + 28 * buf + 4 * b; bb = V_B + 4 * buf; d = V_ACC + 16 * b
        cin = "0" if s == 0 else f"v[{d}:{d+15}]"
        e(f"v_mfma_f32_32x32x16_bf16 v[{d}:{d+15}], v[{a}:{a+3}], v[{bb}:{bb+3}], {cin}")

    e.need_v(("dma", 0)); e("s_barrier")
    for op in read_ops(0): op()
    NS = 28
    for s in range(NS):
        c, pos = divmod(s, 4)
        fill = []
        pre_barrier = (pos == 3 and s + 1 < NS)
        nxt = read_ops(s + 1) if s + 1 < NS else []
        st = stat_ops(s)
        mains = []
        for b in range(7):
            def m(b=b):
                if b == 0: e.need_l([("B", s)] + [("A", s, bb) for bb in range(3)])
                if b == 3: e.need_l([("A", s, bb) for bb in range(3, 7)])
                mfma(s, b)
            mains.append(m)
        if pre_barrier:
            e.need_l([("B", s)] + [("A", s, bb) for bb in range(7)])
            mains[0](); mains[1]()
            e.need_v(("dma", c + 1)); e("s_barrier")
            d = dma_ops(c + 3) if c + 3 < 7 else []
            fill = nxt + d + st
            interleave(e, mains[2:], fill)
        else:
            fill = nxt + st
            interleave(e, mains, fill)

    T = V_T
    e.nop(4)
    e(f"""
    v_and_b32 v{T}, 31, v{L}
    v_lshrrev_b32 v{T+1}, 5, v{L}
    s_lshl_b32 s40, s20, 1
    v_add_u32 v{T+1}, s40, v{T+1}          ; 2w+h
    v_mul_u32_u24 v{T+1}, 896, v{T+1}
    v_lshlrev_b32 v{T}, 2, v{T}
    v_add_u32 v{T}, v{T}, v{T+1}
    v_add_u32 v{T}, {CSP}, v{T}
    """)
    for b in range(7): e.ds(f"ds_write_b32 v{T}, v{V_CS+b} offset:{128*b}")
    e(f"""
    v_mov_b32 v{T+2}, v{V_S}
    v_mov_b32 v{T+3}, v{V_SS}
    s_nop 1
    v_permlane32_swap_b32 v{V_S}, v{T+2}
    v_permlane32_swap_b32 v{V_SS}, v{T+3}
    s_nop 1
    v_add_f32 v{V_S}, v{V_S}, v{T+2}
    v_add_f32 v{V_SS}, v{V_SS}, v{T+3}
    v_mul_f32 v{V_S}, {fbits(1.0/448)}, v{V_S}         ; mean
    v_mul_f32 v{V_SS}, {fbits(1.0/448)}, v{V_SS}
    v_fma_f32 v{V_SS}, -v{V_S}, v{V_S}, v{V_SS}        ; var
    v_max_f32 v{V_SS}, 0, v{V_SS}
    v_add_f32 v{V_SS}, {fbits(1e-5)}, v{V_SS}
    v_rsq_f32 v{V_SS}, v{V_SS}                          ; r
    """)
    e.wait_l0(); e("s_barrier")
    e(f"""
    v_cmp_gt_u32 vcc, 224, v0
    s_and_saveexec_b64 s[42:43], vcc
    v_lshlrev_b32 v{T}, 2, v0
    v_add_u32 v{T+1}, {CSP}, v{T}
    """)
    for i in range(8): e(f"ds_read_b32 v{T+4+i}, v{T+1} offset:{896*i}")
    e("s_waitcnt lgkmcnt(0)")
    e(f"""
    v_add_f32 v{T+4}, v{T+4}, v{T+5}
    v_add_f32 v{T+6}, v{T+6}, v{T+7}
    v_add_f32 v{T+8}, v{T+8}, v{T+9}
    v_add_f32 v{T+10}, v{T+10}, v{T+11}
    v_add_f32 v{T+4}, v{T+4}, v{T+6}
    v_add_f32 v{T+8}, v{T+8}, v{T+10}
    v_add_f32 v{T+4}, v{T+4}, v{T+8}
    v_add_u32 v{T+1}, {CST}, v{T}
    ds_write_b32 v{T+1}, v{T+4}
    s_mov_b64 exec, s[42:43]
    s_waitcnt lgkmcnt(0)
    s_barrier
    """)
    R, NM, C1, C2, P1 = 40, 42, 44, 46, 48
    SA, SB = 50, 52
    CSA = 54
    WZ, WQ = 55, 56
    CS4 = 64
    e(f"""
    v_mov_b32 v{R}, v{V_SS}
    v_mov_b32 v{R+1}, v{V_SS}
    v_mul_f32 v{NM}, v{V_S}, v{V_SS}
    v_sub_f32 v{NM}, 0, v{NM}
    v_mov_b32 v{NM+1}, v{NM}
    v_mov_b32 v{C1}, {fbits(GELU_K1)}
    v_mov_b32 v{C1+1}, {fbits(GELU_K1)}
    v_mov_b32 v{C2}, {fbits(GELU_K2)}
    v_mov_b32 v{C2+1}, {fbits(GELU_K2)}
    v_mov_b32 v{P1}, 1.0
    v_mov_b32 v{P1+1}, 1.0
    v_mov_b32 v{SA}, 0
    v_mov_b32 v{SA+1}, 0
    v_mov_b32 v{SB}, 0
    v_mov_b32 v{SB+1}, 0
    v_lshrrev_b32 v{CSA}, 5, v{L}
    v_lshlrev_b32 v{CSA}, 4, v{CSA}
    v_add_u32 v{CSA}, {CST}, v{CSA}          ; + 16 h
    v_and_b32 v{T}, 31, v{L}
    v_lshrrev_b32 v{T+1}, 5, v{L}
    v_lshlrev_b32 v{T+1}, 3, v{T+1}          ; 8h
    s_lshl_b32 s40, s20, 14
    v_mul_u32_u24 v{WZ}, 272, v{T}
    v_add3_u32 v{WZ}, v{WZ}, v{T+1}, s40
    s_add_u32 s41, s40, 8704
    v_mul_u32_u24 v{WQ}, 208, v{T}
    v_add3_u32 v{WQ}, v{WQ}, v{T+1}, s41
    """)
    for b in range(7):
        acc = V_ACC + 16 * b
        cs = CS4 + (b % 2) * 16
        for q in range(4):
            e.ds(f"ds_read_b128 v[{cs+4*q}:{cs+4*q+3}], v{CSA} offset:{(b*32+8*q)*4}", ("cs", b))
        e.need_l(("cs", b))
        for p in range(8):
            e(f"v_pk_mul_f32 v[{cs+2*p}:{cs+2*p+1}], v[{cs+2*p}:{cs+2*p+1}], v[{NM}:{NM+1}]")
        for p in range(8):
            e(f"v_pk_fma_f32 v[{acc+2*p}:{acc+2*p+1}], v[{acc+2*p}:{acc+2*p+1}], v[{R}:{R+1}], v[{cs+2*p}:{cs+2*p+1}]")
        if b < 4:
            W = 96
            for p in range(8):
                e(f"v_pk_mul_f32 v[{W+2*p}:{W+2*p+1}], v[{acc+2*p}:{acc+2*p+1}], v[{acc+2*p}:{acc+2*p+1}]")
            for p in range(8):
                e(f"v_pk_fma_f32 v[{W+2*p}:{W+2*p+1}], v[{W+2*p}:{W+2*p+1}], v[{C2}:{C2+1}], v[{C1}:{C1+1}]")
            for p in range(8):
                e(f"v_pk_mul_f32 v[{W+2*p}:{W+2*p+1}], v[{W+2*p}:{W+2*p+1}], v[{acc+2*p}:{acc+2*p+1}]")
            for i in range(16):
                e(f"v_exp_f32 v{W+i}, v{W+i}")
            for p in range(8):
                e(f"v_pk_add_f32 v[{W+2*p}:{W+2*p+1}], v[{W+2*p}:{W+2*p+1}], v[{P1}:{P1+1}]")
            for i in range(16):
                e(f"v_rcp_f32 v{W+i}, v{W+i}")
            for p in range(8):
                e(f"v_pk_mul_f32 v[{acc+2*p}:{acc+2*p+1}], v[{acc+2*p}:{acc+2*p+1}], v[{W+2*p}:{W+2*p+1}]")
            for p in range(8):
                e(f"v_pk_add_f32 v[{SA}:{SA+1}], v[{SA}:{SA+1}], v[{acc+2*p}:{acc+2*p+1}]")
                e(f"v_pk_fma_f32 v[{SB}:{SB+1}], v[{acc+2*p}:{acc+2*p+1}], v[{acc+2*p}:{acc+2*p+1}], v[{SB}:{SB+1}]")
        PK = 112
        for p in range(8):
            e(f"v_cvt_pk_bf16_f32 v{PK+p}, v{acc+2*p}, v{acc+2*p+1}")
        for q in range(4):
            if b < 4:
                e.ds(f"ds_write_b64 v{WZ}, v[{PK+2*q}:{PK+2*q+1}] offset:{(b*4+q)*16}")
            else:
                e.ds(f"ds_write_b64 v{WQ}, v[{PK+2*q}:{PK+2*q+1}] offset:{((b-4)*4+q)*16}")
    e(f"""
    v_add_f32 v{SA}, v{SA}, v{SA+1}
    v_add_f32 v{SB}, v{SB}, v{SB+1}
    v_mov_b32 v{T}, v{SA}
    v_mov_b32 v{T+1}, v{SB}
    s_nop 1
    v_permlane32_swap_b32 v{SA}, v{T}
    v_permlane32_swap_b32 v{SB}, v{T+1}
    s_nop 1
    v_add_f32 v{SA}, v{SA}, v{T}
    v_add_f32 v{SA+1}, v{SB}, v{T+1}
    """)
    SK = e.label("skipst")
    e(f"""
    s_cmp_ge_u32 s22, 7
    s_cbranch_scc1 {SK}
    v_and_b32 v{T}, 31, v{L}
    v_lshlrev_b32 v{T}, 6, v{T}            ; row*64
    s_lshl_b32 s40, s29, 6
    s_lshl_b32 s41, s22, 3
    s_add_u32 s40, s40, s41
    s_add_u32 s40, s40, {WS_ST}
    v_cmp_gt_u32 vcc, 32, v{L}
    s_and_saveexec_b64 s[42:43], vcc
    buffer_store_dwordx2 v[{SA}:{SA+1}], v{T}, s[16:19], s40 offen
    s_mov_b64 exec, s[42:43]
    {SK}:
    """)
    e.wait_l0()
    RZ, GZ = 36, 37
    e(f"""
    v_lshrrev_b32 v{T+2}, 4, v{L}
    v_and_b32 v{T+3}, 15, v{L}
    v_lshlrev_b32 v{T+3}, 4, v{T+3}
    s_lshl_b32 s40, s20, 14
    v_mul_u32_u24 v{RZ}, 272, v{T+2}
    v_add3_u32 v{RZ}, v{RZ}, v{T+3}, s40
    v_mul_u32_u24 v{GZ}, 1792, v{T+2}
    v_add_u32 v{GZ}, v{GZ}, v{T+3}
    s_mul_i32 s44, s29, 1792
    s_lshl_b32 s45, s22, 8                 ; 256 j bytes
    s_add_u32 s46, s45, {WS_Z2}
    s_sub_u32 s47, s45, {7*256}
    s_add_u32 s47, s47, {WS_Z1}
    s_cmp_lt_u32 s22, 7
    s_cselect_b32 s45, s46, s47
    s_add_u32 s44, s44, s45
    """)
    OB = 64
    for i in range(8):
        e.ds(f"ds_read_b128 v[{OB+4*i}:{OB+4*i+3}], v{RZ} offset:{4*i*272}", ("zo", i))
    RQ, GQ = 40, 44
    e("s_lshl_b32 s48, s20, 14\ns_add_u32 s48, s48, 8704")
    for t in range(3):
        e(f"""
        v_add_u32 v{T+2}, {64*t}, v{L}
        v_mul_u32_u24 v{T+3}, 43691, v{T+2}
        v_lshrrev_b32 v{T+3}, 19, v{T+3}
        v_mul_u32_u24 v{GQ+3}, 12, v{T+3}
        v_sub_u32 v{T+2}, v{T+2}, v{GQ+3}
        v_lshlrev_b32 v{T+2}, 4, v{T+2}
        v_mul_u32_u24 v{RQ+t}, 208, v{T+3}
        v_add3_u32 v{RQ+t}, v{RQ+t}, v{T+2}, s48
        v_mul_u32_u24 v{GQ+t}, 2688, v{T+3}
        v_add_u32 v{GQ+t}, v{GQ+t}, v{T+2}
        """)
    for i in range(8):
        e.need_l(("zo", i))
        e(f"s_add_u32 s46, s44, {4*i*1792}")
        e.vm(f"buffer_store_dwordx4 v[{OB+4*i}:{OB+4*i+3}], v{GZ}, s[16:19], s46 offen")
    e(f"""
    s_mul_i32 s44, s29, 2688
    s_mul_i32 s45, s22, 192
    s_add_u32 s44, s44, s45
    s_add_u32 s44, s44, {WS_QKV}
    """)
    OQ = 96
    for i in range(6):
        t, hi = i % 3, i // 3
        e.ds(f"ds_read_b128 v[{OQ+4*i}:{OQ+4*i+3}], v{RQ+t} offset:{hi*16*208}", ("qo", i))
    for i in range(6):
        t, hi = i % 3, i // 3
        e.need_l(("qo", i))
        e(f"s_add_u32 s46, s44, {hi*16*2688}")
        e.vm(f"buffer_store_dwordx4 v[{OQ+4*i}:{OQ+4*i+3}], v{GQ+t}, s[16:19], s46 offen")
    e(f"{END}:")
    e("s_endpgm")
    return e

def gen_k1b():
    QL = 24 * 2048
    LDS = QL + 8 * 1024
    e = E("k1b_kernel", (256, 1, 1), (256, 1, 1), LDS, vgpr=160, sgpr=96)
    END = "L_end_k1b"
    L = 1
    e(f"""
    s_cmp_ge_u32 s2, 256
    s_cbranch_scc1 {END}
    """)
    srd(e, 16, K_WS, WS_SIZE)
    e(f"""
    v_lshrrev_b32 v2, 6, v0
    v_and_b32 v{L}, 63, v0
    v_readfirstlane_b32 s20, v2
    s_lshl_b32 s21, s2, 3                  ; s0
    v_lshlrev_b32 v2, 4, v{L}              ; lane*16
    s_waitcnt lgkmcnt(0)
    """)
    srd_fin(e, 16, WS_SIZE)
    for i in range(6):
        e(f"""
        s_add_u32 s22, s20, {4*i}
        s_add_u32 s23, s21, s22
        s_sub_u32 s23, s23, 14
        s_max_i32 s23, s23, 0
        s_mul_i32 s23, s23, 2688
        s_add_u32 s23, s23, {WS_QKV + 896}
        s_lshl_b32 m0, s22, 11
        s_nop 0
        """)
        e.vm("buffer_load_dwordx4 v2, s[16:19], s23 offen lds", "kv")
        e.vm("buffer_load_dwordx4 v2, s[16:19], s23 offen offset:1024 lds", "kv")
    for i in range(2):
        e(f"""
        s_lshl_b32 s22, s20, 1
        s_add_u32 s22, s22, {i}
        s_add_u32 s23, s21, s22
        s_mul_i32 s23, s23, 2688
        s_add_u32 s23, s23, {WS_QKV}
        s_lshl_b32 s22, s22, 10
        s_add_u32 m0, s22, {QL}
        s_nop 0
        """)
        e.vm("buffer_load_dwordx4 v2, s[16:19], s23 offen lds", "kv")
    ZV = 16
    ST = 32
    e(f"""
    v_lshrrev_b32 v3, 5, v{L}
    v_and_b32 v4, 31, v{L}
    v_mul_u32_u24 v5, 1792, v3
    v_lshlrev_b32 v6, 4, v4
    v_add_u32 v5, v5, v6                   ; z voffset
    v_lshlrev_b32 v6, 6, v3
    s_lshl_b32 s22, s20, 1
    s_add_u32 s22, s22, s21
    s_mul_i32 s24, s22, 1792
    s_add_u32 s24, s24, {WS_Z2}
    s_lshl_b32 s25, s22, 6
    s_add_u32 s25, s25, {WS_ST}
    """)
    for i in range(4):
        e.vm(f"buffer_load_dwordx4 v[{ST+4*i}:{ST+4*i+3}], v6, s[16:19], s25 offen offset:{16*i}", "st")
    for i in range(4):
        e.vm(f"buffer_load_dwordx4 v[{ZV+4*i}:{ZV+4*i+3}], v5, s[16:19], s24 offen offset:{512*i}", "z")
    e.need_v("st")
    e(f"""
    v_pk_add_f32 v[{ST}:{ST+1}], v[{ST}:{ST+1}], v[{ST+2}:{ST+3}]
    v_pk_add_f32 v[{ST+4}:{ST+5}], v[{ST+4}:{ST+5}], v[{ST+6}:{ST+7}]
    v_pk_add_f32 v[{ST+8}:{ST+9}], v[{ST+8}:{ST+9}], v[{ST+10}:{ST+11}]
    v_pk_add_f32 v[{ST}:{ST+1}], v[{ST}:{ST+1}], v[{ST+4}:{ST+5}]
    v_pk_add_f32 v[{ST+8}:{ST+9}], v[{ST+8}:{ST+9}], v[{ST+12}:{ST+13}]
    v_pk_add_f32 v[{ST}:{ST+1}], v[{ST}:{ST+1}], v[{ST+8}:{ST+9}]
    v_mul_f32 v{ST}, {fbits(1.0/896)}, v{ST}
    v_mul_f32 v{ST+1}, {fbits(1.0/896)}, v{ST+1}
    v_fma_f32 v{ST+1}, -v{ST}, v{ST}, v{ST+1}
    v_max_f32 v{ST+1}, 0, v{ST+1}
    v_add_f32 v{ST+1}, {fbits(1e-5)}, v{ST+1}
    v_rsq_f32 v{ST+1}, v{ST+1}
    s_nop 0
    v_mul_f32 v{ST}, v{ST}, v{ST+1}
    v_sub_f32 v{ST}, 0, v{ST}              ; -mu*rho
    """)
    e.need_v("z")
    for i in range(16):
        e(f"""
        v_lshlrev_b32 v{ST+2}, 16, v{ZV+i}
        v_and_b32 v{ST+3}, 0xffff0000, v{ZV+i}
        v_fma_f32 v{ST+2}, v{ST+2}, v{ST+1}, v{ST}
        v_fma_f32 v{ST+3}, v{ST+3}, v{ST+1}, v{ST}
        v_cvt_pk_bf16_f32 v{ZV+i}, v{ST+2}, v{ST+3}
        """)
    for i in range(3):
        e.vm(f"buffer_store_dwordx4 v[{ZV+4*i}:{ZV+4*i+3}], v5, s[16:19], s24 offen offset:{512*i}", "zs")
    e(f"""
    v_cmp_gt_u32 vcc, 16, v4
    s_and_saveexec_b64 s[26:27], vcc
    """)
    e.vm(f"buffer_store_dwordx4 v[{ZV+12}:{ZV+15}], v5, s[16:19], s24 offen offset:1536", "zs")
    e("s_mov_b64 exec, s[26:27]")
    e.need_v("kv"); e("s_barrier")
    Q, KK, VV, LG, O = 8, 16, 72, 128, 136
    e(f"""
    v_lshrrev_b32 v3, 5, v0                ; r (0..7)
    v_and_b32 v4, 31, v0
    v_mul_u32_u24 v4, 28, v4               ; 28*l32
    v_lshlrev_b32 v5, 10, v3
    v_add_u32 v5, v5, v4
    v_add_u32 v5, {QL}, v5                 ; q addr
    v_lshlrev_b32 v6, 11, v3
    v_add_u32 v6, v6, v4
    v_add_u32 v7, s21, v3
    """)
    e.need_v("zs")
    for i in range(7): e.ds(f"ds_read_b32 v{Q+i}, v5 offset:{4*i}", "q")
    for w in range(8):
        for i in range(7): e.ds(f"ds_read_b32 v{KK+7*w+i}, v6 offset:{(14-2*w)*2048+4*i}", ("k", w))
    for w in range(8):
        for i in range(7): e.ds(f"ds_read_b32 v{VV+7*w+i}, v6 offset:{(14-2*w)*2048+896+4*i}", ("v", w))
    for w in range(8):
        e.need_l(("k", w))
        for i in range(7):
            e(f"v_dot2_f32_bf16 v{LG+w}, v{Q+i}, v{KK+7*w+i}, {'0' if i == 0 else f'v{LG+w}'}")
    e.nop(3)
    SC = (28 ** -0.5) * 1.4426950408889634
    for w in range(8):
        e(f"v_add_f32_dpp v{KK+w}, v{LG+w}, v{LG+w} quad_perm:[1,0,3,2] row_mask:0xf bank_mask:0xf")
    e(f"s_mov_b32 s22, {fbits(SC)}\nv_mov_b32 v2, {fbits(-1e9*1.4426950408889634)}")
    for w in range(8):
        e(f"v_mul_f32 v{LG+w}, s22, v{KK+w}")
    for w in range(1, 8):
        e(f"v_cmp_le_u32 vcc, {2*w}, v7\ns_nop 1\nv_cndmask_b32 v{LG+w}, v2, v{LG+w}, vcc")
    e(f"""
    v_max3_f32 v3, v{LG}, v{LG+1}, v{LG+2}
    v_max3_f32 v3, v3, v{LG+3}, v{LG+4}
    v_max3_f32 v3, v3, v{LG+5}, v{LG+6}
    v_max_f32 v3, v3, v{LG+7}
    """)
    for w in range(8): e(f"v_sub_f32 v{LG+w}, v{LG+w}, v3")
    for w in range(8): e(f"v_exp_f32 v{LG+w}, v{LG+w}")
    e(f"""
    s_nop 0
    v_add_f32 v3, v{LG}, v{LG+1}
    v_add_f32 v5, v{LG+2}, v{LG+3}
    v_add_f32 v6, v{LG+4}, v{LG+5}
    v_add_f32 v2, v{LG+6}, v{LG+7}
    v_add_f32 v3, v3, v5
    v_add_f32 v6, v6, v2
    v_add_f32 v3, v3, v6
    v_rcp_f32 v3, v3
    s_nop 0
    """)
    for w in range(8): e(f"v_mul_f32 v{LG+w}, v{LG+w}, v3")
    for u in range(4): e(f"v_cvt_pk_bf16_f32 v{KK+u}, v{LG+2*u}, v{LG+2*u+1}")
    e("s_mov_b32 s22, 0x05040100\ns_mov_b32 s23, 0x07060302")
    TA = KK + 8
    for u in range(4):
        e.need_l([("v", 2*u), ("v", 2*u+1)])
        for i in range(7):
            a, b = VV + 7*(2*u) + i, VV + 7*(2*u+1) + i
            e(f"v_perm_b32 v{TA+2*i}, v{b}, v{a}, s22")
            e(f"v_perm_b32 v{TA+2*i+1}, v{b}, v{a}, s23")
        for i in range(14):
            e(f"v_dot2_f32_bf16 v{O+i}, v{TA+i}, v{KK+u}, {'0' if u == 0 else f'v{O+i}'}")
        e.nop(3)
    for i in range(7): e(f"v_cvt_pk_bf16_f32 v{Q+i}, v{O+2*i}, v{O+2*i+1}")
    e(f"""
    v_mul_u32_u24 v3, 2688, v7
    v_add_u32 v3, v3, v4
    s_mov_b32 s22, {WS_HO + 1792}
    """)
    e.vm(f"buffer_store_dwordx4 v[{Q}:{Q+3}], v3, s[16:19], s22 offen")
    e.vm(f"buffer_store_dwordx3 v[{Q+4}:{Q+6}], v3, s[16:19], s22 offen offset:16")
    e(f"{END}:")
    e("s_endpgm")
    return e

def gen_k2():
    NSL = 6; SL = 24576; NCH = 32
    LDS = NSL * SL
    e = E("k2_kernel", (224, 1, 1), (256, 1, 1), LDS, vgpr=192, sgpr=96)
    END = "L_end_k2"
    L = 1
    V_AG, V_BG = 2, 4
    V_AA, V_BA = 8, 12
    V_BIAS = 20
    V_T = 24
    V_FR = 32
    V_ACC = 128
    e(f"""
    s_cmp_ge_u32 s2, 224
    s_cbranch_scc1 {END}
    """)
    srd(e, 4, K_WSP, SZ_WSP); srd(e, 8, K_BSP, SZ_BSP); srd(e, 16, K_WS, WS_SIZE)
    t0, t1, t2, t3 = V_T, V_T+1, V_T+2, V_T+3
    e(f"""
    v_lshrrev_b32 v2, 6, v0
    v_and_b32 v{L}, 63, v0
    v_readfirstlane_b32 s20, v2
    s_and_b32 s24, s2, 7
    s_lshr_b32 s25, s2, 3
    s_lshr_b32 s26, s24, 1
    s_lshl_b32 s26, s26, 2
    s_and_b32 s27, s25, 3
    s_add_u32 s21, s26, s27                ; tt
    s_and_b32 s26, s24, 1
    s_mul_i32 s26, s26, 7
    s_lshr_b32 s27, s25, 2
    s_add_u32 s22, s26, s27                ; ft
    s_lshl_b32 s26, s21, 7
    s_lshl_b32 s27, s20, 5
    s_add_u32 s29, s26, s27
    s_lshl_b32 s30, s29, 12
    s_lshl_b32 s26, s20, 4
    s_mul_i32 s31, s26, 1792
    s_lshl_b32 s27, s22, 7                 ; f0*2
    s_add_u32 s31, s31, s27
    s_add_u32 s31, s31, {WS_Z2}            ; z2n base
    s_lshl_b32 s33, s20, 11                ; M0 A: w*2048
    s_lshl_b32 s34, s20, 12
    s_add_u32 s34, s34, 8192               ; M0 B: 8192 + w*4096
    v_lshrrev_b32 v{t0}, 3, v{L}
    v_lshrrev_b32 v{t1}, 4, v{L}
    v_and_b32 v{t2}, 7, v{L}
    v_and_b32 v{t3}, 1, v{t1}
    v_lshlrev_b32 v{t3}, 2, v{t3}
    v_xor_b32 v{t3}, v{t2}, v{t3}
    v_lshlrev_b32 v{t3}, 4, v{t3}
    v_mul_u32_u24 v{V_AG}, 1792, v{t0}
    v_add_u32 v{V_AG}, v{V_AG}, v{t3}
    v_add_u32 v{V_AG+1}, {8*1792-1024}, v{V_AG}
    v_lshlrev_b32 v{t0}, 12, v{t0}
    """)
    for i in range(4):
        e(f"""
        v_add_u32 v{t3}, {4*i}, v{t1}
        v_and_b32 v{t3}, 7, v{t3}
        v_xor_b32 v{t3}, v{t2}, v{t3}
        v_lshlrev_b32 v{t3}, 4, v{t3}
        v_add_u32 v{t3}, v{t0}, v{t3}
        v_add_u32 v{V_BG+i}, {i*(8*4096-1024)}, v{t3}
        """)
    e("s_waitcnt lgkmcnt(0)")
    srd_fin(e, 4, SZ_WSP); srd_fin(e, 8, SZ_BSP); srd_fin(e, 16, WS_SIZE)

    def dma_ops(c):
        slot = c % NSL
        ops = []
        if c < NCH:
            def a_pre():
                e(f"s_add_u32 m0, s33, {slot*SL}")
                e(f"s_add_u32 s36, s31, {c*64*1792}")
            ops.append(a_pre)
            for i in range(2):
                ops.append(lambda i=i: e.vm(f"buffer_load_dwordx4 v{V_AG+i}, s[16:19], s36 offen offset:{1024*i} lds", ("dma", c)))
            def b_pre():
                e(f"s_add_u32 m0, s34, {slot*SL}")
                e(f"s_add_u32 s37, s30, {c*128}")
            ops.append(b_pre)
            for i in range(4):
                ops.append(lambda i=i: e.vm(f"buffer_load_dwordx4 v{V_BG+i}, s[4:7], s37 offen offset:{1024*i} lds", ("dma", c)))
        elif c == NCH:
            def z_pre():
                e(f"""
                v_lshrrev_b32 v{t0}, 3, v{L}
                v_lshrrev_b32 v{t1}, 4, v{L}
                v_and_b32 v{t2}, 7, v{L}
                v_mul_u32_u24 v{t0}, 1792, v{t0}
                """)
                for i in range(4):
                    e(f"""
                    v_add_u32 v{t3}, {4*i}, v{t1}
                    v_and_b32 v{t3}, 7, v{t3}
                    v_xor_b32 v{t3}, v{t2}, v{t3}
                    v_lshlrev_b32 v{t3}, 4, v{t3}
                    v_add_u32 v{t3}, v{t0}, v{t3}
                    v_add_u32 v{V_BG+i}, {i*(8*1792-1024)}, v{t3}
                    """)
                e(f"""
                s_add_u32 m0, s34, {slot*SL}
                s_mul_i32 s37, s29, 1792
                s_lshl_b32 s38, s22, 7
                s_add_u32 s37, s37, s38
                s_add_u32 s37, s37, {WS_Z1}
                """)
            ops.append(z_pre)
            for i in range(4):
                ops.append(lambda i=i: e.vm(f"buffer_load_dwordx4 v{V_BG+i}, s[16:19], s37 offen offset:{1024*i} lds", ("dma", c)))
        return ops
    for c in range(NSL):
        for op in dma_ops(c): op()
    e(f"""
    v_and_b32 v{t0}, 31, v{L}
    v_lshlrev_b32 v{t0}, 1, v{t0}
    s_lshl_b32 s38, s29, 1
    """)
    e.vm(f"buffer_load_ushort v{V_BIAS}, v{t0}, s[8:11], s38 offen", "bias")
    n_, h_, r_, ch_, u_ = V_T, V_T+1, V_T+2, V_T+3, V_T+4
    e(f"""
    v_and_b32 v{n_}, 31, v{L}
    v_lshrrev_b32 v{h_}, 5, v{L}
    v_and_b32 v{r_}, 15, v{L}
    v_and_b32 v{u_}, 3, v{r_}
    v_lshlrev_b32 v{u_}, 3, v{u_}          ; quad*8
    v_lshrrev_b32 v{r_}, 2, v{r_}          ; r
    v_lshrrev_b32 v{ch_}, 4, v{L}
    v_and_b32 v{ch_}, 1, v{ch_}
    v_lshlrev_b32 v{ch_}, 5, v{ch_}
    v_add_u32 v{ch_}, v{ch_}, v{u_}        ; colhalf*32+quad*8
    v_lshlrev_b32 v{u_}, 3, v{h_}
    v_add_u32 v{u_}, v{u_}, v{r_}
    v_lshlrev_b32 v{u_}, 7, v{u_}          ; (8h+r)*128
    v_add_u32 v{ch_}, v{ch_}, v{u_}
    v_lshrrev_b32 v{r_}, 1, v{r_}          ; (r>>1)&1
    v_lshlrev_b32 v{r_}, 6, v{r_}
    v_add_u32 v{V_AA}, v{ch_}, v{r_}       ; b=0: (0 ^ x)<<6
    v_xor_b32 v{r_}, 64, v{r_}
    v_add_u32 v{V_AA+1}, v{ch_}, v{r_}     ; b=1
    v_add_u32 v{V_AA+2}, {3*SL}, v{V_AA}
    v_add_u32 v{V_AA+3}, {3*SL}, v{V_AA+1}
    s_lshl_b32 s39, s20, 12
    s_add_u32 s39, s39, 8192
    v_lshrrev_b32 v{u_}, 1, v{n_}
    v_and_b32 v{u_}, 7, v{u_}
    v_lshlrev_b32 v{ch_}, 7, v{n_}
    v_add_u32 v{ch_}, s39, v{ch_}
    """)
    for g in range(4):
        e(f"""
        v_add_u32 v{r_}, {2*g}, v{h_}
        v_xor_b32 v{r_}, v{r_}, v{u_}
        v_lshlrev_b32 v{r_}, 4, v{r_}
        v_add_u32 v{V_BA+g}, v{ch_}, v{r_}
        v_add_u32 v{V_BA+4+g}, {3*SL}, v{V_BA+g}
        """)
    def read_ops(c):
        slot = c % NSL; st = slot // 3; so = (slot % 3) * SL; buf = c % 2
        ops = []
        for g in range(4):
            fb = V_FR + 48 * buf + 12 * g
            ops.append(lambda g=g, fb=fb: e.ds(f"ds_read_b128 v[{fb}:{fb+3}], v{V_BA+4*st+g} offset:{so}", ("fr", c)))
            for b in range(2):
                for t in range(2):
                    d = fb + 4 + 4 * b + 2 * t
                    ops.append(lambda d=d, b=b, t=t, g=g: e.ds(f"ds_read_b64_tr_b16 v[{d}:{d+1}], v{V_AA+2*st+b} offset:{so + (16*g+4*t)*128}", ("fr", c)))
        return ops
    e.need_v(("dma", 0)); e("s_barrier")
    for op in read_ops(0): op()
    for c in range(NCH):
        buf = c % 2
        e.need_l(("fr", c))
        if c + 1 < NCH:
            e.need_v(("dma", c + 1))
        e("s_barrier")
        mains = []
        for g in range(4):
            for b in range(2):
                fb = V_FR + 48 * buf + 12 * g
                d = V_ACC + 16 * b
                cin = "0" if (c == 0 and g == 0) else f"v[{d}:{d+15}]"
                mains.append(lambda fb=fb, b=b, d=d, cin=cin: e(f"v_mfma_f32_32x32x16_bf16 v[{d}:{d+15}], v[{fb+4+4*b}:{fb+7+4*b}], v[{fb}:{fb+3}], {cin}"))
        fill = (read_ops(c + 1) if c + 1 < NCH else []) + dma_ops(c + NSL)
        interleave(e, mains, fill)
    zslot = (NCH % NSL) * SL
    e.need_v([("dma", NCH), "bias"])
    T = V_T
    e(f"""
    v_and_b32 v{T}, 31, v{L}
    v_lshrrev_b32 v{T+1}, 5, v{L}
    v_lshrrev_b32 v{T+2}, 1, v{T}
    v_and_b32 v{T+2}, 7, v{T+2}
    v_lshlrev_b32 v{T+2}, 4, v{T+2}        ; f<<4
    v_lshlrev_b32 v{T+3}, 7, v{T}          ; n*128
    v_lshlrev_b32 v{T+4}, 3, v{T+1}        ; 8h
    v_add3_u32 v{T+2}, v{T+2}, v{T+3}, v{T+4}
    s_add_u32 s39, s34, {zslot}
    v_add_u32 v{T+2}, s39, v{T+2}          ; base
    v_lshlrev_b32 v{V_BIAS}, 16, v{V_BIAS}
    v_mov_b32 v{V_BIAS+1}, v{V_BIAS}
    """)
    Z = V_FR
    for p in range(8):
        e(f"v_xor_b32 v{T+5}, {p*16}, v{T+2}")
        e.ds(f"ds_read_b64 v[{Z+2*p}:{Z+2*p+1}], v{T+5}", ("z1", p))
    wslot = ((NCH + 1) % NSL) * SL
    e(f"""
    s_mul_i32 s39, s20, {32*144}
    s_add_u32 s39, s39, {wslot}
    v_mul_u32_u24 v{T+6}, 144, v{T}
    v_add3_u32 v{T+6}, v{T+6}, v{T+4}, s39
    """)
    U = V_FR + 16
    for p in range(8):
        b, q = divmod(p, 4)
        acc = V_ACC + 16 * b + 4 * q
        e.need_l(("z1", p))
        e(f"""
        v_pk_add_f32 v[{acc}:{acc+1}], v[{acc}:{acc+1}], v[{V_BIAS}:{V_BIAS+1}]
        v_pk_add_f32 v[{acc+2}:{acc+3}], v[{acc+2}:{acc+3}], v[{V_BIAS}:{V_BIAS+1}]
        v_lshlrev_b32 v{U}, 16, v{Z+2*p}
        v_and_b32 v{U+1}, 0xffff0000, v{Z+2*p}
        v_lshlrev_b32 v{U+2}, 16, v{Z+2*p+1}
        v_and_b32 v{U+3}, 0xffff0000, v{Z+2*p+1}
        v_pk_mul_f32 v[{acc}:{acc+1}], v[{acc}:{acc+1}], v[{U}:{U+1}]
        v_pk_mul_f32 v[{acc+2}:{acc+3}], v[{acc+2}:{acc+3}], v[{U+2}:{U+3}]
        v_cvt_pk_bf16_f32 v{U+4}, v{acc}, v{acc+1}
        v_cvt_pk_bf16_f32 v{U+5}, v{acc+2}, v{acc+3}
        """)
        e.ds(f"ds_write_b64 v{T+6}, v[{U+4}:{U+5}] offset:{p*16}")
    e.wait_l0()
    e(f"""
    v_lshrrev_b32 v{T}, 3, v{L}
    v_and_b32 v{T+1}, 7, v{L}
    v_lshlrev_b32 v{T+1}, 4, v{T+1}
    v_mul_u32_u24 v{T+2}, 144, v{T}
    v_add3_u32 v{T+2}, v{T+2}, v{T+1}, s39
    v_mul_u32_u24 v{T+3}, 2688, v{T}
    v_add_u32 v{T+3}, v{T+3}, v{T+1}
    s_mul_i32 s40, s29, 2688
    s_lshl_b32 s41, s22, 7
    s_add_u32 s40, s40, s41
    s_add_u32 s40, s40, {WS_HO}
    """)
    for i in range(4):
        e.ds(f"ds_read_b128 v[{Z+4*i}:{Z+4*i+3}], v{T+2} offset:{8*i*144}", ("o", i))
    for i in range(4):
        e.need_l(("o", i))
        e(f"s_add_u32 s41, s40, {8*i*2688}")
        e.vm(f"buffer_store_dwordx4 v[{Z+4*i}:{Z+4*i+3}], v{T+3}, s[16:19], s41 offen")
    e(f"{END}:")
    e("s_endpgm")
    return e

def gen_k3():
    NSL = 8; SL = 16384; NCH = 21
    XL = NSL * SL
    LDS = XL + 8192
    e = E("k3_kernel", (224, 1, 1), (256, 1, 1), LDS, vgpr=128, sgpr=96)
    END = "L_end_k3"
    L = 1
    V_AG, V_BG = 2, 4
    V_AA, V_BA = 8, 12
    V_T = 24
    V_FR = 32
    V_ACC = 96
    e(f"""
    s_cmp_ge_u32 s2, 224
    s_cbranch_scc1 {END}
    """)
    srd(e, 4, K_WOUT, SZ_WOUT); srd(e, 8, K_WO, SZ_WO); srd(e, 12, K_X, SZ_X); srd(e, 16, K_WS, WS_SIZE); srd(e, 44, K_OUT, SZ_X)
    t0, t1, t2, t3 = V_T, V_T+1, V_T+2, V_T+3
    e(f"""
    v_lshrrev_b32 v2, 6, v0
    v_and_b32 v{L}, 63, v0
    v_readfirstlane_b32 s20, v2
    s_and_b32 s24, s2, 7
    s_lshr_b32 s25, s2, 3
    s_lshl_b32 s26, s24, 2
    s_and_b32 s27, s25, 3
    s_add_u32 s21, s26, s27
    s_lshr_b32 s22, s25, 2                 ; nt
    s_lshl_b32 s28, s21, 6                 ; t0
    s_lshl_b32 s26, s20, 4                 ; 16 w
    s_add_u32 s29, s28, s26                ; t0 + 16 w
    s_mul_i32 s30, s29, 2688
    s_add_u32 s30, s30, {WS_HO}            ; B base
    s_mul_i32 s31, s26, 896
    s_lshl_b32 s27, s22, 7
    s_add_u32 s31, s31, s27
    s_lshl_b32 s33, s20, 11                ; M0 A: w*2048
    s_add_u32 s34, s33, 8192               ; M0 B
    v_lshrrev_b32 v{t0}, 3, v{L}
    v_lshrrev_b32 v{t1}, 4, v{L}
    v_and_b32 v{t2}, 7, v{L}
    v_and_b32 v{t3}, 1, v{t1}
    v_lshlrev_b32 v{t3}, 2, v{t3}
    v_xor_b32 v{t3}, v{t2}, v{t3}
    v_lshlrev_b32 v{t3}, 4, v{t3}
    v_mul_u32_u24 v{V_AG}, 896, v{t0}
    v_add_u32 v{V_AG}, v{V_AG}, v{t3}
    v_add_u32 v{V_AG+1}, {8*896-1024}, v{V_AG}
    """)
    V_XG = 6
    for i in range(2):
        e(f"""
        v_add_u32 v{t3}, {4*i}, v{t1}
        v_and_b32 v{t3}, 7, v{t3}
        v_xor_b32 v{t3}, v{t2}, v{t3}
        v_lshlrev_b32 v{t3}, 4, v{t3}
        v_mul_u32_u24 v{V_BG+i}, 2688, v{t0}
        v_add_u32 v{V_BG+i}, v{V_BG+i}, v{t3}
        v_add_u32 v{V_BG+i}, {i*(8*2688-1024)}, v{V_BG+i}
        v_mul_u32_u24 v{V_XG+i}, 896, v{t0}
        v_add_u32 v{V_XG+i}, v{V_XG+i}, v{t3}
        v_add_u32 v{V_XG+i}, {i*(8*896-1024)}, v{V_XG+i}
        """)
    e("s_waitcnt lgkmcnt(0)")
    srd_fin(e, 4, SZ_WOUT); srd_fin(e, 8, SZ_WO); srd_fin(e, 12, SZ_X); srd_fin(e, 16, WS_SIZE); srd_fin(e, 44, SZ_X)
    def dma_ops(c):
        if c >= NCH: return []
        slot = c % NSL
        ops = []
        sA = "s[4:7]" if c < 14 else "s[8:11]"
        ck = c if c < 14 else c - 14
        def a_pre():
            e(f"s_add_u32 m0, s33, {slot*SL}")
            e(f"s_add_u32 s36, s31, {ck*64*896}")
        ops.append(a_pre)
        for i in range(2):
            ops.append(lambda i=i: e.vm(f"buffer_load_dwordx4 v{V_AG+i}, {sA}, s36 offen offset:{1024*i} lds", ("dma", c)))
        def b_pre():
            e(f"s_add_u32 m0, s34, {slot*SL}")
            e(f"s_add_u32 s37, s30, {c*128}")
        ops.append(b_pre)
        for i in range(2):
            ops.append(lambda i=i: e.vm(f"buffer_load_dwordx4 v{V_BG+i}, s[16:19], s37 offen offset:{1024*i} lds", ("dma", c)))
        return ops
    for c in range(NSL):
        for op in dma_ops(c): op()
    e(f"""
    s_add_u32 m0, s33, {XL}
    s_mul_i32 s36, s29, 896
    s_lshl_b32 s37, s22, 7
    s_add_u32 s36, s36, s37
    """)
    for i in range(2):
        e.vm(f"buffer_load_dwordx4 v{V_XG+i}, s[12:15], s36 offen offset:{1024*i} lds", "x")
    n_, h_, r_, ch_, u_ = V_T, V_T+1, V_T+2, V_T+3, V_T+4
    e(f"""
    s_and_b32 s40, s20, 1                  ; tb
    s_lshr_b32 s41, s20, 1                 ; nb
    v_and_b32 v{n_}, 31, v{L}
    v_lshrrev_b32 v{h_}, 5, v{L}
    v_and_b32 v{r_}, 15, v{L}
    v_and_b32 v{u_}, 3, v{r_}
    v_lshlrev_b32 v{u_}, 3, v{u_}
    v_lshrrev_b32 v{r_}, 2, v{r_}
    v_lshrrev_b32 v{ch_}, 4, v{L}
    v_and_b32 v{ch_}, 1, v{ch_}
    v_lshlrev_b32 v{ch_}, 5, v{ch_}
    v_add_u32 v{ch_}, v{ch_}, v{u_}
    v_lshlrev_b32 v{u_}, 3, v{h_}
    v_add_u32 v{u_}, v{u_}, v{r_}
    v_lshlrev_b32 v{u_}, 7, v{u_}
    v_add_u32 v{ch_}, v{ch_}, v{u_}
    v_lshrrev_b32 v{r_}, 1, v{r_}
    v_xor_b32 v{r_}, s41, v{r_}            ; nb ^ ((r>>1)&1)
    v_lshlrev_b32 v{r_}, 6, v{r_}
    v_add_u32 v{V_AA}, v{ch_}, v{r_}
    v_add_u32 v{V_AA+1}, {4*SL}, v{V_AA}
    s_lshl_b32 s39, s40, 12
    s_add_u32 s39, s39, 8192
    v_lshrrev_b32 v{u_}, 1, v{n_}
    v_and_b32 v{u_}, 7, v{u_}
    v_lshlrev_b32 v{ch_}, 7, v{n_}
    v_add_u32 v{ch_}, s39, v{ch_}
    """)
    for g in range(4):
        e(f"""
        v_add_u32 v{r_}, {2*g}, v{h_}
        v_xor_b32 v{r_}, v{r_}, v{u_}
        v_lshlrev_b32 v{r_}, 4, v{r_}
        v_add_u32 v{V_BA+g}, v{ch_}, v{r_}
        v_add_u32 v{V_BA+4+g}, {4*SL}, v{V_BA+g}
        """)
    def read_ops(c):
        slot = c % NSL; st = slot // 4; so = (slot % 4) * SL; buf = c % 2
        ops = []
        for g in range(4):
            fb = V_FR + 32 * buf + 8 * g
            ops.append(lambda g=g, fb=fb: e.ds(f"ds_read_b128 v[{fb}:{fb+3}], v{V_BA+4*st+g} offset:{so}", ("fr", c)))
            for t in range(2):
                d = fb + 4 + 2 * t
                ops.append(lambda d=d, t=t, g=g: e.ds(f"ds_read_b64_tr_b16 v[{d}:{d+1}], v{V_AA+st} offset:{so + (16*g+4*t)*128}", ("fr", c)))
        return ops
    e.need_v(("dma", 0)); e("s_barrier")
    for op in read_ops(0): op()
    for c in range(NCH):
        buf = c % 2
        e.need_l(("fr", c))
        if c + 1 < NCH: e.need_v(("dma", c + 1))
        e("s_barrier")
        mains = []
        for g in range(4):
            fb = V_FR + 32 * buf + 8 * g
            cin = "0" if (c == 0 and g == 0) else f"v[{V_ACC}:{V_ACC+15}]"
            mains.append(lambda fb=fb, cin=cin: e(f"v_mfma_f32_32x32x16_bf16 v[{V_ACC}:{V_ACC+15}], v[{fb+4}:{fb+7}], v[{fb}:{fb+3}], {cin}"))
        fill = (read_ops(c + 1) if c + 1 < NCH else []) + dma_ops(c + NSL)
        interleave(e, mains, fill)
    e.need_v("x"); e("s_barrier")
    T = V_T
    e(f"""
    v_and_b32 v{T}, 31, v{L}
    v_lshrrev_b32 v{T+1}, 5, v{L}
    s_lshl_b32 s39, s40, 5
    v_add_u32 v{T+7}, s39, v{T}
    v_lshrrev_b32 v{T+2}, 1, v{T}
    v_and_b32 v{T+2}, 7, v{T+2}
    v_lshlrev_b32 v{T+2}, 4, v{T+2}
    v_lshlrev_b32 v{T+3}, 7, v{T+7}
    v_lshlrev_b32 v{T+4}, 3, v{T+1}        ; 8h
    v_add3_u32 v{T+2}, v{T+2}, v{T+3}, v{T+4}
    v_add_u32 v{T+2}, {XL}, v{T+2}
    s_lshl_b32 s42, s41, 6
    """)
    Z = V_FR
    for q in range(4):
        e(f"""
        s_add_u32 s43, s42, {q*16}
        v_xor_b32 v{T+5}, s43, v{T+2}
        """)
        e.ds(f"ds_read_b64 v[{Z+2*q}:{Z+2*q+1}], v{T+5}", ("x", q))
    e(f"""
    v_mul_u32_u24 v{T+6}, 144, v{T+7}
    v_add3_u32 v{T+6}, v{T+6}, v{T+4}, s42
    """)
    U = V_FR + 16
    for q in range(4):
        acc = V_ACC + 4 * q
        e.need_l(("x", q))
        e(f"""
        v_lshlrev_b32 v{U}, 16, v{Z+2*q}
        v_and_b32 v{U+1}, 0xffff0000, v{Z+2*q}
        v_lshlrev_b32 v{U+2}, 16, v{Z+2*q+1}
        v_and_b32 v{U+3}, 0xffff0000, v{Z+2*q+1}
        v_pk_add_f32 v[{acc}:{acc+1}], v[{acc}:{acc+1}], v[{U}:{U+1}]
        v_pk_add_f32 v[{acc+2}:{acc+3}], v[{acc+2}:{acc+3}], v[{U+2}:{U+3}]
        v_cvt_pk_bf16_f32 v{U+4}, v{acc}, v{acc+1}
        v_cvt_pk_bf16_f32 v{U+5}, v{acc+2}, v{acc+3}
        """)
        e.ds(f"ds_write_b64 v{T+6}, v[{U+4}:{U+5}] offset:{q*16}")
    e.wait_l0(); e("s_barrier")
    e(f"""
    v_lshrrev_b32 v{T}, 3, v{L}
    s_lshl_b32 s39, s20, 4
    v_add_u32 v{T}, s39, v{T}
    v_and_b32 v{T+1}, 7, v{L}
    v_lshlrev_b32 v{T+1}, 4, v{T+1}
    v_mul_u32_u24 v{T+2}, 144, v{T}
    v_add_u32 v{T+2}, v{T+2}, v{T+1}
    v_mul_u32_u24 v{T+3}, 896, v{T}
    v_add_u32 v{T+3}, v{T+3}, v{T+1}
    s_mul_i32 s40, s28, 896
    s_lshl_b32 s41, s22, 7
    s_add_u32 s40, s40, s41
    """)
    for i in range(2):
        e.ds(f"ds_read_b128 v[{Z+4*i}:{Z+4*i+3}], v{T+2} offset:{8*i*144}", ("o", i))
    for i in range(2):
        e.need_l(("o", i))
        e(f"s_add_u32 s41, s40, {8*i*896}")
        e.vm(f"buffer_store_dwordx4 v[{Z+4*i}:{Z+4*i+3}], v{T+3}, s[44:47], s41 offen")
    e(f"{END}:")
    e("s_endpgm")
    return e

HEADER = open("parallel_sum__sliding_local_dilated__mixer_gmlp__prompt.s.ref").read().split("; Override launch")[0]

if __name__ == "__main__":
    out = sys.argv[1] if len(sys.argv) > 1 else "v1.s"
    ks = [gen_k1(), gen_k1b(), gen_k2(), gen_k3()]
    open(out, "w").write(build(ks, header=HEADER))
    print("wrote", out)
```

```python
import sys
from gen import *
def empty_kernel(n="empty_kernel", grid=1):
    e = E(n, (grid,1,1), (64,1,1), 0, vgpr=8, sgpr=16)
    e("s_endpgm")
    return e
k1, k1b, k2, k3 = gen_k1(), gen_k1b(), gen_k2(), gen_k3()
em = empty_kernel()
V = {
 "a_empty2": ([k1,k1b,k2,k3,em], [k1,k1b,k2,k3,em,em]),
 "b_k1x2": ([k1,k1b,k2,k3], [k1,k1,k1b,k2,k3]),
 "c_k2x2": ([k1,k1b,k2,k3], [k1,k1b,k2,k2,k3]),
 "d_k3x2": ([k1,k1b,k2,k3], [k1,k1b,k2,k3,k3]),
 "e_k1k1bx2": ([k1,k1b,k2,k3], [k1,k1b,k1,k1b,k2,k3]),
}
for n,(ks,ls) in V.items():
    open(f"var_{n}.s","w").write(build(ks, ls, header=HEADER))
```

```python
class E:
    def __init__(self, name, grid, block, lds, vgpr=256, sgpr=96, accum=None):
        self.name, self.grid, self.block, self.lds = name, grid, block, lds
        self.vgpr, self.sgpr, self.accum = vgpr, sgpr, accum
        self.lines = []
        self._lbl = 0
        self.lq = []
        self.vq = []
        self.vcount = 0
    def __call__(self, s):
        for l in s.strip("\n").split("\n"):
            l = l.strip()
            if not l: continue
            self.lines.append(l if l.endswith(":") else "    " + l)
    def c(self, s): self.lines.append("    ; " + s)
    def label(self, base="L"):
        self._lbl += 1
        return f"{base}_{self.name[:-7]}_{self._lbl}"
    def ds(self, s, tag=None):
        self(s); self.lq.append(tag)
    def vm(self, s, tag=None):
        self(s); self.vq.append(tag); self.vcount += 1
    def wait_v_since(self, pos):
        self(f"s_waitcnt vmcnt({min(self.vcount - pos, 63)})")
    def save(self): return (list(self.lq), list(self.vq), self.vcount)
    def restore(self, st): self.lq, self.vq, self.vcount = list(st[0]), list(st[1]), st[2]
    def need_l(self, tags):
        if not isinstance(tags, (list, set)): tags = [tags]
        idx = -1
        for i, t in enumerate(self.lq):
            if t in tags: idx = i
        if idx < 0: return
        n = len(self.lq) - 1 - idx
        if n > 15: n = 15
        self(f"s_waitcnt lgkmcnt({n})")
        self.lq = self.lq[len(self.lq) - n:] if n else []
    def need_v(self, tags):
        if not isinstance(tags, (list, set)): tags = [tags]
        idx = -1
        for i, t in enumerate(self.vq):
            if t in tags: idx = i
        if idx < 0: return
        n = len(self.vq) - 1 - idx
        if n > 63: n = 63
        self(f"s_waitcnt vmcnt({n})")
        self.vq = self.vq[len(self.vq) - n:] if n else []
    def wait_l0(self):
        self("s_waitcnt lgkmcnt(0)"); self.lq = []
    def wait_v0(self):
        self("s_waitcnt vmcnt(0)"); self.vq = []
    def wait_all(self):
        self("s_waitcnt vmcnt(0) lgkmcnt(0)"); self.lq = []; self.vq = []
    def nop(self, n):
        while n > 0:
            m = min(n, 16); self(f"s_nop {m-1}"); n -= m
    def text(self):
        return "\n".join([f".globl {self.name}", ".p2align 8", f".type {self.name},@function", f"{self.name}:"] + self.lines)
    def desc(self):
        acc = self.accum if self.accum is not None else (min(256, (self.vgpr + 3) // 4 * 4))
        return "\n".join([".p2align 6", f".amdhsa_kernel {self.name}",
            f"  .amdhsa_next_free_vgpr {self.vgpr}", f"  .amdhsa_next_free_sgpr {self.sgpr}", f"  .amdhsa_accum_offset {acc}",
            "  .amdhsa_group_segment_fixed_size 0", "  .amdhsa_kernarg_size 88", "  .amdhsa_user_sgpr_count 2",
            "  .amdhsa_user_sgpr_kernarg_segment_ptr 1", "  .amdhsa_system_sgpr_workgroup_id_x 1",
            "  .amdhsa_float_denorm_mode_32 3", "  .amdhsa_float_denorm_mode_16_64 3",
            ".end_amdhsa_kernel"])

def build(kernels, launches=None, header=""):
    launches = launches or kernels
    out = []
    if header: out.append(header.rstrip("\n"))
    for k in launches:
        g, b = k.grid, k.block
        out.append(f"; @launch kernel={k.name} grid=({g[0]},{g[1]},{g[2]}) block=({b[0]},{b[1]},{b[2]}) lds={k.lds}")
    out.append('.amdgcn_target "amdgcn-amd-amdhsa--gfx950"')
    out.append(".text")
    for k in kernels: out.append(k.text())
    out.append('.section .rodata,"a"')
    for k in kernels: out.append(k.desc())
    return "\n".join(out) + "\n"

def vr(b, n=1):
    return f"v{b}" if n == 1 else f"v[{b}:{b+n-1}]"
def ar(b, n=1):
    return f"a{b}" if n == 1 else f"a[{b}:{b+n-1}]"
def sr(b, n=1):
    return f"s{b}" if n == 1 else f"s[{b}:{b+n-1}]"

def interleave(e, main, fill, start=0, per=None):
    n = len(main)
    fi = 0
    for i, m in enumerate(main):
        m()
        if i < start: continue
        rem_m = n - i
        rem_f = len(fill) - fi
        cnt = -(-rem_f // rem_m) if per is None else min(per, rem_f)
        for _ in range(cnt):
            fill[fi](); fi += 1
    while fi < len(fill):
        fill[fi](); fi += 1
```

```python
import struct
from emit import *

S, D, F, FH, QK = 2048, 448, 1792, 896, 1344
WS_Z1R = 0x0000000
WS_Z2  = 0x0400000
WS_QKV = 0x0800000
WS_HO  = 0x0E00000
WS_SUM = 0x1400000
WS_FLG = 0x1500000
WS_SIZE = 0x10000000
K_X, K_WQKV, K_WO, K_WIN, K_WSP, K_BSP, K_WOUT, K_OUT, K_DBG, K_WS = 0, 8, 16, 32, 40, 48, 56, 64, 72, 80
SZ_X = S * D * 2; SZ_WQKV = D * QK * 2; SZ_WO = D * D * 2; SZ_WIN = D * F * 2
SZ_WSP = S * S * 2; SZ_BSP = S * 2; SZ_WOUT = FH * D * 2

R_X, R_WIN, R_WQKV, R_WS, R_WSP, R_WOUT, R_WO, R_OUT, R_BSP, R_DBG = 4, 8, 12, 16, 20, 24, 28, 32, 36, 40
SRDS = {"x": (R_X, K_X, SZ_X), "win": (R_WIN, K_WIN, SZ_WIN), "wqkv": (R_WQKV, K_WQKV, SZ_WQKV), "ws": (R_WS, K_WS, WS_SIZE),
        "wsp": (R_WSP, K_WSP, SZ_WSP), "wout": (R_WOUT, K_WOUT, SZ_WOUT), "wo": (R_WO, K_WO, SZ_WO), "out": (R_OUT, K_OUT, SZ_X),
        "bsp": (R_BSP, K_BSP, SZ_BSP)}
def sq(r): return f"s[{r}:{r+3}]"
S_W, S_RG, S_CH, S_MT, S_J, S_ROW0 = 42, 43, 44, 45, 46, 47
S_NONCE = 59

GELU_K1 = -2.0 * 0.7978845608028654 * 1.4426950408889634
GELU_K2 = GELU_K1 * 0.044715
def fbits(x): return "0x%08x" % struct.unpack("<I", struct.pack("<f", x))[0]

def load_srds(e, names, dbg=False):
    for n in names:
        r, k, sz = SRDS[n]
        e(f"s_load_dwordx2 s[{r}:{r+1}], s[0:1], {k}")
    if dbg: e(f"s_load_dwordx2 s[{R_DBG}:{R_DBG+1}], s[0:1], {K_DBG}")
def fin_srds(e, names):
    for n in names:
        r, k, sz = SRDS[n]
        e(f"s_mov_b32 s{r+2}, {sz}")
        e(f"s_mov_b32 s{r+3}, 0x20000")

def wave_ids(e):
    e(f"""
    v_lshrrev_b32 v2, 6, v0
    v_and_b32 v1, 63, v0
    v_readfirstlane_b32 s{S_W}, v2
    """)

def tile_ids(e):
    e(f"""
    s_and_b32 s48, s2, 7
    s_lshr_b32 s49, s2, 3
    s_lshr_b32 s50, s48, 1
    s_lshl_b32 s50, s50, 2
    s_and_b32 s51, s49, 3
    s_add_u32 s{S_MT}, s50, s51
    s_and_b32 s50, s48, 1
    s_mul_i32 s50, s50, 7
    s_lshr_b32 s51, s49, 2
    s_add_u32 s{S_J}, s50, s51
    s_lshl_b32 s{S_ROW0}, s{S_MT}, 7
    s_and_b32 s{S_RG}, s{S_W}, 3
    s_lshr_b32 s{S_CH}, s{S_W}, 2
    """)

def spread(ops, n):
    out = []
    k = 0
    for i in range(n):
        m = (len(ops) * (i + 1)) // n
        out.append(ops[k:m]); k = m
    return out

def emit_iter(e, mains, fill, first=0):
    for f in fill[:first]: f()
    interleave(e, mains, fill[first:])

def code_prefetch(e, start_label, end_label, nthreads, vdst, voff, nwg=8, sbase=48):
    L = e.label("cpf")
    e(f"""
    s_cmp_ge_u32 s2, {nwg}
    s_cbranch_scc1 {L}_done
    s_getpc_b64 s[{sbase}:{sbase+1}]
    {L}_p:
    s_sub_u32 s{sbase}, s{sbase}, {L}_p-{start_label}
    s_subb_u32 s{sbase+1}, s{sbase+1}, 0
    s_mov_b32 s{sbase+2}, {end_label}-{start_label}-16
    v_lshlrev_b32 v{voff}, 4, v0
    {L}_loop:
    v_cmp_ge_u32 vcc, s{sbase+2}, v{voff}
    s_and_b64 exec, exec, vcc
    s_cbranch_execz {L}_fin
    global_load_dwordx4 v[{vdst}:{vdst+3}], v{voff}, s[{sbase}:{sbase+1}]
    v_add_u32 v{voff}, {nthreads*16}, v{voff}
    s_branch {L}_loop
    {L}_fin:
    s_mov_b64 exec, -1
    {L}_done:
    """)

HEADER = open("parallel_sum__sliding_local_dilated__mixer_gmlp__prompt.s.ref").read().split("; Override launch")[0]
```

```python
from g2common import *

K1_XR, K1_WR, K1_ST, K1_ST2, K1_TAB = 0, 65536, 131072, 149504, 159744
K1_NON = K1_TAB + 3072
K1_LDS = K1_NON + 64
V_Z1 = 96
WS_PART = 0x1400000
BARS = (0, 1, 2, 3, 4, 5, 6, 7, 9, 11, 13, 14, 16, 18, 20, 21, 23, 25, 27)


def k1_main(e, fused=False, opt=None):
    opt = opt or {}
    if "tsg" in opt:
        _c = e.c
        def c2(t):
            if t.startswith("TS ") and not t.endswith(" "): return
            _c(t)
        e.c = c2
    bars = opt.get("bars", BARS)
    XR, WR, ST, ST2, TAB, NON = K1_XR, K1_WR, K1_ST, K1_ST2, K1_TAB, K1_NON
    RS, CSP, ZSP = ST2, TAB, TAB + 1024
    XSLOT = (0, 16384, 32768, 49152, ST, 0, 16384)
    STZ = XR
    L = 1
    XG, WGI, WGQ, WGQ2 = 2, 4, 5, 6
    CSW = 7
    XA, WA = 8, 12
    WB = XA
    STWZ, STRZ = WA, WA + 1
    SEL, CSA = 16, 20
    S_, SS_, ONE, GA, GB, RINV, R_, CSPR = 24, 25, 26, 27, 28, 29, 30, 31
    WF, PK, PK2, T = 32, V_Z1, 104, 112
    ACCS = (64, 80, 48, 80)
    GRAM, SX = 48, T
    RB = 120
    STW, STR, GZ, GQ = 128, 129, 130, 131
    CB, CA = 132, 136
    RSR, RSW, PLA, ZA = 140, 141, 142, 143
    XA4 = PK
    PL = 64
    sX, sWz2, sWz1, sWq, sM0X, sM0W, sM0W2, sT, sT2, sT3 = 48, 49, 50, 51, 52, 53, 54, 55, 56, 57
    sU, sV = 60, 61
    t0, t1, t2, t3 = T, T + 1, T + 2, T + 3

    e(f"""
    v_lshrrev_b32 v{t0}, 3, v{L}
    v_lshrrev_b32 v{t1}, 4, v{L}
    v_and_b32 v{t2}, 7, v{L}
    v_mul_u32_u24 v{XG}, 896, v{t0}
    v_xor_b32 v{t3}, v{t2}, v{t1}
    v_lshlrev_b32 v{t3}, 4, v{t3}
    v_add_u32 v{XG+1}, {8*896-1024}, v{XG}
    v_add_u32 v{XG}, v{XG}, v{t3}
    v_xor_b32 v{t3}, 64, v{t3}
    v_add_u32 v{XG+1}, v{XG+1}, v{t3}
    v_and_b32 v{t3}, 1, v{t1}
    v_lshlrev_b32 v{t3}, 2, v{t3}
    v_xor_b32 v{t3}, v{t2}, v{t3}
    v_lshlrev_b32 v{t3}, 4, v{t3}
    v_mul_u32_u24 v{WGI}, 3584, v{t0}
    v_add_u32 v{WGI}, v{WGI}, v{t3}
    s_lshl_b32 s{sT}, s{S_W}, 4
    s_add_u32 s{sT}, s{sT}, s{S_ROW0}
    s_mul_i32 s{sX}, s{sT}, 896
    s_mul_i32 s{sT}, s{S_W}, {8*3584}
    s_lshl_b32 s{sT2}, s{S_J}, 7
    s_add_u32 s{sWz1}, s{sT}, s{sT2}
    s_add_u32 s{sWz2}, s{sWz1}, 1792
    s_lshl_b32 s{sM0X}, s{S_W}, 11
    s_add_u32 s{sM0X}, s{sM0X}, {XR}
    s_lshl_b32 s{sM0W}, s{S_W}, 10
    s_add_u32 s{sM0W}, s{sM0W}, {WR}
    s_waitcnt lgkmcnt(0)
    """)
    fin_srds(e, ["x", "win"])

    def x_dma(c):
        if c >= 7: return []
        def pre():
            e(f"s_add_u32 m0, s{sM0X}, {XSLOT[c]}")
            e(f"s_add_u32 s{sT}, s{sX}, {c * 128}")
        ops = [pre]
        for i in range(2):
            ops.append(lambda i=i: e.vm(f"buffer_load_dwordx4 v{XG+i}, {sq(R_X)}, s{sT} offen offset:{1024*i} lds", ("x", c)))
        return ops
    def w_dma(g):
        if g >= 28: return []
        ph, c = divmod(g, 7)
        slot = g % 8
        if ph < 3:
            base = (sWz2, sWz1, sWq)[ph]; pitch = (3584, 3584, 2688)[ph]
            vo = (WGI, WGI, WGQ)[ph]; srd = (R_WIN, R_WIN, R_WQKV)[ph]
            def op():
                e(f"s_add_u32 m0, s{sM0W}, {slot * 8192}")
                e(f"s_add_u32 s{sT2}, s{base}, {c * 64 * pitch}")
                e.vm(f"buffer_load_dwordx4 v{vo}, {sq(srd)}, s{sT2} offen lds", ("w", g))
        else:
            def op():
                e(f"s_add_u32 m0, s{sM0W2}, {slot * 8192}")
                e(f"s_add_u32 s{sT2}, s{sWq}, {c * 64 * 2688 + 128}")
                e("s_mov_b32 exec_hi, 0")
                e.vm(f"buffer_load_dwordx4 v{WGQ2}, {sq(R_WQKV)}, s{sT2} offen lds", ("w", g))
                e("s_mov_b32 exec_hi, -1")
        return [op]
    for op in x_dma(0) + w_dma(0) + x_dma(1) + w_dma(1): op()
    e.c("TS 1")
    fin_srds(e, ["wqkv", "ws"])
    LN = e.label("non")
    e(f"""
    s_lshl_b32 s{sT}, s2, 3
    s_add_u32 s{sT}, s{sT}, s{S_W}
    s_cmp_lg_u32 s{sT}, 1
    s_cbranch_scc1 {LN}
    s_memrealtime s[{sU}:{sU+1}]
    v_mov_b32 v{t1}, 0
    s_waitcnt lgkmcnt(0)
    s_or_b32 s{sU}, s{sU}, 1
    v_mov_b32 v{t0}, s{sU}
    s_mov_b64 exec, 1
    global_store_dword v{t1}, v{t0}, s[{R_DBG}:{R_DBG+1}] sc1
    s_mov_b64 exec, -1
    {LN}:
    """)
    n_, h_, r_, qd_, chf_, u_, v_ = T, T + 1, T + 2, T + 3, T + 4, T + 5, T + 6
    QW = RB + 7
    e(f"""
    v_and_b32 v{n_}, 31, v{L}
    v_lshrrev_b32 v{h_}, 5, v{L}
    v_and_b32 v{r_}, 15, v{L}
    v_and_b32 v{qd_}, 3, v{r_}
    v_lshlrev_b32 v{qd_}, 3, v{qd_}          ; quad*8
    v_lshrrev_b32 v{r_}, 2, v{r_}            ; r
    v_lshrrev_b32 v{chf_}, 4, v{L}
    v_and_b32 v{chf_}, 1, v{chf_}
    v_and_b32 v{u_}, 15, v{L}
    v_cmp_eq_u32 vcc, v{u_}, v{chf_}         ; selector: m == g&1
    v_mov_b32 v{ONE}, 0x3f803f80
    v_lshlrev_b32 v{chf_}, 5, v{chf_}
    v_add_u32 v{chf_}, v{chf_}, v{qd_}
    v_cndmask_b32 v{SEL}, 0, v{ONE}, vcc
    v_cndmask_b32 v{SEL+1}, 0, v{ONE}, vcc
    v_cndmask_b32 v{SEL+2}, 0, v{ONE}, vcc
    v_cndmask_b32 v{SEL+3}, 0, v{ONE}, vcc
    s_lshl_b32 s{sT}, s{S_CH}, 1
    s_add_u32 s{sT}, s{sT}, s{S_RG}          ; rotation
    v_lshlrev_b32 v{u_}, 3, v{h_}
    v_add_u32 v{u_}, v{u_}, v{r_}            ; 8h + r
    v_lshlrev_b32 v{QW}, 6, v{u_}
    v_add_u32 v{QW}, v{QW}, v{chf_}
    v_lshlrev_b32 v{u_}, 7, v{u_}
    v_add_u32 v{u_}, v{u_}, v{chf_}
    v_lshrrev_b32 v{r_}, 1, v{r_}
    v_xor_b32 v{r_}, s{S_CH}, v{r_}          ; ch ^ ((r>>1)&1)
    v_lshlrev_b32 v{r_}, 6, v{r_}
    v_add_u32 v{u_}, v{u_}, v{r_}
    v_lshrrev_b32 v{qd_}, 1, v{n_}
    v_and_b32 v{qd_}, 7, v{qd_}              ; (n>>1)&7
    v_lshlrev_b32 v{chf_}, 7, v{n_}          ; n*128
    s_lshl_b32 s{sT2}, s{S_RG}, 12
    s_add_u32 s{sT2}, s{sT2}, {XR}
    v_add_u32 v{chf_}, s{sT2}, v{chf_}
    """)
    for p in range(4):
        e(f"""
        s_add_u32 s{sT2}, s{sT}, {p}
        s_and_b32 s{sT2}, s{sT2}, 3              ; step
        s_lshl_b32 s{sT3}, s{sT2}, 1
        v_add_u32 v{r_}, s{sT3}, v{h_}
        v_xor_b32 v{r_}, v{r_}, v{qd_}
        v_lshlrev_b32 v{r_}, 4, v{r_}
        v_add_u32 v{XA+p}, v{chf_}, v{r_}
        s_lshl_b32 s{sT3}, s{sT2}, 11
        s_add_u32 s{sT3}, s{sT3}, {WR}
        v_add_u32 v{WA+p}, s{sT3}, v{u_}
        """)
    for op in x_dma(2) + w_dma(2) + x_dma(3) + x_dma(4): op()
    e.c("TS 2")

    def late(txt):
        return [lambda l=l: e(l) for l in txt.strip("\n").split("\n") if l.strip()]
    a0, a1, a2 = RB, RB + 1, RB + 2
    setup1 = late(f"""
    v_add_u32 v{XA4}, {ST}, v{XA}
    v_add_u32 v{XA4+1}, {ST}, v{XA+1}
    v_add_u32 v{XA4+2}, {ST}, v{XA+2}
    v_add_u32 v{XA4+3}, {ST}, v{XA+3}
    v_and_b32 v{a0}, 31, v{L}
    v_lshrrev_b32 v{a1}, 5, v{L}
    s_lshl_b32 s{sT3}, s{S_RG}, 5
    v_add_u32 v{a2}, s{sT3}, v{a0}
    v_lshlrev_b32 v{RSR}, 3, v{a2}
    v_lshl_add_u32 v{ZA}, v{a1}, 2, v{RSR}
    v_mul_u32_u24 v{PLA}, 144, v{a2}
    v_add_u32 v{RSR}, {RS}, v{RSR}
    s_lshl_b32 s{sT3}, s{S_CH}, 10
    v_add_u32 v{RSW}, s{sT3}, v{RSR}
    v_lshlrev_b32 v{a1}, 3, v{a1}
    s_lshl_b32 s{sT3}, s{S_CH}, 6
    s_add_u32 s{sT3}, s{sT3}, {ST}
    v_add3_u32 v{STW}, v{PLA}, v{a1}, s{sT3}
    v_lshlrev_b32 v{a0}, 2, v{a0}
    s_lshl_b32 s{sT3}, s{S_CH}, 7
    s_add_u32 s{sT3}, s{sT3}, {CSP}
    v_add_u32 v{CSPR}, s{sT3}, v{a0}
    s_lshl_b32 s58, s{S_RG}, 8
    s_add_u32 s{sT3}, s{sT3}, s58
    v_lshlrev_b32 v{a0}, 2, v{L}
    v_add_u32 v{CSW}, s{sT3}, v{a0}
    v_lshrrev_b32 v{a0}, 3, v{L}
    v_and_b32 v{a1}, 7, v{L}
    v_lshlrev_b32 v{a1}, 4, v{a1}
    v_mul_u32_u24 v{GZ}, 1792, v{a0}
    v_add_u32 v{GZ}, v{GZ}, v{a1}
    v_mul_u32_u24 v{GQ}, 2688, v{a0}
    v_add_u32 v{GQ}, v{GQ}, v{a1}
    s_lshl_b32 s{sT3}, s{S_W}, 4
    v_add_u32 v{a0}, s{sT3}, v{a0}
    v_mul_u32_u24 v{STR}, 144, v{a0}
    v_add_u32 v{STR}, v{STR}, v{a1}
    v_add_u32 v{STR}, {ST}, v{STR}
    v_mov_b32 v{CB+2}, 0
    v_mov_b32 v{CB+3}, 0
    v_mov_b32 v{CA+2}, 0
    v_mov_b32 v{CA+3}, 0
    v_mov_b32 v{S_}, 0
    v_mov_b32 v{SS_}, 0
    """)
    setup_q = late(f"""
    v_lshrrev_b32 v{a0}, 3, v{L}
    v_lshrrev_b32 v{a1}, 4, v{L}
    v_and_b32 v{a1}, 1, v{a1}
    v_lshlrev_b32 v{a1}, 2, v{a1}
    v_and_b32 v{a2}, 7, v{L}
    v_xor_b32 v{a1}, v{a2}, v{a1}
    v_lshlrev_b32 v{a1}, 4, v{a1}
    v_mul_u32_u24 v{WGQ}, 2688, v{a0}
    v_add_u32 v{WGQ}, v{WGQ}, v{a1}
    v_lshrrev_b32 v{WGQ2}, 2, v{L}
    v_mul_u32_u24 v{WGQ2}, 2688, v{WGQ2}
    v_and_b32 v{a0}, 3, v{L}
    v_lshlrev_b32 v{a0}, 4, v{a0}
    v_add_u32 v{WGQ2}, v{WGQ2}, v{a0}
    s_mul_i32 s{sT3}, s{S_W}, {8*2688}
    s_mul_i32 s58, s{S_J}, 192
    s_add_u32 s{sWq}, s{sT3}, s58
    s_lshl_b32 s{sM0W2}, s{S_W}, 9
    s_add_u32 s{sM0W2}, s{sM0W2}, {WR}
    """)
    def setup_wb():
        ops = []
        for p in range(4):
            ops += late(f"""
            s_lshl_b32 s{sT3}, s{S_CH}, 1
            s_add_u32 s{sT3}, s{sT3}, s{S_RG}
            s_add_u32 s{sT3}, s{sT3}, {p}
            s_and_b32 s{sT3}, s{sT3}, 3
            s_lshl_b32 s{sT3}, s{sT3}, 10
            s_add_u32 s{sT3}, s{sT3}, {WR}
            v_add_u32 v{WB+p}, s{sT3}, v{QW}
            """)
        return ops

    def x_read(c, p):
        if c == 4: return lambda: e.ds(f"ds_read_b128 a[{(4*c+p)*4}:{(4*c+p)*4+3}], v{XA4+p}", ("xf", c, p))
        return lambda: e.ds(f"ds_read_b128 a[{(4*c+p)*4}:{(4*c+p)*4+3}], v{XA+p} offset:{XSLOT[c]}", ("xf", c, p))
    def w_read(g, p):
        if g >= 28: return []
        q2 = g >= 21
        ops = []
        for t in range(2):
            d = WF + 4 * p + 2 * t
            a = (WB if q2 else WA) + p
            off = (g % 8) * 8192 + t * (256 if q2 else 512)
            ops.append(lambda d=d, a=a, off=off: e.ds(f"ds_read_b64_tr_b16 v[{d}:{d+1}], v{a} offset:{off}", ("wf", g, p)))
        return ops
    def mfma(g, p):
        ph, c = divmod(g, 7)
        acc = ACCS[ph]
        a = WF + 4 * p
        b = f"a[{(4*c+p)*4}:{(4*c+p)*4+3}]"
        cin = "0" if (c == 0 and p == 0) else f"v[{acc}:{acc+15}]"
        e(f"v_mfma_f32_32x32x16_bf16 v[{acc}:{acc+15}], v[{a}:{a+3}], {b}, {cin}")
        if p == 0 and not opt.get("nocs"):
            cc = "0" if c == 0 else f"v[{CSA}:{CSA+3}]"
            e(f"v_mfma_f32_16x16x32_bf16 v[{CSA}:{CSA+3}], v[{SEL}:{SEL+3}], v[{a}:{a+3}], {cc}")
        if ph == 0 and p < 2 and not opt.get("nostats"):
            first = (c == 0 and p == 0)
            e(f"v_mfma_f32_32x32x16_bf16 v[{GRAM}:{GRAM+15}], {b}, {b}, {'0' if first else f'v[{GRAM}:{GRAM+15}]'}")
            e(f"v_mfma_f32_16x16x32_bf16 v[{SX}:{SX+3}], v[{SEL}:{SEL+3}], {b}, {'0' if first else f'v[{SX}:{SX+3}]'}")
    def cs_put():
        e("s_mov_b64 exec, 0xffff")
        e.ds(f"ds_write2_b32 v{CSW}, v{CSA}, v{CSA+1} offset0:0 offset1:16", "put")
        e("s_mov_b64 exec, -1")
    def mask(val32):
        e(f"s_mov_b32 vcc_lo, {val32}\ns_mov_b32 vcc_hi, {val32}")
    def rs_put():
        G = GRAM
        e("s_mov_b64 exec, 0xffff")
        e.ds(f"ds_write2_b32 v{RSW}, v{SX}, v{SX+1} offset0:0 offset1:32", "put")
        e("s_mov_b64 exec, -1")
        for lvl, m in enumerate((0xAAAAAAAA, 0xCCCCCCCC, 0xFF00FF00, 0xFFFF0000)):
            mask(m)
            st = 1 << lvl
            for j in range(0, 16, 2 * st):
                e(f"v_cndmask_b32 v{G+j}, v{G+j}, v{G+j+st}, vcc")
        e("s_mov_b32 exec_lo, 0x0F0F0F0F\ns_mov_b32 exec_hi, 0xF0F0F0F0")
        e.ds(f"ds_write_b32 v{RSW}, v{G} offset:4", "put")
        e("s_mov_b64 exec, -1")
    def hilo_A(src):
        return late(f"""
        v_cvt_pk_bf16_f32 v{CA}, v{src}, v{src}
        v_lshlrev_b32 v{CA+1}, 16, v{CA}
        v_sub_f32 v{CA+1}, v{src}, v{CA+1}
        v_cvt_pk_bf16_f32 v{CA+1}, v{CA+1}, v{CA+1}
        """)
    def cs_reduce(ph):
        r = RB
        g1 = [lambda: e.ds(f"ds_read2st64_b32 v[{r}:{r+1}], v{CSPR} offset0:0 offset1:1", ("cr", ph)),
              lambda: e.ds(f"ds_read2st64_b32 v[{r+2}:{r+3}], v{CSPR} offset0:2 offset1:3", ("cr", ph))]
        g2 = [lambda: (e.need_l(("cr", ph)), e(f"v_add_f32 v{r}, v{r}, v{r+1}")),
              lambda: e(f"v_add_f32 v{r+2}, v{r+2}, v{r+3}"),
              lambda: e(f"v_add_f32 v{r}, v{r}, v{r+2}")] + hilo_A(r)
        acc = ACCS[ph]
        corr = [lambda: e(f"v_mfma_f32_32x32x16_bf16 v[{acc}:{acc+15}], v[{CA}:{CA+3}], v[{CB}:{CB+3}], v[{acc}:{acc+15}]")]
        return g1, g2, corr
    def rowstat_ops():
        a, b = T, T + 1
        rd = [lambda: e.ds(f"ds_read_b64 v[{a}:{b}], v{RSR}", "rs"), lambda: e.ds(f"ds_read_b64 v[{a+2}:{b+2}], v{RSR} offset:1024", "rs")]
        seq = f"""
            v_add_f32 v{b}, v{b}, v{b+2}
            v_mul_f32 v{a}, {fbits(-1.0/448)}, v{a}
            v_mul_f32 v{b}, {fbits(1.0/448)}, v{b}
            v_fma_f32 v{b}, -v{a}, v{a}, v{b}
            v_max_f32 v{b}, 0, v{b}
            v_add_f32 v{b}, {fbits(1e-5)}, v{b}
            v_rsq_f32 v{R_}, v{b}
            v_cvt_pk_bf16_f32 v{CB}, v{a}, v{a}
            v_lshlrev_b32 v{CB}, 16, v{CB}
            v_sub_f32 v{CB}, v{a}, v{CB}
            v_cvt_pk_bf16_f32 v{CB}, v{a}, v{CB}
            s_mov_b32 vcc_lo, -1
            s_mov_b32 vcc_hi, 0
            v_cndmask_b32 v{CB}, 0, v{CB}, vcc
            v_mov_b32 v{CB+1}, v{CB}
            v_mul_f32 v{RINV}, v{b}, v{R_}
            v_mul_f32 v{GA}, {fbits(GELU_K1)}, v{R_}
            v_mul_f32 v{GB}, v{R_}, v{R_}
            v_mul_f32 v{GB}, v{GB}, v{R_}
            v_mul_f32 v{GB}, {fbits(GELU_K2)}, v{GB}
            """
        ops = [lambda: (e.need_l("rs"), e(f"v_add_f32 v{a}, v{a}, v{a+2}"))] + late(seq)
        return rd, ops
    def epi_ops(acc, gelu, pk):
        ops = []
        for q in range(4):
            a = [acc + 4 * q + i for i in range(4)]
            t = [T + 4 * (q % 2) + i for i in range(4)]
            if gelu:
                for fmt in ("v_mul_f32 v{t}, v{a}, v{a}", f"v_fma_f32 v{{t}}, v{{t}}, v{GB}, v{GA}", "v_mul_f32 v{t}, v{a}, v{t}",
                            "v_exp_f32 v{t}, v{t}", f"v_fma_f32 v{{t}}, v{{t}}, v{RINV}, v{RINV}", "v_rcp_f32 v{t}, v{t}",
                            "v_mul_f32 v{a}, v{a}, v{t}"):
                    for i in range(4):
                        ops.append(lambda fmt=fmt, i=i, a=a, t=t: e(fmt.format(t=t[i], a=a[i])))
            else:
                for i in range(4):
                    ops.append(lambda i=i, a=a: e(f"v_mul_f32 v{a[i]}, v{a[i]}, v{R_}"))
            ops.append(lambda a=a, q=q: e(f"v_cvt_pk_bf16_f32 v{pk+2*q}, v{a[0]}, v{a[1]}"))
            ops.append(lambda a=a, q=q: e(f"v_cvt_pk_bf16_f32 v{pk+2*q+1}, v{a[2]}, v{a[3]}"))
        return ops
    def stage_w(pk, addr, tag):
        return [lambda q=q: e.ds(f"ds_write_b64 v{addr}, v[{pk+2*q}:{pk+2*q+1}] offset:{q*16}", tag) for q in range(4)]
    def readback(straddr, rb, gaddr, pitch, base_imm, jmul, tag, sb, n=2, stp=144):
        rds = []
        for i in range(n):
            rds.append(lambda i=i: e.ds(f"ds_read_b128 v[{rb+4*i}:{rb+4*i+3}], v{straddr} offset:{i*8*stp}", (tag, i)))
        base = late(f"""
            s_lshl_b32 s{sb}, s{S_W}, 4
            s_add_u32 s{sb}, s{sb}, s{S_ROW0}
            s_mul_i32 s{sb}, s{sb}, {pitch}
            s_mul_i32 s{sT3}, s{S_J}, {jmul}
            s_add_u32 s{sb}, s{sb}, s{sT3}
            s_add_u32 s{sb}, s{sb}, {base_imm}
            """)
        def basef():
            for f in base: f()
        sts = [basef]
        sc = " sc1" if fused else ""
        for i in range(n):
            def st(i=i):
                e.need_l((tag, i))
                if i: e(f"s_add_u32 s{sb}, s{sb}, {8*pitch}")
                e.vm(f"buffer_store_dwordx4 v[{rb+4*i}:{rb+4*i+3}], v{gaddr}, {sq(R_WS)}, s{sb} offen{sc}", "st_" + tag)
            sts.append(st)
        return rds, sts

    NV, NA = RB + 4, RB + 5
    npos = [0]
    def non_load():
        LZ = e.label("nl")
        e(f"""
        v_mov_b32 v{NA}, 0
        s_cmp_lg_u32 s{S_W}, 0
        s_cbranch_scc1 {LZ}
        global_load_dword v{NV}, v{NA}, s[{R_DBG}:{R_DBG+1}] sc1
        {LZ}:
        """)
        npos[0] = e.vcount
    def non_put():
        LZ = e.label("np")
        e(f"s_cmp_lg_u32 s{S_W}, 0\ns_cbranch_scc1 {LZ}")
        e.wait_v_since(npos[0])
        e(f"""
        s_mov_b32 s{sU}, 0
        {LZ}_chk:
        v_readfirstlane_b32 s{S_NONCE}, v{NV}
        s_cmp_lg_u32 s{S_NONCE}, 0
        s_cbranch_scc1 {LZ}_ok
        s_add_u32 s{sU}, s{sU}, 1
        s_cmp_ge_u32 s{sU}, 0x40000
        s_cbranch_scc1 {LZ}_ok
        global_load_dword v{NV}, v{NA}, s[{R_DBG}:{R_DBG+1}] sc1
        s_waitcnt vmcnt(0)
        s_branch {LZ}_chk
        {LZ}_ok:
        v_mov_b32 v{NA}, {NON}
        ds_write_b32 v{NA}, v{NV}
        s_waitcnt lgkmcnt(0)
        {LZ}:
        """)
    non_get = [lambda: e(f"v_mov_b32 v{NA}, {NON}"), lambda: e.ds(f"ds_read_b32 v{NV}, v{NA}", "non")]
    non_fin = [lambda: (e.need_l("non"), e(f"v_readfirstlane_b32 s{S_NONCE}, v{NV}"))]

    Z0 = RB + 4
    def zs_local():
        ops = []
        for i in range(8):
            ops.append(lambda i=i: e(f"v_dot2c_f32_bf16 v{S_}, v{PK2+i}, v{ONE}"))
            ops.append(lambda i=i: e(f"v_dot2c_f32_bf16 v{SS_}, v{PK2+i}, v{PK2+i}"))
        ops += late(f"""
            s_lshl_b32 s{sU}, s{S_CH}, 10
            s_add_u32 s{sU}, s{sU}, {ZSP}
            v_add_u32 v{Z0}, s{sU}, v{ZA}
            v_permlane32_swap_b32 v{S_}, v{SS_}
            """)
        ops.append(lambda: (e(f"v_add_f32 v{S_}, v{S_}, v{SS_}"), e.ds(f"ds_write_b32 v{Z0}, v{S_}", "put")))
        return ops
    def zs_publish():
        rd = [lambda: e(f"v_add_u32 v{Z0}, {ZSP}, v{ZA}"),
              lambda: e.ds(f"ds_read2st64_b32 v[{Z0+2}:{Z0+3}], v{Z0} offset0:0 offset1:4", "zr")]
        def st():
            LZ = e.label("zs")
            e.need_l("zr")
            e(f"""
            v_add_f32 v{Z0+2}, v{Z0+2}, v{Z0+3}
            v_mov_b32 v{Z0+3}, s{S_NONCE}
            v_lshlrev_b32 v{Z0}, 1, v{ZA}
            s_mul_i32 s{sU}, s{S_MT}, 14
            s_add_u32 s{sU}, s{sU}, s{S_J}
            s_lshl_b32 s{sU}, s{sU}, 11
            s_add_u32 s{sU}, s{sU}, {WS_PART}
            s_cmp_lg_u32 s{S_CH}, 0
            s_cbranch_scc1 {LZ}
            buffer_store_dwordx2 v[{Z0+2}:{Z0+3}], v{Z0}, {sq(R_WS)}, s{sU} offen sc1
            {LZ}:
            """)
        return rd, [st]
    def pl_addr():
        return late(f"""
            v_and_b32 v{PLA}, 31, v{L}
            v_lshrrev_b32 v{Z0}, 4, v{PLA}
            v_and_b32 v{PLA}, 15, v{PLA}
            v_lshlrev_b32 v{PLA}, 4, v{PLA}
            v_lshl_add_u32 v{PLA}, v{Z0}, 3, v{PLA}
            v_lshrrev_b32 v{Z0}, 5, v{L}
            v_mul_u32_u24 v{Z0}, {7*2048}, v{Z0}
            v_add_u32 v{PLA}, v{PLA}, v{Z0}
            s_mul_i32 s{sV}, s{S_MT}, {14*2048}
            s_lshl_b32 s{sU}, s{S_W}, 8
            s_add_u32 s{sV}, s{sV}, s{sU}
            s_add_u32 s{sV}, s{sV}, {WS_PART}
            """)
    def pl_loads(track=True):
        ops = []
        for i in range(7):
            def ld(i=i):
                if i and i % 2 == 0: e(f"s_add_u32 s{sV}, s{sV}, 4096")
                s_ = f"buffer_load_dwordx2 v[{PL+2*i}:{PL+2*i+1}], v{PLA}, {sq(R_WS)}, s{sV} offen offset:{(i%2)*2048} sc1"
                if track: e.vm(s_, "pl")
                else: e(s_)
                if i == 6: e(f"s_sub_u32 s{sV}, s{sV}, {3*4096}")
            ops.append(ld)
        return ops
    def pl_check():
        LZ = e.label("pc")
        e.need_v("pl")
        e(f"s_mov_b32 s{sU}, 0\n{LZ}_chk:")
        for i in range(7):
            e(f"v_cmp_ne_u32 vcc, s{S_NONCE}, v{PL+2*i+1}")
            e("s_mov_b64 s[62:63], vcc" if i == 0 else "s_or_b64 s[62:63], s[62:63], vcc")
        e(f"""
        s_cmp_eq_u64 s[62:63], 0
        s_cbranch_scc1 {LZ}_ok
        s_add_u32 s{sU}, s{sU}, 1
        s_cmp_ge_u32 s{sU}, 0x10000
        s_cbranch_scc1 {LZ}_ok
        """)
        for f in pl_loads(False): f()
        e(f"s_waitcnt vmcnt(0)\ns_branch {LZ}_chk\n{LZ}_ok:")
        if opt.get("cnt"): e(f"s_add_u32 s{64+2*10}, s{sU}, s64\ns_add_u32 s{64+2*10}, s{64+2*10}, 1000")
    def pl_reduce():
        P = PL
        ops = late(f"""
            v_add_f32 v{P}, v{P}, v{P+2}
            v_add_f32 v{P+4}, v{P+4}, v{P+6}
            v_add_f32 v{P+8}, v{P+8}, v{P+10}
            v_add_f32 v{P}, v{P}, v{P+4}
            v_add_f32 v{P+8}, v{P+8}, v{P+12}
            v_add_f32 v{P}, v{P}, v{P+8}
            v_and_b32 v{P+2}, 31, v{L}
            v_mov_b32 v{P+1}, v{P}
            v_lshrrev_b32 v{P+3}, 4, v{P+2}
            v_and_b32 v{P+2}, 15, v{P+2}
            v_permlane32_swap_b32 v{P}, v{P+1}
            v_lshlrev_b32 v{P+2}, 3, v{P+2}
            v_lshl_add_u32 v{P+2}, v{P+3}, 2, v{P+2}
            v_add_f32 v{P}, v{P}, v{P+1}
            s_lshl_b32 s{sU}, s{S_W}, 7
            s_add_u32 s{sU}, s{sU}, {ZSP}
            v_add_u32 v{P+2}, s{sU}, v{P+2}
            """)
        def wr():
            e("s_mov_b32 exec_hi, 0")
            e.ds(f"ds_write_b32 v{P+2}, v{P}", "put")
            e("s_mov_b32 exec_hi, -1")
        return ops + [wr]
    RHO, NMR = PL + 4, PL + 5
    def zn_stats():
        a, b = PL, PL + 1
        rd = [lambda: e(f"v_add_u32 v{PL+2}, {ZSP - RS}, v{RSR}"), lambda: e.ds(f"ds_read_b64 v[{a}:{b}], v{PL+2}", "zt")]
        ops = [lambda: (e.need_l("zt"), e(f"v_mul_f32 v{a}, {fbits(1.0/896)}, v{a}"))] + late(f"""
            v_mul_f32 v{b}, {fbits(1.0/896)}, v{b}
            v_fma_f32 v{b}, -v{a}, v{a}, v{b}
            v_max_f32 v{b}, 0, v{b}
            v_add_f32 v{b}, {fbits(1e-5)}, v{b}
            v_rsq_f32 v{RHO}, v{b}
            v_subrev_u32 v{STWZ}, {ST - STZ}, v{STW}
            v_mul_f32 v{NMR}, v{a}, v{RHO}
            v_sub_f32 v{NMR}, 0, v{NMR}
            """)
        return rd, ops
    def zn_norm():
        ops = []
        for half in range(2):
            regs_ = [PK2 + 4 * half + i for i in range(4)]
            lo = [PL + 6 + i for i in range(4)]
            hi = [PL + 10 + i for i in range(4)]
            for i in range(4): ops.append(lambda i=i, r=regs_, lo=lo: e(f"v_lshlrev_b32 v{lo[i]}, 16, v{r[i]}"))
            for i in range(4): ops.append(lambda i=i, r=regs_, hi=hi: e(f"v_and_b32 v{hi[i]}, 0xffff0000, v{r[i]}"))
            for i in range(4): ops.append(lambda i=i, lo=lo: e(f"v_fma_f32 v{lo[i]}, v{lo[i]}, v{RHO}, v{NMR}"))
            for i in range(4): ops.append(lambda i=i, hi=hi: e(f"v_fma_f32 v{hi[i]}, v{hi[i]}, v{RHO}, v{NMR}"))
            for i in range(4): ops.append(lambda i=i, r=regs_, lo=lo, hi=hi: e(f"v_cvt_pk_bf16_f32 v{r[i]}, v{lo[i]}, v{hi[i]}"))
        return ops

    NG = 28
    gaps = {(g, p): [] for g in range(NG + 1) for p in range(4)}
    def put(g, p, ops): gaps[(g, p)] += list(ops)
    def spread_gaps(ops, a_, b_):
        slots = [(g, p) for g in range(a_[0], b_[0] + 1) for p in range(4) if (g, p) >= tuple(a_) and (g, p) <= tuple(b_)]
        for sl, s_ in zip(spread(ops, len(slots)), slots): gaps[s_] += sl
    sp = dict(z2=((8, 1), (14, 1)), z1=((15, 1), (16, 3)), q=((22, 1), (23, 3)), pl=((19, 0), (20, 2)), plc=(24, 0), zn=((25, 1), (26, 3)))
    sp.update(opt.get("sp", {}))
    spread_gaps(setup1, (0, 0), (2, 3))
    spread_gaps(setup_q, (3, 0), (5, 3))
    put(6, 3, [rs_put, cs_put])
    rd, ops = rowstat_ops()
    g1, g2, corr = cs_reduce(0)
    put(7, 0, rd + g1); spread_gaps(ops, (7, 1), (7, 2)); put(7, 2, g2); put(7, 3, corr + [non_load])
    spread_gaps(setup_wb(), (8, 0), (12, 3))
    spread_gaps(epi_ops(ACCS[0], True, PK2), *sp["z2"])
    put(9, 3, [non_put]); put(11, 0, non_get); put(12, 0, non_fin)
    put(13, 3, [cs_put])
    g1, g2, corr = cs_reduce(1)
    put(14, 0, g1); put(14, 2, g2); put(14, 3, corr)
    spread_gaps(zs_local(), (14, 2), (15, 2))
    rd, st = zs_publish()
    put(16, 0, rd)
    if not opt.get("nopub"): put(16, 2, st)
    spread_gaps(epi_ops(ACCS[1], False, PK), *sp["z1"])
    spread_gaps(pl_addr(), (17, 0), (18, 3))
    if not opt.get("nopl"): spread_gaps(pl_loads(), *sp["pl"])
    put(20, 3, [cs_put])
    g1, g2, corr = cs_reduce(2)
    put(21, 0, g1); put(21, 2, g2); put(21, 3, corr)
    if not fused and not opt.get("noz1s"):
        def z1save():
            e(f"""
            v_lshlrev_b32 v{T}, 5, v0
            s_lshl_b32 s{sT3}, s2, 14
            s_add_u32 s{sT3}, s{sT3}, {WS_Z1R}
            """)
            e.vm(f"buffer_store_dwordx4 v[{PK}:{PK+3}], v{T}, {sq(R_WS)}, s{sT3} offen", "st_z1")
            e.vm(f"buffer_store_dwordx4 v[{PK+4}:{PK+7}], v{T}, {sq(R_WS)}, s{sT3} offen offset:16", "st_z1")
        put(17, 1, [z1save])
    plc = sp["plc"]
    if not opt.get("nopl"): put(*plc, [pl_check])
    spread_gaps(pl_reduce(), (plc[0], plc[1] + 1), (plc[0], 3))
    QPK = RB
    spread_gaps(epi_ops(ACCS[2], False, QPK), *sp["q"])
    put(24, 0, stage_w(QPK, STW, "stg"))
    zb = min(b for b in bars if b > plc[0])
    rd, ops = zn_stats()
    put(zb, 0, rd); put(zb, 1, ops)
    spread_gaps(zn_norm(), *sp["zn"])
    zl = sp["zn"][1]
    put(*zl, stage_w(PK2, STWZ, "stg") + [lambda: e(f"v_subrev_u32 v{STRZ}, {ST - STZ}, v{STR}")])
    zr = min(b for b in bars if b > zl[0])
    rds, sts = readback(STRZ, PK2, GZ, 1792, WS_Z2, 128, "z2", 58)
    rdq, stq = readback(STR, RB, GQ, 2688, WS_QKV, 192, "q", sT)
    put(25, 0, rdq); put(25, 2, stq)
    put(zr, 0, rds); put(zr, 1, sts[:1]); put(zr, 2, sts[1:])

    def lastbar(g): return max(b for b in bars if b <= g)
    wsched = {g: [] for g in range(NG)}
    nxt = 3
    for g in range(NG):
        n = 2 if 4 <= g <= 7 or g >= 8 else 1
        if g >= 8: n = opt.get("wn", 1) if (g not in bars or g + 1 not in bars) else 1
        for _ in range(n):
            if nxt < 28 and nxt <= lastbar(g) + 7: wsched[g].append(nxt); nxt += 1
    assert nxt == 28, wsched
    issued = {k: g for g in wsched for k in wsched[g]}
    for b in bars:
        nb = min([x for x in bars if x > b] + [27])
        for k in range(b + 1, min(nb, 27) + 1): assert issued.get(k, -1) < b, (b, k, wsched)
    if opt.get("show"): print(wsched)

    e.c("TS 3")
    e.need_v([("x", 0), ("w", 0)]); e("s_barrier")
    e.c("TS 4")
    for p in range(4):
        x_read(0, p)()
        for op in w_read(0, p): op()

    def iteration(g, active=True):
        ph, c = divmod(g, 7)
        if "tsg" in opt and 0 <= g - opt["tsg"] < 10: e.c(f"TS {g - opt['tsg'] + 1}" + " ")
        if g in bars:
            nb = min([x for x in bars if x > g] + [27])
            e.need_l(["put", "stg"])
            e.need_v([("w", k) for k in range(g + 1, nb + 1)] + [("x", g + 1)])
            if not opt.get("nobar"): e("s_barrier")
        nxt_active = active and g + 1 < 28
        xd = x_dma(g + 4) if g >= 1 else []
        wd = [w_dma(k) for k in wsched[g]]
        if opt.get("nodma"): xd, wd = [], []
        dpos = opt.get("dpos", (1, 3))
        for p in range(4):
            if active:
                e.need_l([("wf", g, p), ("xf", c, p) if ph == 0 else ("wf", g, p)])
                mfma(g, p)
            if ph == 0 and c < 6: x_read(c + 1, p)()
            if nxt_active:
                for f in w_read(g + 1, p): f()
            if p == dpos[0] and wd:
                for f in wd[0]: f()
            if p == dpos[1] and len(wd) > 1:
                for f in wd[1]: f()
            if p == 2 and xd:
                for f in xd[:2]: f()
            if p == 3 and xd:
                for f in xd[2:]: f()
            if not opt.get("noextra"):
                for f in gaps[(g, p)]: f()
            if active and g == 27 and p == 3: cs_put()

    for g in range(21):
        if g in (7, 14): e.c(f"TS {5 + g // 7 - 1}")
        iteration(g)
    e.c("TS 7")
    L1, LJ = e.label("p4c1"), e.label("p4j")
    e(f"s_cmp_lg_u32 s{S_CH}, 0\ns_cbranch_scc1 {L1}")
    e.c("HZ_SAVE p4")
    sv = e.save()
    for g in range(21, 28): iteration(g, True)
    e.c("TS 8")
    e.need_l("put"); e("s_barrier")
    g1, g2, corr = cs_reduce(3)
    for op in g1: op()
    e(f"""
    v_and_b32 v{RB+4}, 31, v{L}
    s_lshl_b32 s{sT}, s{S_RG}, 5
    v_add_u32 v{RB+4}, s{sT}, v{RB+4}
    v_mul_u32_u24 v{RB+4}, 80, v{RB+4}
    v_lshrrev_b32 v{RB+5}, 5, v{L}
    v_lshlrev_b32 v{RB+5}, 3, v{RB+5}
    v_add_u32 v{RB+4}, v{RB+4}, v{RB+5}
    v_add_u32 v{STW}, {ST2}, v{RB+4}
    """)
    for op in g2 + corr: op()
    for op in epi_ops(ACCS[3], False, WF): op()
    for op in stage_w(WF, STW, "stg"): op()
    e.need_l("stg")
    e(f"s_branch {LJ}")
    stA = e.save()
    e(f"{L1}:")
    e.c("HZ_RESTORE p4")
    e.restore(sv)
    for g in range(21, 28): iteration(g, False)
    e.wait_l0()
    e("s_barrier")
    e(f"{LJ}:")
    e.lq = []
    e.vq = ["unk"] * max(len(stA[1]), len(e.vq))
    e("s_barrier")
    e(f"""
    v_lshrrev_b32 v{T}, 2, v{L}
    s_lshl_b32 s{sT}, s{S_W}, 4
    v_add_u32 v{T}, s{sT}, v{T}
    v_mul_u32_u24 v{T}, 80, v{T}
    v_and_b32 v{T+1}, 3, v{L}
    v_lshlrev_b32 v{T+1}, 4, v{T+1}
    v_add_u32 v{T}, v{T}, v{T+1}
    v_add_u32 v{STR}, {ST2}, v{T}
    """)
    rds, sts = readback(STR, RB, WGQ2, 2688, WS_QKV + 128, 192, "q2", 58, n=1)
    for op in rds + sts: op()
    e.c("TS 9")

def k1_aux(e, fused=False):
    h = 48
    e(f"""
    s_load_dwordx2 s[{R_WSP}:{R_WSP+1}], s[0:1], {K_WSP}
    s_load_dwordx2 s[{R_WOUT}:{R_WOUT+1}], s[0:1], {K_WOUT}
    s_load_dwordx2 s[{R_WO}:{R_WO+1}], s[0:1], {K_WO}
    s_sub_u32 s{h}, s2, 224
    s_waitcnt lgkmcnt(0)
    """)
    fin_srds(e, ["wsp", "wout", "wo"])
    e(f"""
    v_lshlrev_b32 v2, 7, v0
    s_lshl_b32 s49, s{h}, 18
    """)
    stride = 512 * 128
    k = 0
    for i in range((256 * 1024) // stride):
        e(f"s_add_u32 s50, s49, {i*stride}")
        e(f"buffer_load_dword v{8+k%16}, v2, {sq(R_WSP)}, s50 offen"); k += 1
    e(f"s_mul_i32 s49, s{h}, {SZ_WOUT//32}")
    e(f"v_cmp_gt_u32 vcc, {SZ_WOUT//32}, v2")
    e(f"s_and_b64 exec, exec, vcc")
    e(f"buffer_load_dword v{8+k%16}, v2, {sq(R_WOUT)}, s49 offen"); k += 1
    e(f"s_mul_i32 s49, s{h}, {SZ_WO//32}")
    e(f"v_cmp_gt_u32 vcc, {SZ_WO//32}, v2")
    e(f"s_and_b64 exec, exec, vcc")
    e(f"buffer_load_dword v{8+k%16}, v2, {sq(R_WO)}, s49 offen"); k += 1
    e("s_mov_b64 exec, -1")
```

```python
from g2common import *

K2_XR, K2_WR = 0, 98304
K2_NS = 6
K2_LDS = 150016
V_Z1 = 96

def late(e, txt):
    return [lambda l=l: e(l) for l in txt.strip("\n").split("\n") if l.strip()]

def k2_main(e, fused=False, opt=None):
    opt = opt or {}
    XR, WR, NS = K2_XR, K2_WR, K2_NS
    L = 1
    XG, WGI = 2, 4
    XA, XH, WA = 8, 12, 16
    BIAS, STW, STR, GH, CK1, CK2 = 20, 21, 22, 23, 24, 25
    T = 26
    XF, WF, ACC, ZF, U1, GT = 32, 48, 64, 80, V_Z1, 104
    sX, sW, sM0X, sM0W, sT, sT2, sT3 = 48, 49, 52, 53, 55, 56, 57
    t0, t1, t2, t3 = GT, GT + 1, GT + 2, GT + 3
    NCH = 32
    e(f"""
    v_lshrrev_b32 v{t0}, 3, v{L}
    v_lshrrev_b32 v{t1}, 4, v{L}
    v_and_b32 v{t2}, 7, v{L}
    v_lshlrev_b32 v{XG}, 12, v{t0}
    v_xor_b32 v{t3}, v{t2}, v{t1}
    v_lshlrev_b32 v{t3}, 4, v{t3}
    v_add_u32 v{XG+1}, {8*4096-1024}, v{XG}
    v_add_u32 v{XG}, v{XG}, v{t3}
    v_xor_b32 v{t3}, 64, v{t3}
    v_add_u32 v{XG+1}, v{XG+1}, v{t3}
    v_and_b32 v{t3}, 1, v{t1}
    v_lshlrev_b32 v{t3}, 2, v{t3}
    v_xor_b32 v{t3}, v{t2}, v{t3}
    v_lshlrev_b32 v{t3}, 4, v{t3}
    v_mul_u32_u24 v{WGI}, 1792, v{t0}
    v_add_u32 v{WGI}, v{WGI}, v{t3}
    s_lshl_b32 s{sT}, s{S_W}, 4
    s_add_u32 s{sT}, s{sT}, s{S_ROW0}
    s_lshl_b32 s{sX}, s{sT}, 12
    s_mul_i32 s{sT}, s{S_W}, {8*1792}
    s_lshl_b32 s{sT2}, s{S_J}, 7
    s_add_u32 s{sW}, s{sT}, s{sT2}
    s_add_u32 s{sW}, s{sW}, {WS_Z2}
    s_lshl_b32 s{sM0X}, s{S_W}, 11
    s_add_u32 s{sM0X}, s{sM0X}, {XR}
    s_lshl_b32 s{sM0W}, s{S_W}, 10
    s_add_u32 s{sM0W}, s{sM0W}, {WR}
    s_waitcnt lgkmcnt(0)
    """)
    fin_srds(e, ["wsp", "ws", "bsp"])
    if opt.get("rot"):
        ra, rb = opt["rot"]
        e(f"s_and_b32 s60, s{S_MT}, 3\ns_mul_i32 s60, s60, {ra}\ns_lshr_b32 s61, s2, 5\ns_mul_i32 s61, s61, {rb}\ns_add_u32 s60, s60, s61")
    def x_dma(c):
        if c >= NCH: return []
        def pre():
            e(f"s_add_u32 m0, s{sM0X}, {(c % NS) * 16384}")
            if opt.get("rot"):
                e(f"s_add_u32 s{sT}, s60, {c}\ns_and_b32 s{sT}, s{sT}, 31\ns_lshl_b32 s{sT}, s{sT}, 7\ns_add_u32 s{sT}, s{sT}, s{sX}")
            else:
                e(f"s_add_u32 s{sT}, s{sX}, {c * 128}")
        ops = [pre]
        for i in range(2):
            ops.append(lambda i=i: e.vm(f"buffer_load_dwordx4 v{XG+i}, {sq(R_WSP)}, s{sT} offen offset:{1024*i} lds", ("x", c)))
        return ops
    def w_dma(c):
        if c >= NCH: return []
        def op():
            e(f"s_add_u32 m0, s{sM0W}, {(c % NS) * 8192}")
            if opt.get("rot"):
                e(f"s_add_u32 s{sT2}, s60, {c}\ns_and_b32 s{sT2}, s{sT2}, 31\ns_mul_i32 s{sT2}, s{sT2}, {64*1792}\ns_add_u32 s{sT2}, s{sT2}, s{sW}")
            else:
                e(f"s_add_u32 s{sT2}, s{sW}, {c * 64 * 1792}")
            e.vm(f"buffer_load_dwordx4 v{WGI}, {sq(R_WS)}, s{sT2} offen lds", ("w", c))
        return [op]
    npro = opt.get("npro", 3)
    for op in x_dma(0) + w_dma(0): op()
    e.c("TS 1")
    e(f"""
    v_lshlrev_b32 v{t0}, 5, v0
    s_lshl_b32 s{sT3}, s2, 14
    s_add_u32 s{sT3}, s{sT3}, {WS_Z1R}
    v_and_b32 v{t1}, 31, v{L}
    v_lshlrev_b32 v{t1}, 1, v{t1}
    s_lshl_b32 s58, s{S_RG}, 5
    s_add_u32 s58, s58, s{S_ROW0}
    s_lshl_b32 s58, s58, 1
    """)
    def u1_load():
        e.vm(f"buffer_load_dwordx4 v[{U1}:{U1+3}], v{t0}, {sq(R_WS)}, s{sT3} offen", "u1")
        e.vm(f"buffer_load_dwordx4 v[{U1+4}:{U1+7}], v{t0}, {sq(R_WS)}, s{sT3} offen offset:16", "u1")
        e.vm(f"buffer_load_ushort v{BIAS}, v{t1}, {sq(R_BSP)}, s58 offen", "u1")
    n_, h_, r_, qd_, chf_, u_ = GT + 4, GT + 5, GT + 6, GT + 7, GT + 8, GT + 9
    e(f"""
    v_and_b32 v{n_}, 31, v{L}
    v_lshrrev_b32 v{h_}, 5, v{L}
    v_and_b32 v{r_}, 15, v{L}
    v_and_b32 v{qd_}, 3, v{r_}
    v_lshlrev_b32 v{qd_}, 3, v{qd_}
    v_lshrrev_b32 v{r_}, 2, v{r_}
    v_lshrrev_b32 v{chf_}, 4, v{L}
    v_and_b32 v{chf_}, 1, v{chf_}
    v_lshlrev_b32 v{chf_}, 5, v{chf_}
    v_add_u32 v{chf_}, v{chf_}, v{qd_}
    s_lshl_b32 s{sT}, s{S_CH}, 1
    s_add_u32 s{sT}, s{sT}, s{S_RG}
    v_lshlrev_b32 v{u_}, 3, v{h_}
    v_add_u32 v{u_}, v{u_}, v{r_}
    v_lshlrev_b32 v{u_}, 7, v{u_}
    v_add_u32 v{u_}, v{u_}, v{chf_}
    v_lshrrev_b32 v{r_}, 1, v{r_}
    v_xor_b32 v{r_}, s{S_CH}, v{r_}
    v_lshlrev_b32 v{r_}, 6, v{r_}
    v_add_u32 v{u_}, v{u_}, v{r_}
    v_lshrrev_b32 v{qd_}, 1, v{n_}
    v_and_b32 v{qd_}, 7, v{qd_}
    v_lshlrev_b32 v{chf_}, 7, v{n_}
    s_lshl_b32 s{sT2}, s{S_RG}, 12
    s_add_u32 s{sT2}, s{sT2}, {XR}
    v_add_u32 v{chf_}, s{sT2}, v{chf_}
    """)
    for p in range(4):
        e(f"""
        s_add_u32 s{sT2}, s{sT}, {p}
        s_and_b32 s{sT2}, s{sT2}, 3
        s_lshl_b32 s{sT3}, s{sT2}, 1
        v_add_u32 v{r_}, s{sT3}, v{h_}
        v_xor_b32 v{r_}, v{r_}, v{qd_}
        v_lshlrev_b32 v{r_}, 4, v{r_}
        v_add_u32 v{XA+p}, v{chf_}, v{r_}
        s_lshl_b32 s{sT3}, s{sT2}, 11
        s_add_u32 s{sT3}, s{sT3}, {WR}
        v_add_u32 v{WA+p}, s{sT3}, v{u_}
        v_add_u32 v{XH+p}, 0x10000, v{XA+p}
        """)
    if not opt.get("nopb"): e("s_barrier")
    for c in range(1, npro):
        for op in x_dma(c) + w_dma(c): op()
        if c in opt.get("pb", (1,)): e("s_barrier")
    e(f"s_lshl_b32 s{sT3}, s2, 14\ns_add_u32 s{sT3}, s{sT3}, {WS_Z1R}")
    u1_load()
    e.c("TS 2")
    dsched = {c: [] for c in range(NCH)}
    nxt = npro
    for c in range(NCH):
        for _ in range(opt.get("dn", 2)):
            if nxt < NCH and nxt <= c + NS - 1: dsched[c].append(nxt); nxt += 1
    assert nxt == NCH

    def x_read(c, p):
        s = c % NS
        a = (XA if s < 4 else XH) + p
        return lambda: e.ds(f"ds_read_b128 v[{XF+4*p}:{XF+4*p+3}], v{a} offset:{(s % 4) * 16384}", ("f", c, p))
    def w_read(c, p):
        ops = []
        for t in range(2):
            d = WF + 4 * p + 2 * t
            ops.append(lambda d=d, t=t: e.ds(f"ds_read_b64_tr_b16 v[{d}:{d+1}], v{WA+p} offset:{(c % NS) * 8192 + t * 512}", ("f", c, p)))
        return ops
    def mfma(c, p):
        cin = "0" if (c == 0 and p == 0) else f"v[{ACC}:{ACC+15}]"
        e(f"v_mfma_f32_32x32x16_bf16 v[{ACC}:{ACC+15}], v[{WF+4*p}:{WF+4*p+3}], v[{XF+4*p}:{XF+4*p+3}], {cin}")

    a0, a1, a2 = T, T + 1, T + 2
    setup = late(e, f"""
    v_mov_b32 v{CK1}, {fbits(GELU_K1)}
    v_mov_b32 v{CK2}, {fbits(GELU_K2)}
    v_and_b32 v{a0}, 31, v{L}
    v_lshrrev_b32 v{a1}, 5, v{L}
    s_lshl_b32 s{sT3}, s{S_RG}, 5
    v_add_u32 v{a2}, s{sT3}, v{a0}
    v_mul_u32_u24 v{a2}, 144, v{a2}
    v_lshlrev_b32 v{a1}, 3, v{a1}
    s_lshl_b32 s{sT3}, s{S_CH}, 6
    s_add_u32 s{sT3}, s{sT3}, {XR + 2 * 16384}
    v_add3_u32 v{STW}, v{a2}, v{a1}, s{sT3}
    v_lshrrev_b32 v{a0}, 3, v{L}
    v_and_b32 v{a1}, 7, v{L}
    v_lshlrev_b32 v{a1}, 4, v{a1}
    v_mul_u32_u24 v{GH}, 2688, v{a0}
    v_add_u32 v{GH}, v{GH}, v{a1}
    s_lshl_b32 s{sT3}, s{S_W}, 4
    v_add_u32 v{a0}, s{sT3}, v{a0}
    v_mul_u32_u24 v{STR}, 144, v{a0}
    v_add_u32 v{STR}, v{STR}, v{a1}
    v_add_u32 v{STR}, {XR + 2 * 16384}, v{STR}
    """)
    gel = []
    for q in range(4):
        z = [ZF + 4 * q + i for i in range(4)]
        t = [GT + 4 * (q % 2) + i for i in range(4)]
        gel.append(lambda q=q: (e.need_v("u1"), e(f"v_lshlrev_b32 v{ZF+4*q}, 16, v{U1+2*q}")))
        gel += late(e, f"""
            v_and_b32 v{ZF+4*q+1}, 0xffff0000, v{U1+2*q}
            v_lshlrev_b32 v{ZF+4*q+2}, 16, v{U1+2*q+1}
            v_and_b32 v{ZF+4*q+3}, 0xffff0000, v{U1+2*q+1}
            """)
        for fmt in ("v_mul_f32 v{t}, v{a}, v{a}", f"v_fma_f32 v{{t}}, v{{t}}, v{CK2}, v{CK1}", "v_mul_f32 v{t}, v{a}, v{t}",
                    "v_exp_f32 v{t}, v{t}", "v_add_f32 v{t}, 1.0, v{t}", "v_rcp_f32 v{t}, v{t}", "v_mul_f32 v{a}, v{a}, v{t}"):
            for i in range(4):
                gel.append(lambda fmt=fmt, i=i, z=z, t=t: e(fmt.format(t=t[i], a=z[i])))
    gel.append(lambda: e(f"v_lshlrev_b32 v{BIAS}, 16, v{BIAS}"))
    gaps = {(c, p): [] for c in range(NCH) for p in range(4)}
    def spread_gaps(ops, a_, b_):
        slots = [(c, p) for c in range(a_[0], b_[0] + 1) for p in range(4) if (c, p) >= tuple(a_) and (c, p) <= tuple(b_)]
        for sl, s_ in zip(spread(ops, len(slots)), slots): gaps[s_] += sl
    spread_gaps(setup, (0, 0), (2, 3))
    spread_gaps(gel, (4, 0), (29, 3))

    e.need_v([("x", 0), ("w", 0)]); e("s_barrier")
    e.c("TS 3")
    for p in range(4):
        x_read(0, p)()
        for op in w_read(0, p): op()
    dpos = opt.get("dpos", (0, 2))
    for c in range(NCH):
        tsl = opt.get("ts", (4, 12, 20, 28))
        if c in tsl: e.c(f"TS {4 + tsl.index(c)}")
        if c + 1 < NCH: e.need_v([("x", c + 1), ("w", c + 1)])
        if c + 1 < NCH or fused: e("s_barrier")
        dl = [x_dma(k) + w_dma(k) for k in dsched[c]] + [[], []]
        if opt.get("nodma"): dl = [[], []]
        for p in range(4):
            e.need_l(("f", c, p))
            mfma(c, p)
            if c + 1 < NCH:
                x_read(c + 1, p)()
                for f in w_read(c + 1, p): f()
            if p == dpos[0]:
                for f in dl[0]: f()
            if p == dpos[1]:
                for f in dl[1]: f()
            for f in gaps[(c, p)]: f()
    e.c("TS 8")
    BV = GT
    e(f"v_mov_b32 v{BIAS+0}, v{BIAS}")
    for q in range(4):
        a = ACC + 4 * q
        for i in range(4): e(f"v_add_f32 v{a+i}, v{a+i}, v{BIAS}")
        for i in range(4): e(f"v_mul_f32 v{a+i}, v{a+i}, v{ZF+4*q+i}")
        e(f"v_cvt_pk_bf16_f32 v{BV+2*q}, v{a}, v{a+1}")
        e(f"v_cvt_pk_bf16_f32 v{BV+2*q+1}, v{a+2}, v{a+3}")
        e.ds(f"ds_write_b64 v{STW}, v[{BV+2*q}:{BV+2*q+1}] offset:{q*16}", "stg")
    e(f"""
    s_lshl_b32 s{sT}, s{S_W}, 4
    s_add_u32 s{sT}, s{sT}, s{S_ROW0}
    s_mul_i32 s{sT}, s{sT}, 2688
    s_lshl_b32 s{sT2}, s{S_J}, 7
    s_add_u32 s{sT}, s{sT}, s{sT2}
    s_add_u32 s{sT}, s{sT}, {WS_HO}
    s_add_u32 s{sT2}, s{sT}, {8*2688}
    """)
    e.need_l("stg"); e("s_barrier")
    e.c("TS 9")
    sc = " sc1" if fused else ""
    for i in range(2):
        e.ds(f"ds_read_b128 v[{XF+4*i}:{XF+4*i+3}], v{STR} offset:{i*8*144}", ("rb", i))
    for i in range(2):
        e.need_l(("rb", i))
        e.vm(f"buffer_store_dwordx4 v[{XF+4*i}:{XF+4*i+3}], v{GH}, {sq(R_WS)}, s{(sT, sT2)[i]} offen{sc}", "st")

def k2_attn(e, fused=False, opt=None):
    opt = opt or {}
    L = 1
    PITCH = 1920
    QA, QB, KV, LA, LB, OA, OB = 8, 22, 36, 162, 170, 178, 206
    PA, PB = 234, 238
    VA, VQ, VL, VS, VM, VN = 242, 243, 244, 245, 246, 247
    PT = QA
    sA, sR, sT, sT2, sQ, sQ2, sLo, sHi = 48, 49, 50, 51, 52, 53, 54, 55
    e(f"""
    s_sub_u32 s{sA}, s2, 224
    s_lshl_b32 s{sR}, s{sA}, 6
    v_and_b32 v{VM}, 15, v{L}
    v_mul_u32_u24 v{VM}, 56, v{VM}
    v_lshrrev_b32 v{VN}, 4, v{L}
    v_and_b32 v{VS}, 1, v{VN}
    v_lshrrev_b32 v{VN}, 1, v{VN}
    v_lshl_add_u32 v{VS}, v{VN}, 2, v{VS}
    s_lshl_b32 s{sT}, s{S_W}, 3
    v_add_u32 v{VS}, s{sT}, v{VS}
    v_mul_u32_u24 v{VQ}, 2688, v{VS}
    v_add_u32 v{VQ}, v{VQ}, v{VM}
    v_mul_u32_u24 v{VA}, {PITCH}, v{VS}
    v_add_u32 v{VA}, v{VA}, v{VM}
    v_lshlrev_b32 v{VL}, 4, v{L}
    s_mul_i32 s{sQ}, s{sR}, 2688
    s_add_u32 s{sQ}, s{sQ}, {WS_QKV}
    s_add_u32 s{sQ2}, s{sQ}, {2*2688}
    s_waitcnt lgkmcnt(0)
    """)
    fin_srds(e, ["ws"])
    sc = " sc1" if fused else ""
    def kv_dma(part):
        e("s_mov_b32 exec_hi, 0x00ffffff")
        for i in range(10):
            e(f"""
            s_add_u32 s{sT}, s{S_W}, {8*i}
            s_min_u32 s{sT}, s{sT}, 77
            s_mul_i32 s{sT2}, s{sT}, {PITCH}
            s_add_u32 m0, s{sT2}, {896*part}
            s_add_u32 s{sT}, s{sT}, s{sR}
            s_sub_i32 s{sT}, s{sT}, 14
            s_max_i32 s{sT}, s{sT}, 0
            s_mul_i32 s{sT}, s{sT}, 2688
            s_add_u32 s{sT}, s{sT}, {WS_QKV + 896 + 896*part}
            """)
            e.vm(f"buffer_load_dwordx4 v{VL}, {sq(R_WS)}, s{sT} offen lds{sc}", ("kv", part))
        e("s_mov_b32 exec_hi, -1")
    kv_dma(0)
    for base, so in ((QA, sQ), (QB, sQ2)):
        for i in range(3):
            e.vm(f"buffer_load_dwordx4 v[{base+4*i}:{base+4*i+3}], v{VQ}, {sq(R_WS)}, s{so} offen offset:{16*i}{sc}", "q")
        e.vm(f"buffer_load_dwordx2 v[{base+12}:{base+13}], v{VQ}, {sq(R_WS)}, s{so} offen offset:48{sc}", "q")
    kv_dma(1)
    e.c("TS 1")
    e.need_v([("kv", 0), "q"]); e("s_barrier")
    e.c("TS 2")
    def rd(j, part):
        for i in range(7):
            e.ds(f"ds_read_b64 v[{KV+14*j+2*i}:{KV+14*j+2*i+1}], v{VA} offset:{(16-2*j)*PITCH + 896*part + 8*i}", ("kv", part, j))
    for j in range(9): rd(j, 0)
    for j0 in range(0, 9, 2):
        js = [j for j in (j0, j0 + 1) if j < 9]
        e.need_l([("kv", 0, j) for j in js])
        for i in range(14):
            for j in js:
                if j <= 7: e(f"v_dot2_f32_bf16 v{LB+j}, v{QB+i}, v{KV+14*j+i}, {'0' if i == 0 else f'v{LB+j}'}")
                if j >= 1: e(f"v_dot2_f32_bf16 v{LA+j-1}, v{QA+i}, v{KV+14*j+i}, {'0' if i == 0 else f'v{LA+j-1}'}")
        if j0 == 2:
            e.c("TS 3")
            e.need_v(("kv", 1)); e("s_barrier")
        if j0 >= 2:
            for j in (js if j0 > 2 else [0, 1, 2, 3]): rd(j, 1)
    e.c("TS 4")
    LM = e.label("am")
    e(f"""
    s_cmp_lg_u32 s{sA}, 0
    s_cbranch_scc1 {LM}
    v_mov_b32 v{VM}, {fbits(-1e9)}
    v_add_u32 v{VN}, 2, v{VS}
    """)
    for w in range(1, 8):
        e(f"v_cmp_le_u32 vcc, {2*w}, v{VS}\nv_cndmask_b32 v{LA+w}, v{VM}, v{LA+w}, vcc")
        e(f"v_cmp_le_u32 vcc, {2*w}, v{VN}\nv_cndmask_b32 v{LB+w}, v{VM}, v{LB+w}, vcc")
    e(f"{LM}:")
    SC = (28 ** -0.5) * 1.4426950408889634
    e(f"s_mov_b32 s{sT}, {fbits(SC)}")
    X = ((LA, VM), (LB, VN))
    for l, m in X: e(f"v_max3_f32 v{m}, v{l}, v{l+1}, v{l+2}")
    for l, m in X: e(f"v_max3_f32 v{m}, v{m}, v{l+3}, v{l+4}")
    for l, m in X: e(f"v_max3_f32 v{m}, v{m}, v{l+5}, v{l+6}")
    for l, m in X: e(f"v_max_f32 v{m}, v{m}, v{l+7}")
    for l, m in X: e(f"v_mul_f32 v{m}, {fbits(-SC)}, v{m}")
    for w in range(8):
        for l, m in X: e(f"v_fma_f32 v{l+w}, v{l+w}, s{sT}, v{m}")
    for w in range(8):
        for l, m in X: e(f"v_exp_f32 v{l+w}, v{l+w}")
    tA, tB = PA, PB
    for l, t in ((LA, tA), (LB, tB)):
        for u in range(4): e(f"v_add_f32 v{t+u}, v{l+2*u}, v{l+2*u+1}")
    for t in (tA, tB): e(f"v_add_f32 v{t}, v{t}, v{t+1}\nv_add_f32 v{t+2}, v{t+2}, v{t+3}")
    for t in (tA, tB): e(f"v_add_f32 v{t}, v{t}, v{t+2}")
    for t, m in ((tA, VM), (tB, VN)): e(f"v_rcp_f32 v{m}, v{t}")
    for w in range(8):
        for l, m in X: e(f"v_mul_f32 v{l+w}, v{l+w}, v{m}")
    for u in range(4): e(f"v_cvt_pk_bf16_f32 v{PA+u}, v{LA+2*u}, v{LA+2*u+1}")
    for u, (a, b) in enumerate(((1, 2), (3, 4), (5, 6), (0, 7))): e(f"v_cvt_pk_bf16_f32 v{PB+u}, v{LB+a}, v{LB+b}")
    e.c("TS 5")
    e(f"s_mov_b32 s{sLo}, 0x05040100\ns_mov_b32 s{sHi}, 0x07060302")
    def perm(ja, jb):
        e.need_l([("kv", 1, ja), ("kv", 1, jb)])
        for i in range(14):
            a, b = KV + 14 * ja + i, KV + 14 * jb + i
            e(f"v_perm_b32 v{PT+2*i}, v{b}, v{a}, s{sLo}")
            e(f"v_perm_b32 v{PT+2*i+1}, v{b}, v{a}, s{sHi}")
    for u, (ja, jb) in enumerate(((1, 2), (3, 4), (5, 6))):
        perm(ja, jb)
        for d in range(28):
            e(f"v_dot2_f32_bf16 v{OA+d}, v{PT+d}, v{PA+u}, {'0' if u == 0 else f'v{OA+d}'}")
            e(f"v_dot2_f32_bf16 v{OB+d}, v{PT+d}, v{PB+u}, {'0' if u == 0 else f'v{OB+d}'}")
    perm(7, 8)
    for d in range(28): e(f"v_dot2_f32_bf16 v{OA+d}, v{PT+d}, v{PA+3}, v{OA+d}")
    perm(0, 7)
    for d in range(28): e(f"v_dot2_f32_bf16 v{OB+d}, v{PT+d}, v{PB+3}, v{OB+d}")
    e.c("TS 6")
    for o, q in ((OA, KV), (OB, KV + 14)):
        for i in range(14): e(f"v_cvt_pk_bf16_f32 v{q+i}, v{o+2*i}, v{o+2*i+1}")
    e(f"""
    s_mul_i32 s{sQ}, s{sR}, 2688
    s_add_u32 s{sQ}, s{sQ}, {WS_HO + 1792}
    s_add_u32 s{sQ2}, s{sQ}, {2*2688}
    """)
    for base, so in ((KV, sQ), (KV + 14, sQ2)):
        for i in range(3):
            e.vm(f"buffer_store_dwordx4 v[{base+4*i}:{base+4*i+3}], v{VQ}, {sq(R_WS)}, s{so} offen offset:{16*i}{sc}", "st")
        e.vm(f"buffer_store_dwordx2 v[{base+12}:{base+13}], v{VQ}, {sq(R_WS)}, s{so} offen offset:48{sc}", "st")
```

```python
import sys
from emit import *

S, D, F, FH, QK = 2048, 448, 1792, 896, 1344
WS_Z1  = 0x0000000
WS_Z2  = 0x0400000
WS_QKV = 0x0800000
WS_HO  = 0x0E00000
WS_ST  = 0x1400000
WS_SIZE = 0x10000000
K_X, K_WQKV, K_WO, K_WIN, K_WSP, K_BSP, K_WOUT, K_OUT, K_DBG, K_WS = 0, 8, 16, 32, 40, 48, 56, 64, 72, 80
SZ_X = S * D * 2; SZ_WQKV = D * QK * 2; SZ_WO = D * D * 2; SZ_WIN = D * F * 2
SZ_WSP = S * S * 2; SZ_BSP = S * 2; SZ_WOUT = FH * D * 2

def srd(e, s, karg, size):
    e(f"s_load_dwordx2 s[{s}:{s+1}], s[0:1], {karg}")
def srd_fin(e, s, size):
    e(f"s_mov_b32 s{s+2}, {size}")
    e(f"s_mov_b32 s{s+3}, 0x20000")

GELU_K1 = -2.0 * 0.7978845608028654 * 1.4426950408889634
GELU_K2 = GELU_K1 * 0.044715
import struct
def fbits(x): return "0x%08x" % struct.unpack("<I", struct.pack("<f", x))[0]

def gen_k1():
    XR, ZR, QR = 0, 49152, 49152 + 52224
    XS, ZS, QS = 16384, 17408, 12288
    CSP = QR + 3 * QS
    CST = CSP + 7168
    LDS = CST + 896
    e = E("k1_kernel", (224, 1, 1), (256, 1, 1), LDS, vgpr=256, sgpr=96)
    END = "L_end_k1"
    V_XG, V_ZG, V_QG = 2, 6, 10
    V_XA, V_ZA, V_QA = 14, 18, 22
    V_S, V_SS = 26, 27
    V_CS = 28
    V_ONE = 35
    V_T = 36
    V_A = 64
    V_B = 120
    V_ACC = 128
    LANE = 1
    e(f"""
    s_cmp_ge_u32 s2, 224
    s_cbranch_scc1 {END}
    """)
    srd(e, 4, K_X, SZ_X); srd(e, 8, K_WIN, SZ_WIN); srd(e, 12, K_WQKV, SZ_WQKV); srd(e, 16, K_WS, WS_SIZE)
    e(f"""
    v_lshrrev_b32 v2, 6, v0
    v_and_b32 v{LANE}, 63, v0
    v_readfirstlane_b32 s20, v2
    s_and_b32 s24, s2, 7                   ; xcd
    s_lshr_b32 s25, s2, 3                  ; slot
    s_lshr_b32 s26, s24, 1
    s_lshl_b32 s26, s26, 2
    s_and_b32 s27, s25, 3
    s_add_u32 s21, s26, s27                ; Mt
    s_and_b32 s26, s24, 1
    s_mul_i32 s26, s26, 7
    s_lshr_b32 s27, s25, 2
    s_add_u32 s22, s26, s27                ; j
    s_lshl_b32 s26, s22, 7                 ; 128 j
    s_add_u32 s27, s26, 896
    s_sub_u32 s28, s26, 896
    s_cmp_lt_u32 s22, 7
    s_cselect_b32 s23, s27, s28
    s_lshl_b32 s26, s21, 7
    s_lshl_b32 s27, s20, 5
    s_add_u32 s29, s26, s27
    s_mul_i32 s30, s29, 896                ; X base
    s_lshl_b32 s26, s20, 4                 ; 16 w
    s_mul_i32 s31, s26, 3584
    s_lshl_b32 s27, s23, 1
    s_add_u32 s31, s31, s27
    s_mul_i32 s32, s26, 2688
    s_mul_i32 s27, s22, 192
    s_add_u32 s32, s32, s27
    s_lshl_b32 s33, s20, 12
    s_add_u32 s33, s33, {XR}               ; M0 base X
    s_mul_i32 s34, s20, 4352
    s_add_u32 s34, s34, {ZR}
    s_mul_i32 s35, s20, 3072
    s_add_u32 s35, s35, {QR}
    """)
    L = LANE
    t0, t1, t2, t3 = V_T, V_T + 1, V_T + 2, V_T + 3
    e(f"""
    v_lshrrev_b32 v{t0}, 3, v{L}           ; lane>>3
    v_mul_u32_u24 v{t0}, 896, v{t0}
    v_lshrrev_b32 v{t1}, 4, v{L}           ; lane>>4
    v_and_b32 v{t2}, 7, v{L}
    """)
    for i in range(4):
        e(f"""
        v_add_u32 v{t3}, {4*i}, v{t1}
        v_and_b32 v{t3}, 7, v{t3}
        v_xor_b32 v{t3}, v{t2}, v{t3}
        v_lshlrev_b32 v{t3}, 4, v{t3}
        v_add_u32 v{t3}, v{t0}, v{t3}
        v_add_u32 v{V_XG+i}, {i*6144}, v{t3}
        """)
    e(f"""
    v_mul_u32_u24 v{t0}, {4*3584}, v{t1}
    v_and_b32 v{t2}, 15, v{L}
    v_lshlrev_b32 v{t2}, 4, v{t2}
    v_add_u32 v{t0}, v{t0}, v{t2}
    """)
    for r in range(4):
        e(f"v_add_u32 v{V_ZG+r}, {r*2496}, v{t0}")
    for t in range(3):
        e(f"""
        v_add_u32 v{t0}, {64*t}, v{L}
        v_mul_u32_u24 v{t1}, 43691, v{t0}
        v_lshrrev_b32 v{t1}, 19, v{t1}         ; row = p/12
        v_mul_u32_u24 v{t2}, 12, v{t1}
        v_sub_u32 v{t2}, v{t0}, v{t2}          ; pos
        v_lshlrev_b32 v{t2}, 4, v{t2}
        v_mul_u32_u24 v{t1}, 2688, v{t1}
        v_add_u32 v{t1}, v{t1}, v{t2}
        v_subrev_u32 v{V_QG+t}, {1024*t}, v{t1}
        """)
    e("s_waitcnt lgkmcnt(0)")
    srd_fin(e, 4, SZ_X); srd_fin(e, 8, SZ_WIN); srd_fin(e, 12, SZ_WQKV); srd_fin(e, 16, WS_SIZE)

    def dma_ops(c):
        slot = c % 3
        ops = []
        def x_pre():
            e(f"s_add_u32 m0, s33, {slot*XS}")
            e(f"s_add_u32 s36, s30, {c*128}")
        ops.append(x_pre)
        for i in range(4):
            ops.append(lambda i=i: e.vm(f"buffer_load_dwordx4 v{V_XG+i}, s[4:7], s36 offen offset:{1024*i} lds", ("dma", c)))
        def z_pre():
            e(f"s_add_u32 m0, s34, {slot*ZS}")
            e(f"s_add_u32 s37, s31, {c*64*3584}")
        ops.append(z_pre)
        for r in range(4):
            ops.append(lambda r=r: e.vm(f"buffer_load_dwordx4 v{V_ZG+r}, s[8:11], s37 offen offset:{1088*r} lds", ("dma", c)))
        def q_pre():
            e(f"s_add_u32 m0, s35, {slot*QS}")
            e(f"s_add_u32 s38, s32, {c*64*2688}")
        ops.append(q_pre)
        for t in range(3):
            ops.append(lambda t=t: e.vm(f"buffer_load_dwordx4 v{V_QG+t}, s[12:15], s38 offen offset:{1024*t} lds", ("dma", c)))
        return ops
    for c in range(3):
        for op in dma_ops(c): op()

    n_, h_, g_, r_, q_, ch_ = V_T, V_T+1, V_T+2, V_T+3, V_T+4, V_T+5
    u_ = V_T + 6
    e(f"""
    v_and_b32 v{n_}, 31, v{L}
    v_lshrrev_b32 v{h_}, 5, v{L}
    v_and_b32 v{r_}, 15, v{L}
    v_and_b32 v{q_}, 3, v{r_}
    v_lshrrev_b32 v{r_}, 2, v{r_}
    v_lshrrev_b32 v{ch_}, 4, v{L}
    v_and_b32 v{ch_}, 1, v{ch_}
    v_lshlrev_b32 v{ch_}, 5, v{ch_}
    v_lshlrev_b32 v{q_}, 3, v{q_}
    v_add_u32 v{ch_}, v{ch_}, v{q_}
    s_lshl_b32 s39, s20, 12
    s_add_u32 s39, s39, {XR}
    """)
    for pos in range(4):
        e(f"""
        s_add_u32 s40, s20, {pos}
        s_and_b32 s40, s40, 3                  ; g
        s_lshl_b32 s41, s40, 1
        v_add_u32 v{g_}, s41, v{h_}            ; 2g+h
        v_lshrrev_b32 v{u_}, 1, v{n_}
        v_and_b32 v{u_}, 7, v{u_}
        v_xor_b32 v{g_}, v{g_}, v{u_}
        v_lshlrev_b32 v{g_}, 4, v{g_}
        v_lshlrev_b32 v{u_}, 7, v{n_}
        v_add_u32 v{g_}, v{g_}, v{u_}
        v_add_u32 v{V_XA+pos}, s39, v{g_}
        s_mul_i32 s41, s40, 4352
        s_add_u32 s41, s41, {ZR}
        v_mul_u32_u24 v{g_}, 1088, v{r_}
        v_lshlrev_b32 v{u_}, 9, v{h_}
        v_add3_u32 v{g_}, v{g_}, v{u_}, v{ch_}
        v_add_u32 v{V_ZA+pos}, s41, v{g_}
        s_mul_i32 s41, s40, 3072
        s_add_u32 s41, s41, {QR}
        v_lshlrev_b32 v{u_}, 3, v{h_}
        v_add_u32 v{u_}, v{u_}, v{r_}
        v_mul_u32_u24 v{u_}, 192, v{u_}
        v_add_u32 v{u_}, v{u_}, v{ch_}
        v_add_u32 v{V_QA+pos}, s41, v{u_}
        """)
    e(f"v_mov_b32 v{V_ONE}, 0x3f803f80")
    e(f"v_mov_b32 v{V_S}, 0\nv_mov_b32 v{V_SS}, 0")
    for b in range(7): e(f"v_mov_b32 v{V_CS+b}, 0")

    def read_ops(s):
        c, pos = divmod(s, 4); slot = c % 3; buf = s % 2
        ops = []
        ops.append(lambda: e.ds(f"ds_read_b128 v[{V_B+4*buf}:{V_B+4*buf+3}], v{V_XA+pos} offset:{slot*XS}", ("B", s)))
        for b in range(7):
            for t in range(2):
                d = V_A + 28 * buf + 4 * b + 2 * t
                if b < 4:
                    ops.append(lambda d=d, b=b, t=t: e.ds(f"ds_read_b64_tr_b16 v[{d}:{d+1}], v{V_ZA+pos} offset:{slot*ZS + t*256 + b*64}", ("A", s, b)))
                else:
                    ops.append(lambda d=d, b=b, t=t: e.ds(f"ds_read_b64_tr_b16 v[{d}:{d+1}], v{V_QA+pos} offset:{slot*QS + t*768 + (b-4)*64}", ("A", s, b)))
        return ops
    def stat_ops(s):
        c, pos = divmod(s, 4); buf = s % 2
        ops = []
        for i in range(4):
            rb = V_B + 4 * buf + i
            ops.append(lambda rb=rb: (e.need_l(("B", s)), e(f"v_dot2c_f32_bf16 v{V_S}, v{rb}, v{V_ONE}")))
            ops.append(lambda rb=rb: e(f"v_dot2c_f32_bf16 v{V_SS}, v{rb}, v{rb}"))
        if pos == 0:
            for i in range(4):
                for b in range(7):
                    ra = V_A + 28 * buf + 4 * b + i
                    ops.append(lambda ra=ra, b=b: (e.need_l(("A", s, b)), e(f"v_dot2c_f32_bf16 v{V_CS+b}, v{ra}, v{V_ONE}")))
        return ops
    def mfma(s, b):
        buf = s % 2
        a = V_A + 28 * buf + 4 * b; bb = V_B + 4 * buf; d = V_ACC + 16 * b
        cin = "0" if s == 0 else f"v[{d}:{d+15}]"
        e(f"v_mfma_f32_32x32x16_bf16 v[{d}:{d+15}], v[{a}:{a+3}], v[{bb}:{bb+3}], {cin}")

    e.c("TS 1")
    e.need_v(("dma", 0)); e("s_barrier")
    e.c("TS 2")
    for op in read_ops(0): op()
    NS = 28
    for s in range(NS):
        c, pos = divmod(s, 4)
        if s in (4, 12, 20): e.c(f"TS {3 + (s-4)//8}")
        fill = []
        pre_barrier = (pos == 3 and s + 1 < NS)
        nxt = read_ops(s + 1) if s + 1 < NS else []
        st = stat_ops(s)
        mains = []
        for b in range(7):
            def m(b=b):
                if b == 0: e.need_l([("B", s)] + [("A", s, bb) for bb in range(3)])
                if b == 3: e.need_l([("A", s, bb) for bb in range(3, 7)])
                mfma(s, b)
            mains.append(m)
        if pre_barrier:
            e.need_l([("B", s)] + [("A", s, bb) for bb in range(7)])
            mains[0](); mains[1]()
            e.need_v(("dma", c + 1)); e("s_barrier")
            d = dma_ops(c + 3) if c + 3 < 7 else []
            fill = nxt + d + st
            interleave(e, mains[2:], fill)
        else:
            fill = nxt + st
            interleave(e, mains, fill)

    T = V_T
    e.c("TS 6")
    e.nop(4)
    e(f"""
    v_and_b32 v{T}, 31, v{L}
    v_lshrrev_b32 v{T+1}, 5, v{L}
    s_lshl_b32 s40, s20, 1
    v_add_u32 v{T+1}, s40, v{T+1}          ; 2w+h
    v_mul_u32_u24 v{T+1}, 896, v{T+1}
    v_lshlrev_b32 v{T}, 2, v{T}
    v_add_u32 v{T}, v{T}, v{T+1}
    v_add_u32 v{T}, {CSP}, v{T}
    """)
    for b in range(7): e.ds(f"ds_write_b32 v{T}, v{V_CS+b} offset:{128*b}")
    e(f"""
    v_mov_b32 v{T+2}, v{V_S}
    v_mov_b32 v{T+3}, v{V_SS}
    s_nop 1
    v_permlane32_swap_b32 v{V_S}, v{T+2}
    v_permlane32_swap_b32 v{V_SS}, v{T+3}
    s_nop 1
    v_add_f32 v{V_S}, v{V_S}, v{T+2}
    v_add_f32 v{V_SS}, v{V_SS}, v{T+3}
    v_mul_f32 v{V_S}, {fbits(1.0/448)}, v{V_S}         ; mean
    v_mul_f32 v{V_SS}, {fbits(1.0/448)}, v{V_SS}
    v_fma_f32 v{V_SS}, -v{V_S}, v{V_S}, v{V_SS}        ; var
    v_max_f32 v{V_SS}, 0, v{V_SS}
    v_add_f32 v{V_SS}, {fbits(1e-5)}, v{V_SS}
    v_rsq_f32 v{V_SS}, v{V_SS}                          ; r
    """)
    e.wait_l0(); e("s_barrier")
    e(f"""
    v_cmp_gt_u32 vcc, 224, v0
    s_and_saveexec_b64 s[42:43], vcc
    v_lshlrev_b32 v{T}, 2, v0
    v_add_u32 v{T+1}, {CSP}, v{T}
    """)
    for i in range(8): e(f"ds_read_b32 v{T+4+i}, v{T+1} offset:{896*i}")
    e("s_waitcnt lgkmcnt(0)")
    e(f"""
    v_add_f32 v{T+4}, v{T+4}, v{T+5}
    v_add_f32 v{T+6}, v{T+6}, v{T+7}
    v_add_f32 v{T+8}, v{T+8}, v{T+9}
    v_add_f32 v{T+10}, v{T+10}, v{T+11}
    v_add_f32 v{T+4}, v{T+4}, v{T+6}
    v_add_f32 v{T+8}, v{T+8}, v{T+10}
    v_add_f32 v{T+4}, v{T+4}, v{T+8}
    v_add_u32 v{T+1}, {CST}, v{T}
    ds_write_b32 v{T+1}, v{T+4}
    s_mov_b64 exec, s[42:43]
    s_waitcnt lgkmcnt(0)
    s_barrier
    """)
    e.c("TS 7")
    R, NM, C1, C2, P1 = 40, 42, 44, 46, 48
    SA, SB = 50, 52
    CSA = 54
    WZ, WQ = 55, 56
    CS4 = 64
    e(f"""
    v_mov_b32 v{R}, v{V_SS}
    v_mov_b32 v{R+1}, v{V_SS}
    v_mul_f32 v{NM}, v{V_S}, v{V_SS}
    v_sub_f32 v{NM}, 0, v{NM}
    v_mov_b32 v{NM+1}, v{NM}
    v_mov_b32 v{C1}, {fbits(GELU_K1)}
    v_mov_b32 v{C1+1}, {fbits(GELU_K1)}
    v_mov_b32 v{C2}, {fbits(GELU_K2)}
    v_mov_b32 v{C2+1}, {fbits(GELU_K2)}
    v_mov_b32 v{P1}, 1.0
    v_mov_b32 v{P1+1}, 1.0
    v_mov_b32 v{SA}, 0
    v_mov_b32 v{SA+1}, 0
    v_mov_b32 v{SB}, 0
    v_mov_b32 v{SB+1}, 0
    v_lshrrev_b32 v{CSA}, 5, v{L}
    v_lshlrev_b32 v{CSA}, 4, v{CSA}
    v_add_u32 v{CSA}, {CST}, v{CSA}          ; + 16 h
    v_and_b32 v{T}, 31, v{L}
    v_lshrrev_b32 v{T+1}, 5, v{L}
    v_lshlrev_b32 v{T+1}, 3, v{T+1}          ; 8h
    s_lshl_b32 s40, s20, 14
    v_mul_u32_u24 v{WZ}, 272, v{T}
    v_add3_u32 v{WZ}, v{WZ}, v{T+1}, s40
    s_add_u32 s41, s40, 8704
    v_mul_u32_u24 v{WQ}, 208, v{T}
    v_add3_u32 v{WQ}, v{WQ}, v{T+1}, s41
    """)
    for b in range(7):
        acc = V_ACC + 16 * b
        cs = CS4 + (b % 2) * 16
        for q in range(4):
            e.ds(f"ds_read_b128 v[{cs+4*q}:{cs+4*q+3}], v{CSA} offset:{(b*32+8*q)*4}", ("cs", b))
        e.need_l(("cs", b))
        for p in range(8):
            e(f"v_pk_mul_f32 v[{cs+2*p}:{cs+2*p+1}], v[{cs+2*p}:{cs+2*p+1}], v[{NM}:{NM+1}]")
        for p in range(8):
            e(f"v_pk_fma_f32 v[{acc+2*p}:{acc+2*p+1}], v[{acc+2*p}:{acc+2*p+1}], v[{R}:{R+1}], v[{cs+2*p}:{cs+2*p+1}]")
        if b < 4:
            W = 96
            for p in range(8):
                e(f"v_pk_mul_f32 v[{W+2*p}:{W+2*p+1}], v[{acc+2*p}:{acc+2*p+1}], v[{acc+2*p}:{acc+2*p+1}]")
            for p in range(8):
                e(f"v_pk_fma_f32 v[{W+2*p}:{W+2*p+1}], v[{W+2*p}:{W+2*p+1}], v[{C2}:{C2+1}], v[{C1}:{C1+1}]")
            for p in range(8):
                e(f"v_pk_mul_f32 v[{W+2*p}:{W+2*p+1}], v[{W+2*p}:{W+2*p+1}], v[{acc+2*p}:{acc+2*p+1}]")
            for i in range(16):
                e(f"v_exp_f32 v{W+i}, v{W+i}")
            for p in range(8):
                e(f"v_pk_add_f32 v[{W+2*p}:{W+2*p+1}], v[{W+2*p}:{W+2*p+1}], v[{P1}:{P1+1}]")
            for i in range(16):
                e(f"v_rcp_f32 v{W+i}, v{W+i}")
            for p in range(8):
                e(f"v_pk_mul_f32 v[{acc+2*p}:{acc+2*p+1}], v[{acc+2*p}:{acc+2*p+1}], v[{W+2*p}:{W+2*p+1}]")
            for p in range(8):
                e(f"v_pk_add_f32 v[{SA}:{SA+1}], v[{SA}:{SA+1}], v[{acc+2*p}:{acc+2*p+1}]")
                e(f"v_pk_fma_f32 v[{SB}:{SB+1}], v[{acc+2*p}:{acc+2*p+1}], v[{acc+2*p}:{acc+2*p+1}], v[{SB}:{SB+1}]")
        PK = 112
        for p in range(8):
            e(f"v_cvt_pk_bf16_f32 v{PK+p}, v{acc+2*p}, v{acc+2*p+1}")
        for q in range(4):
            if b < 4:
                e.ds(f"ds_write_b64 v{WZ}, v[{PK+2*q}:{PK+2*q+1}] offset:{(b*4+q)*16}")
            else:
                e.ds(f"ds_write_b64 v{WQ}, v[{PK+2*q}:{PK+2*q+1}] offset:{((b-4)*4+q)*16}")
    e.c("TS 8")
    e(f"""
    v_add_f32 v{SA}, v{SA}, v{SA+1}
    v_add_f32 v{SB}, v{SB}, v{SB+1}
    v_mov_b32 v{T}, v{SA}
    v_mov_b32 v{T+1}, v{SB}
    s_nop 1
    v_permlane32_swap_b32 v{SA}, v{T}
    v_permlane32_swap_b32 v{SB}, v{T+1}
    s_nop 1
    v_add_f32 v{SA}, v{SA}, v{T}
    v_add_f32 v{SA+1}, v{SB}, v{T+1}
    """)
    SK = e.label("skipst")
    e(f"""
    s_cmp_ge_u32 s22, 7
    s_cbranch_scc1 {SK}
    v_and_b32 v{T}, 31, v{L}
    v_lshlrev_b32 v{T}, 6, v{T}            ; row*64
    s_lshl_b32 s40, s29, 6
    s_lshl_b32 s41, s22, 3
    s_add_u32 s40, s40, s41
    s_add_u32 s40, s40, {WS_ST}
    v_cmp_gt_u32 vcc, 32, v{L}
    s_and_saveexec_b64 s[42:43], vcc
    buffer_store_dwordx2 v[{SA}:{SA+1}], v{T}, s[16:19], s40 offen
    s_mov_b64 exec, s[42:43]
    {SK}:
    """)
    e.wait_l0()
    RZ, GZ = 36, 37
    e(f"""
    v_lshrrev_b32 v{T+2}, 4, v{L}
    v_and_b32 v{T+3}, 15, v{L}
    v_lshlrev_b32 v{T+3}, 4, v{T+3}
    s_lshl_b32 s40, s20, 14
    v_mul_u32_u24 v{RZ}, 272, v{T+2}
    v_add3_u32 v{RZ}, v{RZ}, v{T+3}, s40
    v_mul_u32_u24 v{GZ}, 1792, v{T+2}
    v_add_u32 v{GZ}, v{GZ}, v{T+3}
    s_mul_i32 s44, s29, 1792
    s_lshl_b32 s45, s22, 8                 ; 256 j bytes
    s_add_u32 s46, s45, {WS_Z2}
    s_sub_u32 s47, s45, {7*256}
    s_add_u32 s47, s47, {WS_Z1}
    s_cmp_lt_u32 s22, 7
    s_cselect_b32 s45, s46, s47
    s_add_u32 s44, s44, s45
    """)
    OB = 64
    for i in range(8):
        e.ds(f"ds_read_b128 v[{OB+4*i}:{OB+4*i+3}], v{RZ} offset:{4*i*272}", ("zo", i))
    RQ, GQ = 40, 44
    e("s_lshl_b32 s48, s20, 14\ns_add_u32 s48, s48, 8704")
    for t in range(3):
        e(f"""
        v_add_u32 v{T+2}, {64*t}, v{L}
        v_mul_u32_u24 v{T+3}, 43691, v{T+2}
        v_lshrrev_b32 v{T+3}, 19, v{T+3}
        v_mul_u32_u24 v{GQ+3}, 12, v{T+3}
        v_sub_u32 v{T+2}, v{T+2}, v{GQ+3}
        v_lshlrev_b32 v{T+2}, 4, v{T+2}
        v_mul_u32_u24 v{RQ+t}, 208, v{T+3}
        v_add3_u32 v{RQ+t}, v{RQ+t}, v{T+2}, s48
        v_mul_u32_u24 v{GQ+t}, 2688, v{T+3}
        v_add_u32 v{GQ+t}, v{GQ+t}, v{T+2}
        """)
    for i in range(8):
        e.need_l(("zo", i))
        e(f"s_add_u32 s46, s44, {4*i*1792}")
        e.vm(f"buffer_store_dwordx4 v[{OB+4*i}:{OB+4*i+3}], v{GZ}, s[16:19], s46 offen")
    e(f"""
    s_mul_i32 s44, s29, 2688
    s_mul_i32 s45, s22, 192
    s_add_u32 s44, s44, s45
    s_add_u32 s44, s44, {WS_QKV}
    """)
    e.c("TS 9")
    OQ = 96
    for i in range(6):
        t, hi = i % 3, i // 3
        e.ds(f"ds_read_b128 v[{OQ+4*i}:{OQ+4*i+3}], v{RQ+t} offset:{hi*16*208}", ("qo", i))
    for i in range(6):
        t, hi = i % 3, i // 3
        e.need_l(("qo", i))
        e(f"s_add_u32 s46, s44, {hi*16*2688}")
        e.vm(f"buffer_store_dwordx4 v[{OQ+4*i}:{OQ+4*i+3}], v{GQ+t}, s[16:19], s46 offen")
    e.c("TS 10")
    e(f"{END}:")
    e("s_endpgm")
    return e

def gen_k1b():
    QL = 24 * 2048
    LDS = QL + 8 * 1024
    e = E("k1b_kernel", (256, 1, 1), (256, 1, 1), LDS, vgpr=160, sgpr=96)
    END = "L_end_k1b"
    L = 1
    e(f"""
    s_cmp_ge_u32 s2, 256
    s_cbranch_scc1 {END}
    """)
    srd(e, 16, K_WS, WS_SIZE)
    e(f"""
    v_lshrrev_b32 v2, 6, v0
    v_and_b32 v{L}, 63, v0
    v_readfirstlane_b32 s20, v2
    s_lshl_b32 s21, s2, 3                  ; s0
    v_lshlrev_b32 v2, 4, v{L}              ; lane*16
    s_waitcnt lgkmcnt(0)
    """)
    srd_fin(e, 16, WS_SIZE)
    for i in range(6):
        e(f"""
        s_add_u32 s22, s20, {4*i}
        s_add_u32 s23, s21, s22
        s_sub_u32 s23, s23, 14
        s_max_i32 s23, s23, 0
        s_mul_i32 s23, s23, 2688
        s_add_u32 s23, s23, {WS_QKV + 896}
        s_lshl_b32 m0, s22, 11
        s_nop 0
        """)
        e.vm("buffer_load_dwordx4 v2, s[16:19], s23 offen lds", "kv")
        e.vm("buffer_load_dwordx4 v2, s[16:19], s23 offen offset:1024 lds", "kv")
    for i in range(2):
        e(f"""
        s_lshl_b32 s22, s20, 1
        s_add_u32 s22, s22, {i}
        s_add_u32 s23, s21, s22
        s_mul_i32 s23, s23, 2688
        s_add_u32 s23, s23, {WS_QKV}
        s_lshl_b32 s22, s22, 10
        s_add_u32 m0, s22, {QL}
        s_nop 0
        """)
        e.vm("buffer_load_dwordx4 v2, s[16:19], s23 offen lds", "kv")
    e.c("TS 1")
    ZV = 16
    ST = 32
    e(f"""
    v_lshrrev_b32 v3, 5, v{L}
    v_and_b32 v4, 31, v{L}
    v_mul_u32_u24 v5, 1792, v3
    v_lshlrev_b32 v6, 4, v4
    v_add_u32 v5, v5, v6                   ; z voffset
    v_lshlrev_b32 v6, 6, v3
    s_lshl_b32 s22, s20, 1
    s_add_u32 s22, s22, s21
    s_mul_i32 s24, s22, 1792
    s_add_u32 s24, s24, {WS_Z2}
    s_lshl_b32 s25, s22, 6
    s_add_u32 s25, s25, {WS_ST}
    """)
    for i in range(4):
        e.vm(f"buffer_load_dwordx4 v[{ST+4*i}:{ST+4*i+3}], v6, s[16:19], s25 offen offset:{16*i}", "st")
    for i in range(4):
        e.vm(f"buffer_load_dwordx4 v[{ZV+4*i}:{ZV+4*i+3}], v5, s[16:19], s24 offen offset:{512*i}", "z")
    e.c("TS 2")
    e.need_v("st")
    e.c("TS 3")
    e(f"""
    v_pk_add_f32 v[{ST}:{ST+1}], v[{ST}:{ST+1}], v[{ST+2}:{ST+3}]
    v_pk_add_f32 v[{ST+4}:{ST+5}], v[{ST+4}:{ST+5}], v[{ST+6}:{ST+7}]
    v_pk_add_f32 v[{ST+8}:{ST+9}], v[{ST+8}:{ST+9}], v[{ST+10}:{ST+11}]
    v_pk_add_f32 v[{ST}:{ST+1}], v[{ST}:{ST+1}], v[{ST+4}:{ST+5}]
    v_pk_add_f32 v[{ST+8}:{ST+9}], v[{ST+8}:{ST+9}], v[{ST+12}:{ST+13}]
    v_pk_add_f32 v[{ST}:{ST+1}], v[{ST}:{ST+1}], v[{ST+8}:{ST+9}]
    v_mul_f32 v{ST}, {fbits(1.0/896)}, v{ST}
    v_mul_f32 v{ST+1}, {fbits(1.0/896)}, v{ST+1}
    v_fma_f32 v{ST+1}, -v{ST}, v{ST}, v{ST+1}
    v_max_f32 v{ST+1}, 0, v{ST+1}
    v_add_f32 v{ST+1}, {fbits(1e-5)}, v{ST+1}
    v_rsq_f32 v{ST+1}, v{ST+1}
    s_nop 0
    v_mul_f32 v{ST}, v{ST}, v{ST+1}
    v_sub_f32 v{ST}, 0, v{ST}              ; -mu*rho
    """)
    e.need_v("z")
    e.c("TS 4")
    for i in range(16):
        e(f"""
        v_lshlrev_b32 v{ST+2}, 16, v{ZV+i}
        v_and_b32 v{ST+3}, 0xffff0000, v{ZV+i}
        v_fma_f32 v{ST+2}, v{ST+2}, v{ST+1}, v{ST}
        v_fma_f32 v{ST+3}, v{ST+3}, v{ST+1}, v{ST}
        v_cvt_pk_bf16_f32 v{ZV+i}, v{ST+2}, v{ST+3}
        """)
    for i in range(3):
        e.vm(f"buffer_store_dwordx4 v[{ZV+4*i}:{ZV+4*i+3}], v5, s[16:19], s24 offen offset:{512*i}", "zs")
    e(f"""
    v_cmp_gt_u32 vcc, 16, v4
    s_and_saveexec_b64 s[26:27], vcc
    """)
    e.vm(f"buffer_store_dwordx4 v[{ZV+12}:{ZV+15}], v5, s[16:19], s24 offen offset:1536", "zs")
    e("s_mov_b64 exec, s[26:27]")
    e.c("TS 5")
    e.need_v("kv"); e("s_barrier")
    e.c("TS 6")
    Q, KK, VV, LG, O = 8, 16, 72, 128, 136
    e(f"""
    v_lshrrev_b32 v3, 5, v0                ; r (0..7)
    v_and_b32 v4, 31, v0
    v_mul_u32_u24 v4, 28, v4               ; 28*l32
    v_lshlrev_b32 v5, 10, v3
    v_add_u32 v5, v5, v4
    v_add_u32 v5, {QL}, v5                 ; q addr
    v_lshlrev_b32 v6, 11, v3
    v_add_u32 v6, v6, v4
    v_add_u32 v7, s21, v3
    """)
    e.need_v("zs")
    e.c("TS 7")
    for i in range(7): e.ds(f"ds_read_b32 v{Q+i}, v5 offset:{4*i}", "q")
    for w in range(8):
        for i in range(7): e.ds(f"ds_read_b32 v{KK+7*w+i}, v6 offset:{(14-2*w)*2048+4*i}", ("k", w))
    for w in range(8):
        for i in range(7): e.ds(f"ds_read_b32 v{VV+7*w+i}, v6 offset:{(14-2*w)*2048+896+4*i}", ("v", w))
    for w in range(8):
        e.need_l(("k", w))
        for i in range(7):
            e(f"v_dot2_f32_bf16 v{LG+w}, v{Q+i}, v{KK+7*w+i}, {'0' if i == 0 else f'v{LG+w}'}")
    e.nop(3)
    e.c("TS 8")
    SC = (28 ** -0.5) * 1.4426950408889634
    for w in range(8):
        e(f"v_add_f32_dpp v{KK+w}, v{LG+w}, v{LG+w} quad_perm:[1,0,3,2] row_mask:0xf bank_mask:0xf")
    e(f"s_mov_b32 s22, {fbits(SC)}\nv_mov_b32 v2, {fbits(-1e9*1.4426950408889634)}")
    for w in range(8):
        e(f"v_mul_f32 v{LG+w}, s22, v{KK+w}")
    for w in range(1, 8):
        e(f"v_cmp_le_u32 vcc, {2*w}, v7\ns_nop 1\nv_cndmask_b32 v{LG+w}, v2, v{LG+w}, vcc")
    e(f"""
    v_max3_f32 v3, v{LG}, v{LG+1}, v{LG+2}
    v_max3_f32 v3, v3, v{LG+3}, v{LG+4}
    v_max3_f32 v3, v3, v{LG+5}, v{LG+6}
    v_max_f32 v3, v3, v{LG+7}
    """)
    for w in range(8): e(f"v_sub_f32 v{LG+w}, v{LG+w}, v3")
    for w in range(8): e(f"v_exp_f32 v{LG+w}, v{LG+w}")
    e(f"""
    s_nop 0
    v_add_f32 v3, v{LG}, v{LG+1}
    v_add_f32 v5, v{LG+2}, v{LG+3}
    v_add_f32 v6, v{LG+4}, v{LG+5}
    v_add_f32 v2, v{LG+6}, v{LG+7}
    v_add_f32 v3, v3, v5
    v_add_f32 v6, v6, v2
    v_add_f32 v3, v3, v6
    v_rcp_f32 v3, v3
    s_nop 0
    """)
    for w in range(8): e(f"v_mul_f32 v{LG+w}, v{LG+w}, v3")
    for u in range(4): e(f"v_cvt_pk_bf16_f32 v{KK+u}, v{LG+2*u}, v{LG+2*u+1}")
    e("s_mov_b32 s22, 0x05040100\ns_mov_b32 s23, 0x07060302")
    TA = KK + 8
    for u in range(4):
        e.need_l([("v", 2*u), ("v", 2*u+1)])
        for i in range(7):
            a, b = VV + 7*(2*u) + i, VV + 7*(2*u+1) + i
            e(f"v_perm_b32 v{TA+2*i}, v{b}, v{a}, s22")
            e(f"v_perm_b32 v{TA+2*i+1}, v{b}, v{a}, s23")
        for i in range(14):
            e(f"v_dot2_f32_bf16 v{O+i}, v{TA+i}, v{KK+u}, {'0' if u == 0 else f'v{O+i}'}")
        e.nop(3)
    e.c("TS 9")
    for i in range(7): e(f"v_cvt_pk_bf16_f32 v{Q+i}, v{O+2*i}, v{O+2*i+1}")
    e(f"""
    v_mul_u32_u24 v3, 2688, v7
    v_add_u32 v3, v3, v4
    s_mov_b32 s22, {WS_HO + 1792}
    """)
    e.vm(f"buffer_store_dwordx4 v[{Q}:{Q+3}], v3, s[16:19], s22 offen")
    e.vm(f"buffer_store_dwordx3 v[{Q+4}:{Q+6}], v3, s[16:19], s22 offen offset:16")
    e(f"{END}:")
    e("s_endpgm")
    return e

def gen_k2():
    NSL = 6; SL = 24576; NCH = 32
    LDS = NSL * SL
    e = E("k2_kernel", (224, 1, 1), (256, 1, 1), LDS, vgpr=192, sgpr=96)
    END = "L_end_k2"
    L = 1
    V_AG, V_BG = 2, 4
    V_AA, V_BA = 8, 12
    V_BIAS = 20
    V_T = 24
    V_FR = 32
    V_ACC = 128
    e(f"""
    s_cmp_ge_u32 s2, 224
    s_cbranch_scc1 {END}
    """)
    srd(e, 4, K_WSP, SZ_WSP); srd(e, 8, K_BSP, SZ_BSP); srd(e, 16, K_WS, WS_SIZE)
    t0, t1, t2, t3 = V_T, V_T+1, V_T+2, V_T+3
    e(f"""
    v_lshrrev_b32 v2, 6, v0
    v_and_b32 v{L}, 63, v0
    v_readfirstlane_b32 s20, v2
    s_and_b32 s24, s2, 7
    s_lshr_b32 s25, s2, 3
    s_lshr_b32 s26, s24, 1
    s_lshl_b32 s26, s26, 2
    s_and_b32 s27, s25, 3
    s_add_u32 s21, s26, s27                ; tt
    s_and_b32 s26, s24, 1
    s_mul_i32 s26, s26, 7
    s_lshr_b32 s27, s25, 2
    s_add_u32 s22, s26, s27                ; ft
    s_lshl_b32 s26, s21, 7
    s_lshl_b32 s27, s20, 5
    s_add_u32 s29, s26, s27
    s_lshl_b32 s30, s29, 12
    s_lshl_b32 s26, s20, 4
    s_mul_i32 s31, s26, 1792
    s_lshl_b32 s27, s22, 7                 ; f0*2
    s_add_u32 s31, s31, s27
    s_add_u32 s31, s31, {WS_Z2}            ; z2n base
    s_lshl_b32 s33, s20, 11                ; M0 A: w*2048
    s_lshl_b32 s34, s20, 12
    s_add_u32 s34, s34, 8192               ; M0 B: 8192 + w*4096
    v_lshrrev_b32 v{t0}, 3, v{L}
    v_lshrrev_b32 v{t1}, 4, v{L}
    v_and_b32 v{t2}, 7, v{L}
    v_and_b32 v{t3}, 1, v{t1}
    v_lshlrev_b32 v{t3}, 2, v{t3}
    v_xor_b32 v{t3}, v{t2}, v{t3}
    v_lshlrev_b32 v{t3}, 4, v{t3}
    v_mul_u32_u24 v{V_AG}, 1792, v{t0}
    v_add_u32 v{V_AG}, v{V_AG}, v{t3}
    v_add_u32 v{V_AG+1}, {8*1792-1024}, v{V_AG}
    v_lshlrev_b32 v{t0}, 12, v{t0}
    """)
    for i in range(4):
        e(f"""
        v_add_u32 v{t3}, {4*i}, v{t1}
        v_and_b32 v{t3}, 7, v{t3}
        v_xor_b32 v{t3}, v{t2}, v{t3}
        v_lshlrev_b32 v{t3}, 4, v{t3}
        v_add_u32 v{t3}, v{t0}, v{t3}
        v_add_u32 v{V_BG+i}, {i*(8*4096-1024)}, v{t3}
        """)
    e("s_waitcnt lgkmcnt(0)")
    srd_fin(e, 4, SZ_WSP); srd_fin(e, 8, SZ_BSP); srd_fin(e, 16, WS_SIZE)

    def dma_ops(c):
        slot = c % NSL
        ops = []
        if c < NCH:
            def a_pre():
                e(f"s_add_u32 m0, s33, {slot*SL}")
                e(f"s_add_u32 s36, s31, {c*64*1792}")
            ops.append(a_pre)
            for i in range(2):
                ops.append(lambda i=i: e.vm(f"buffer_load_dwordx4 v{V_AG+i}, s[16:19], s36 offen offset:{1024*i} lds", ("dma", c)))
            def b_pre():
                e(f"s_add_u32 m0, s34, {slot*SL}")
                e(f"s_add_u32 s37, s30, {c*128}")
            ops.append(b_pre)
            for i in range(4):
                ops.append(lambda i=i: e.vm(f"buffer_load_dwordx4 v{V_BG+i}, s[4:7], s37 offen offset:{1024*i} lds", ("dma", c)))
        elif c == NCH:
            def z_pre():
                e(f"""
                v_lshrrev_b32 v{t0}, 3, v{L}
                v_lshrrev_b32 v{t1}, 4, v{L}
                v_and_b32 v{t2}, 7, v{L}
                v_mul_u32_u24 v{t0}, 1792, v{t0}
                """)
                for i in range(4):
                    e(f"""
                    v_add_u32 v{t3}, {4*i}, v{t1}
                    v_and_b32 v{t3}, 7, v{t3}
                    v_xor_b32 v{t3}, v{t2}, v{t3}
                    v_lshlrev_b32 v{t3}, 4, v{t3}
                    v_add_u32 v{t3}, v{t0}, v{t3}
                    v_add_u32 v{V_BG+i}, {i*(8*1792-1024)}, v{t3}
                    """)
                e(f"""
                s_add_u32 m0, s34, {slot*SL}
                s_mul_i32 s37, s29, 1792
                s_lshl_b32 s38, s22, 7
                s_add_u32 s37, s37, s38
                s_add_u32 s37, s37, {WS_Z1}
                """)
            ops.append(z_pre)
            for i in range(4):
                ops.append(lambda i=i: e.vm(f"buffer_load_dwordx4 v{V_BG+i}, s[16:19], s37 offen offset:{1024*i} lds", ("dma", c)))
        return ops
    for c in range(NSL):
        for op in dma_ops(c): op()
    e.c("TS 1")
    e(f"""
    v_and_b32 v{t0}, 31, v{L}
    v_lshlrev_b32 v{t0}, 1, v{t0}
    s_lshl_b32 s38, s29, 1
    """)
    e.vm(f"buffer_load_ushort v{V_BIAS}, v{t0}, s[8:11], s38 offen", "bias")
    n_, h_, r_, ch_, u_ = V_T, V_T+1, V_T+2, V_T+3, V_T+4
    e(f"""
    v_and_b32 v{n_}, 31, v{L}
    v_lshrrev_b32 v{h_}, 5, v{L}
    v_and_b32 v{r_}, 15, v{L}
    v_and_b32 v{u_}, 3, v{r_}
    v_lshlrev_b32 v{u_}, 3, v{u_}          ; quad*8
    v_lshrrev_b32 v{r_}, 2, v{r_}          ; r
    v_lshrrev_b32 v{ch_}, 4, v{L}
    v_and_b32 v{ch_}, 1, v{ch_}
    v_lshlrev_b32 v{ch_}, 5, v{ch_}
    v_add_u32 v{ch_}, v{ch_}, v{u_}        ; colhalf*32+quad*8
    v_lshlrev_b32 v{u_}, 3, v{h_}
    v_add_u32 v{u_}, v{u_}, v{r_}
    v_lshlrev_b32 v{u_}, 7, v{u_}          ; (8h+r)*128
    v_add_u32 v{ch_}, v{ch_}, v{u_}
    v_lshrrev_b32 v{r_}, 1, v{r_}          ; (r>>1)&1
    v_lshlrev_b32 v{r_}, 6, v{r_}
    v_add_u32 v{V_AA}, v{ch_}, v{r_}       ; b=0: (0 ^ x)<<6
    v_xor_b32 v{r_}, 64, v{r_}
    v_add_u32 v{V_AA+1}, v{ch_}, v{r_}     ; b=1
    v_add_u32 v{V_AA+2}, {3*SL}, v{V_AA}
    v_add_u32 v{V_AA+3}, {3*SL}, v{V_AA+1}
    s_lshl_b32 s39, s20, 12
    s_add_u32 s39, s39, 8192
    v_lshrrev_b32 v{u_}, 1, v{n_}
    v_and_b32 v{u_}, 7, v{u_}
    v_lshlrev_b32 v{ch_}, 7, v{n_}
    v_add_u32 v{ch_}, s39, v{ch_}
    """)
    for g in range(4):
        e(f"""
        v_add_u32 v{r_}, {2*g}, v{h_}
        v_xor_b32 v{r_}, v{r_}, v{u_}
        v_lshlrev_b32 v{r_}, 4, v{r_}
        v_add_u32 v{V_BA+g}, v{ch_}, v{r_}
        v_add_u32 v{V_BA+4+g}, {3*SL}, v{V_BA+g}
        """)
    def read_ops(c):
        slot = c % NSL; st = slot // 3; so = (slot % 3) * SL; buf = c % 2
        ops = []
        for g in range(4):
            fb = V_FR + 48 * buf + 12 * g
            ops.append(lambda g=g, fb=fb: e.ds(f"ds_read_b128 v[{fb}:{fb+3}], v{V_BA+4*st+g} offset:{so}", ("fr", c)))
            for b in range(2):
                for t in range(2):
                    d = fb + 4 + 4 * b + 2 * t
                    ops.append(lambda d=d, b=b, t=t, g=g: e.ds(f"ds_read_b64_tr_b16 v[{d}:{d+1}], v{V_AA+2*st+b} offset:{so + (16*g+4*t)*128}", ("fr", c)))
        return ops
    e.c("TS 2")
    e.need_v(("dma", 0)); e("s_barrier")
    e.c("TS 3")
    for op in read_ops(0): op()
    for c in range(NCH):
        if c in (4, 8, 16, 24): e.c(f"TS {4 + (4, 8, 16, 24).index(c)}")
        buf = c % 2
        e.need_l(("fr", c))
        if c + 1 < NCH:
            e.need_v(("dma", c + 1))
        e("s_barrier")
        mains = []
        for g in range(4):
            for b in range(2):
                fb = V_FR + 48 * buf + 12 * g
                d = V_ACC + 16 * b
                cin = "0" if (c == 0 and g == 0) else f"v[{d}:{d+15}]"
                mains.append(lambda fb=fb, b=b, d=d, cin=cin: e(f"v_mfma_f32_32x32x16_bf16 v[{d}:{d+15}], v[{fb+4+4*b}:{fb+7+4*b}], v[{fb}:{fb+3}], {cin}"))
        fill = (read_ops(c + 1) if c + 1 < NCH else []) + dma_ops(c + NSL)
        interleave(e, mains, fill)
    e.c("TS 8")
    zslot = (NCH % NSL) * SL
    e.need_v([("dma", NCH), "bias"])
    T = V_T
    e(f"""
    v_and_b32 v{T}, 31, v{L}
    v_lshrrev_b32 v{T+1}, 5, v{L}
    v_lshrrev_b32 v{T+2}, 1, v{T}
    v_and_b32 v{T+2}, 7, v{T+2}
    v_lshlrev_b32 v{T+2}, 4, v{T+2}        ; f<<4
    v_lshlrev_b32 v{T+3}, 7, v{T}          ; n*128
    v_lshlrev_b32 v{T+4}, 3, v{T+1}        ; 8h
    v_add3_u32 v{T+2}, v{T+2}, v{T+3}, v{T+4}
    s_add_u32 s39, s34, {zslot}
    v_add_u32 v{T+2}, s39, v{T+2}          ; base
    v_lshlrev_b32 v{V_BIAS}, 16, v{V_BIAS}
    v_mov_b32 v{V_BIAS+1}, v{V_BIAS}
    """)
    e.c("TS 9")
    Z = V_FR
    for p in range(8):
        e(f"v_xor_b32 v{T+5}, {p*16}, v{T+2}")
        e.ds(f"ds_read_b64 v[{Z+2*p}:{Z+2*p+1}], v{T+5}", ("z1", p))
    wslot = ((NCH + 1) % NSL) * SL
    e(f"""
    s_mul_i32 s39, s20, {32*144}
    s_add_u32 s39, s39, {wslot}
    v_mul_u32_u24 v{T+6}, 144, v{T}
    v_add3_u32 v{T+6}, v{T+6}, v{T+4}, s39
    """)
    U = V_FR + 16
    for p in range(8):
        b, q = divmod(p, 4)
        acc = V_ACC + 16 * b + 4 * q
        e.need_l(("z1", p))
        e(f"""
        v_pk_add_f32 v[{acc}:{acc+1}], v[{acc}:{acc+1}], v[{V_BIAS}:{V_BIAS+1}]
        v_pk_add_f32 v[{acc+2}:{acc+3}], v[{acc+2}:{acc+3}], v[{V_BIAS}:{V_BIAS+1}]
        v_lshlrev_b32 v{U}, 16, v{Z+2*p}
        v_and_b32 v{U+1}, 0xffff0000, v{Z+2*p}
        v_lshlrev_b32 v{U+2}, 16, v{Z+2*p+1}
        v_and_b32 v{U+3}, 0xffff0000, v{Z+2*p+1}
        v_pk_mul_f32 v[{acc}:{acc+1}], v[{acc}:{acc+1}], v[{U}:{U+1}]
        v_pk_mul_f32 v[{acc+2}:{acc+3}], v[{acc+2}:{acc+3}], v[{U+2}:{U+3}]
        v_cvt_pk_bf16_f32 v{U+4}, v{acc}, v{acc+1}
        v_cvt_pk_bf16_f32 v{U+5}, v{acc+2}, v{acc+3}
        """)
        e.ds(f"ds_write_b64 v{T+6}, v[{U+4}:{U+5}] offset:{p*16}")
    e.wait_l0()
    e(f"""
    v_lshrrev_b32 v{T}, 3, v{L}
    v_and_b32 v{T+1}, 7, v{L}
    v_lshlrev_b32 v{T+1}, 4, v{T+1}
    v_mul_u32_u24 v{T+2}, 144, v{T}
    v_add3_u32 v{T+2}, v{T+2}, v{T+1}, s39
    v_mul_u32_u24 v{T+3}, 2688, v{T}
    v_add_u32 v{T+3}, v{T+3}, v{T+1}
    s_mul_i32 s40, s29, 2688
    s_lshl_b32 s41, s22, 7
    s_add_u32 s40, s40, s41
    s_add_u32 s40, s40, {WS_HO}
    """)
    for i in range(4):
        e.ds(f"ds_read_b128 v[{Z+4*i}:{Z+4*i+3}], v{T+2} offset:{8*i*144}", ("o", i))
    for i in range(4):
        e.need_l(("o", i))
        e(f"s_add_u32 s41, s40, {8*i*2688}")
        e.vm(f"buffer_store_dwordx4 v[{Z+4*i}:{Z+4*i+3}], v{T+3}, s[16:19], s41 offen")
    e(f"{END}:")
    e("s_endpgm")
    return e

def gen_k3():
    NSL = 8; SL = 16384; NCH = 21
    XL = NSL * SL
    LDS = XL + 8192
    e = E("k3_kernel", (224, 1, 1), (256, 1, 1), LDS, vgpr=128, sgpr=96)
    END = "L_end_k3"
    L = 1
    V_AG, V_BG = 2, 4
    V_AA, V_BA = 8, 12
    V_T = 24
    V_FR = 32
    V_ACC = 96
    e(f"""
    s_cmp_ge_u32 s2, 224
    s_cbranch_scc1 {END}
    """)
    srd(e, 4, K_WOUT, SZ_WOUT); srd(e, 8, K_WO, SZ_WO); srd(e, 12, K_X, SZ_X); srd(e, 16, K_WS, WS_SIZE); srd(e, 44, K_OUT, SZ_X)
    t0, t1, t2, t3 = V_T, V_T+1, V_T+2, V_T+3
    e(f"""
    v_lshrrev_b32 v2, 6, v0
    v_and_b32 v{L}, 63, v0
    v_readfirstlane_b32 s20, v2
    s_and_b32 s24, s2, 7
    s_lshr_b32 s25, s2, 3
    s_lshl_b32 s26, s24, 2
    s_and_b32 s27, s25, 3
    s_add_u32 s21, s26, s27
    s_lshr_b32 s22, s25, 2                 ; nt
    s_lshl_b32 s28, s21, 6                 ; t0
    s_lshl_b32 s26, s20, 4                 ; 16 w
    s_add_u32 s29, s28, s26                ; t0 + 16 w
    s_mul_i32 s30, s29, 2688
    s_add_u32 s30, s30, {WS_HO}            ; B base
    s_mul_i32 s31, s26, 896
    s_lshl_b32 s27, s22, 7
    s_add_u32 s31, s31, s27
    s_lshl_b32 s33, s20, 11                ; M0 A: w*2048
    s_add_u32 s34, s33, 8192               ; M0 B
    v_lshrrev_b32 v{t0}, 3, v{L}
    v_lshrrev_b32 v{t1}, 4, v{L}
    v_and_b32 v{t2}, 7, v{L}
    v_and_b32 v{t3}, 1, v{t1}
    v_lshlrev_b32 v{t3}, 2, v{t3}
    v_xor_b32 v{t3}, v{t2}, v{t3}
    v_lshlrev_b32 v{t3}, 4, v{t3}
    v_mul_u32_u24 v{V_AG}, 896, v{t0}
    v_add_u32 v{V_AG}, v{V_AG}, v{t3}
    v_add_u32 v{V_AG+1}, {8*896-1024}, v{V_AG}
    """)
    V_XG = 6
    for i in range(2):
        e(f"""
        v_add_u32 v{t3}, {4*i}, v{t1}
        v_and_b32 v{t3}, 7, v{t3}
        v_xor_b32 v{t3}, v{t2}, v{t3}
        v_lshlrev_b32 v{t3}, 4, v{t3}
        v_mul_u32_u24 v{V_BG+i}, 2688, v{t0}
        v_add_u32 v{V_BG+i}, v{V_BG+i}, v{t3}
        v_add_u32 v{V_BG+i}, {i*(8*2688-1024)}, v{V_BG+i}
        v_mul_u32_u24 v{V_XG+i}, 896, v{t0}
        v_add_u32 v{V_XG+i}, v{V_XG+i}, v{t3}
        v_add_u32 v{V_XG+i}, {i*(8*896-1024)}, v{V_XG+i}
        """)
    e("s_waitcnt lgkmcnt(0)")
    srd_fin(e, 4, SZ_WOUT); srd_fin(e, 8, SZ_WO); srd_fin(e, 12, SZ_X); srd_fin(e, 16, WS_SIZE); srd_fin(e, 44, SZ_X)
    def dma_ops(c):
        if c >= NCH: return []
        slot = c % NSL
        ops = []
        sA = "s[4:7]" if c < 14 else "s[8:11]"
        ck = c if c < 14 else c - 14
        def a_pre():
            e(f"s_add_u32 m0, s33, {slot*SL}")
            e(f"s_add_u32 s36, s31, {ck*64*896}")
        ops.append(a_pre)
        for i in range(2):
            ops.append(lambda i=i: e.vm(f"buffer_load_dwordx4 v{V_AG+i}, {sA}, s36 offen offset:{1024*i} lds", ("dma", c)))
        def b_pre():
            e(f"s_add_u32 m0, s34, {slot*SL}")
            e(f"s_add_u32 s37, s30, {c*128}")
        ops.append(b_pre)
        for i in range(2):
            ops.append(lambda i=i: e.vm(f"buffer_load_dwordx4 v{V_BG+i}, s[16:19], s37 offen offset:{1024*i} lds", ("dma", c)))
        return ops
    for c in range(NSL):
        for op in dma_ops(c): op()
    e.c("TS 1")
    e(f"""
    s_add_u32 m0, s33, {XL}
    s_mul_i32 s36, s29, 896
    s_lshl_b32 s37, s22, 7
    s_add_u32 s36, s36, s37
    """)
    for i in range(2):
        e.vm(f"buffer_load_dwordx4 v{V_XG+i}, s[12:15], s36 offen offset:{1024*i} lds", "x")
    n_, h_, r_, ch_, u_ = V_T, V_T+1, V_T+2, V_T+3, V_T+4
    e(f"""
    s_and_b32 s40, s20, 1                  ; tb
    s_lshr_b32 s41, s20, 1                 ; nb
    v_and_b32 v{n_}, 31, v{L}
    v_lshrrev_b32 v{h_}, 5, v{L}
    v_and_b32 v{r_}, 15, v{L}
    v_and_b32 v{u_}, 3, v{r_}
    v_lshlrev_b32 v{u_}, 3, v{u_}
    v_lshrrev_b32 v{r_}, 2, v{r_}
    v_lshrrev_b32 v{ch_}, 4, v{L}
    v_and_b32 v{ch_}, 1, v{ch_}
    v_lshlrev_b32 v{ch_}, 5, v{ch_}
    v_add_u32 v{ch_}, v{ch_}, v{u_}
    v_lshlrev_b32 v{u_}, 3, v{h_}
    v_add_u32 v{u_}, v{u_}, v{r_}
    v_lshlrev_b32 v{u_}, 7, v{u_}
    v_add_u32 v{ch_}, v{ch_}, v{u_}
    v_lshrrev_b32 v{r_}, 1, v{r_}
    v_xor_b32 v{r_}, s41, v{r_}            ; nb ^ ((r>>1)&1)
    v_lshlrev_b32 v{r_}, 6, v{r_}
    v_add_u32 v{V_AA}, v{ch_}, v{r_}
    v_add_u32 v{V_AA+1}, {4*SL}, v{V_AA}
    s_lshl_b32 s39, s40, 12
    s_add_u32 s39, s39, 8192
    v_lshrrev_b32 v{u_}, 1, v{n_}
    v_and_b32 v{u_}, 7, v{u_}
    v_lshlrev_b32 v{ch_}, 7, v{n_}
    v_add_u32 v{ch_}, s39, v{ch_}
    """)
    for g in range(4):
        e(f"""
        v_add_u32 v{r_}, {2*g}, v{h_}
        v_xor_b32 v{r_}, v{r_}, v{u_}
        v_lshlrev_b32 v{r_}, 4, v{r_}
        v_add_u32 v{V_BA+g}, v{ch_}, v{r_}
        v_add_u32 v{V_BA+4+g}, {4*SL}, v{V_BA+g}
        """)
    def read_ops(c):
        slot = c % NSL; st = slot // 4; so = (slot % 4) * SL; buf = c % 2
        ops = []
        for g in range(4):
            fb = V_FR + 32 * buf + 8 * g
            ops.append(lambda g=g, fb=fb: e.ds(f"ds_read_b128 v[{fb}:{fb+3}], v{V_BA+4*st+g} offset:{so}", ("fr", c)))
            for t in range(2):
                d = fb + 4 + 2 * t
                ops.append(lambda d=d, t=t, g=g: e.ds(f"ds_read_b64_tr_b16 v[{d}:{d+1}], v{V_AA+st} offset:{so + (16*g+4*t)*128}", ("fr", c)))
        return ops
    e.c("TS 2")
    e.need_v(("dma", 0)); e("s_barrier")
    e.c("TS 3")
    for op in read_ops(0): op()
    for c in range(NCH):
        if c in (4, 8, 13, 17): e.c(f"TS {4 + (4, 8, 13, 17).index(c)}")
        buf = c % 2
        e.need_l(("fr", c))
        if c + 1 < NCH: e.need_v(("dma", c + 1))
        e("s_barrier")
        mains = []
        for g in range(4):
            fb = V_FR + 32 * buf + 8 * g
            cin = "0" if (c == 0 and g == 0) else f"v[{V_ACC}:{V_ACC+15}]"
            mains.append(lambda fb=fb, cin=cin: e(f"v_mfma_f32_32x32x16_bf16 v[{V_ACC}:{V_ACC+15}], v[{fb+4}:{fb+7}], v[{fb}:{fb+3}], {cin}"))
        fill = (read_ops(c + 1) if c + 1 < NCH else []) + dma_ops(c + NSL)
        interleave(e, mains, fill)
    e.c("TS 8")
    e.need_v("x"); e("s_barrier")
    T = V_T
    e(f"""
    v_and_b32 v{T}, 31, v{L}
    v_lshrrev_b32 v{T+1}, 5, v{L}
    s_lshl_b32 s39, s40, 5
    v_add_u32 v{T+7}, s39, v{T}
    v_lshrrev_b32 v{T+2}, 1, v{T}
    v_and_b32 v{T+2}, 7, v{T+2}
    v_lshlrev_b32 v{T+2}, 4, v{T+2}
    v_lshlrev_b32 v{T+3}, 7, v{T+7}
    v_lshlrev_b32 v{T+4}, 3, v{T+1}        ; 8h
    v_add3_u32 v{T+2}, v{T+2}, v{T+3}, v{T+4}
    v_add_u32 v{T+2}, {XL}, v{T+2}
    s_lshl_b32 s42, s41, 6
    """)
    Z = V_FR
    for q in range(4):
        e(f"""
        s_add_u32 s43, s42, {q*16}
        v_xor_b32 v{T+5}, s43, v{T+2}
        """)
        e.ds(f"ds_read_b64 v[{Z+2*q}:{Z+2*q+1}], v{T+5}", ("x", q))
    e(f"""
    v_mul_u32_u24 v{T+6}, 144, v{T+7}
    v_add3_u32 v{T+6}, v{T+6}, v{T+4}, s42
    """)
    U = V_FR + 16
    for q in range(4):
        acc = V_ACC + 4 * q
        e.need_l(("x", q))
        e(f"""
        v_lshlrev_b32 v{U}, 16, v{Z+2*q}
        v_and_b32 v{U+1}, 0xffff0000, v{Z+2*q}
        v_lshlrev_b32 v{U+2}, 16, v{Z+2*q+1}
        v_and_b32 v{U+3}, 0xffff0000, v{Z+2*q+1}
        v_pk_add_f32 v[{acc}:{acc+1}], v[{acc}:{acc+1}], v[{U}:{U+1}]
        v_pk_add_f32 v[{acc+2}:{acc+3}], v[{acc+2}:{acc+3}], v[{U+2}:{U+3}]
        v_cvt_pk_bf16_f32 v{U+4}, v{acc}, v{acc+1}
        v_cvt_pk_bf16_f32 v{U+5}, v{acc+2}, v{acc+3}
        """)
        e.ds(f"ds_write_b64 v{T+6}, v[{U+4}:{U+5}] offset:{q*16}")
    e.wait_l0(); e("s_barrier")
    e(f"""
    v_lshrrev_b32 v{T}, 3, v{L}
    s_lshl_b32 s39, s20, 4
    v_add_u32 v{T}, s39, v{T}
    v_and_b32 v{T+1}, 7, v{L}
    v_lshlrev_b32 v{T+1}, 4, v{T+1}
    v_mul_u32_u24 v{T+2}, 144, v{T}
    v_add_u32 v{T+2}, v{T+2}, v{T+1}
    v_mul_u32_u24 v{T+3}, 896, v{T}
    v_add_u32 v{T+3}, v{T+3}, v{T+1}
    s_mul_i32 s40, s28, 896
    s_lshl_b32 s41, s22, 7
    s_add_u32 s40, s40, s41
    """)
    for i in range(2):
        e.ds(f"ds_read_b128 v[{Z+4*i}:{Z+4*i+3}], v{T+2} offset:{8*i*144}", ("o", i))
    for i in range(2):
        e.need_l(("o", i))
        e(f"s_add_u32 s41, s40, {8*i*896}")
        e.vm(f"buffer_store_dwordx4 v[{Z+4*i}:{Z+4*i+3}], v{T+3}, s[44:47], s41 offen")
    e(f"{END}:")
    e("s_endpgm")
    return e

HEADER = open("parallel_sum__sliding_local_dilated__mixer_gmlp__prompt.s.ref").read().split("; Override launch")[0]

def kernels(): return [gen_k1(), gen_k1b(), gen_k2(), gen_k3()]

if __name__ == "__main__":
    out = sys.argv[1] if len(sys.argv) > 1 else "v1.s"
    ks = [gen_k1(), gen_k1b(), gen_k2(), gen_k3()]
    open(out, "w").write(build(ks, header=HEADER))
    print("wrote", out)
```

```python
import sys
from g2common import *
import g3k1, g3k2
from g3k1 import *
from g3k2 import *
import hz

def start(e, end_label, aux_label=None, nmain=224, nwg=256, srds=(), dbg=False, pf=None):
    e(f"s_cmp_ge_u32 s2, {nwg}\ns_cbranch_scc1 {end_label}")
    e.c("TS_START")
    load_srds(e, srds, dbg=dbg)
    wave_ids(e)
    if pf: code_prefetch(e, e.name, end_label, e.block[0], pf[0], pf[1])
    if aux_label: e(f"s_cmp_ge_u32 s2, {nmain}\ns_cbranch_scc1 {aux_label}")

OPT = {}
def gen_k1():
    e = E("k1_kernel", (256, 1, 1), (512, 1, 1), K1_LDS, vgpr=256, sgpr=96, accum=144)
    start(e, "L_end_k1", "L_aux_k1", srds=["x", "win", "wqkv", "ws"], dbg=True, pf=(64, 70))
    tile_ids(e)
    k1_main(e, fused=False, opt=OPT.get("k1", {}))
    e("s_branch L_fin_k1")
    e("L_aux_k1:")
    e.lq, e.vq = [], []
    k1_aux(e)
    e("s_waitcnt vmcnt(0)")
    e("L_fin_k1:")
    e("L_end_k1:")
    e("s_endpgm")
    return e
def gen_k2():
    e = E("k2_kernel", (256, 1, 1), (512, 1, 1), K2_LDS, vgpr=256, sgpr=96, accum=256)
    start(e, "L_end_k2", "L_aux_k2", srds=["wsp", "ws", "bsp"], pf=(120, 124))
    tile_ids(e)
    k2_main(e, fused=False, opt=OPT.get("k2", {}))
    e("s_branch L_fin_k2")
    e("L_aux_k2:")
    e.lq, e.vq = [], []
    if not OPT.get("noattn"): k2_attn(e, opt=OPT.get("k2", {}))
    e("L_fin_k2:")
    e("L_end_k2:")
    e("s_endpgm")
    return e

def kernels():
    ks = [gen_k1(), gen_k2()]
    if OPT.get("k3", 1):
        try:
            import g3k3
            ks.append(g3k3.gen_k3(start, OPT.get("k3o", {})))
        except ImportError: pass
    for k in ks:
        n, pend = hz.fix_kernel(k, verbose=OPT.get("hzv", True))
        print(k.name, "pads", n, "pend", len(pend), file=sys.stderr)
    return ks
if __name__ == "__main__":
    out = sys.argv[1] if len(sys.argv) > 1 else "n4.s"
    if len(sys.argv) > 2: OPT.update(eval(sys.argv[2]))
    open(out, "w").write(build(kernels(), header=HEADER))
    print("wrote", out)
```

```python
import sys
from gen import *
from pf import code_prefetch
def patch(e, vdst, voff, helper=False, own=True):
    lines = e.lines
    i0 = next(i for i, l in enumerate(lines) if "s_cbranch_scc1 L_end" in l)
    t = E(e.name, e.grid, e.block, e.lds); t._lbl = 100
    end = [l for l in lines if l.startswith("L_end") and l.endswith(":")][0][:-1]
    if own:
        code_prefetch(t, e.name, end, 256, vdst, voff)
    pre = t.lines
    if helper:
        lines[i0] = lines[i0].replace("L_end_k1", "L_help_k1")
        h = E(e.name, e.grid, e.block, e.lds); h._lbl = 200
        h(f"""
        s_branch L_end_k1
        L_help_k1:
        s_cmp_ge_u32 s2, 256
        s_cbranch_scc1 L_end_k1
        s_load_dwordx2 s[4:5], s[0:1], {K_WSP}
        s_load_dwordx2 s[8:9], s[0:1], {K_WOUT}
        s_load_dwordx2 s[12:13], s[0:1], {K_WO}
        s_sub_u32 s20, s2, 224
        s_mov_b32 s6, {SZ_WSP}
        s_mov_b32 s7, 0x20000
        s_mov_b32 s10, {SZ_WOUT}
        s_mov_b32 s11, 0x20000
        s_mov_b32 s14, {SZ_WO}
        s_mov_b32 s15, 0x20000
        v_lshlrev_b32 v2, {MODE_SH}, v0
        s_lshl_b32 s21, s20, 18
        s_waitcnt lgkmcnt(0)
        """)
        stride = 256 << MODE_SH
        for i in range((256 * 1024) // stride):
            h(f"s_add_u32 s22, s21, {i*stride}")
            h(f"buffer_load_dword v{8+i%16}, v2, s[4:7], s22 offen")
        h(f"s_mul_i32 s21, s20, {SZ_WOUT//32}")
        for i in range(-(-(SZ_WOUT//32) // stride)):
            h(f"s_add_u32 s22, s21, {i*stride}")
            h(f"buffer_load_dword v{8+i%16}, v2, s[8:11], s22 offen")
        h(f"s_mul_i32 s21, s20, {SZ_WO//32}")
        for i in range(-(-(SZ_WO//32) // stride)):
            h(f"s_add_u32 s22, s21, {i*stride}")
            h(f"buffer_load_dword v{8+i%16}, v2, s[12:15], s22 offen")
        if CODE_ALL:
            h(f"""
            s_getpc_b64 s[30:31]
            L_hp:
            s_sub_u32 s30, s30, L_hp-k1_kernel
            s_subb_u32 s31, s31, 0
            s_mov_b32 s32, L_end_k3-k1_kernel-16
            s_lshl_b32 s33, s20, 12
            v_lshlrev_b32 v3, 4, v0
            v_add_u32 v3, s33, v3
            v_cmp_ge_u32 vcc, s32, v3
            s_and_b64 exec, exec, vcc
            s_cbranch_execz L_hp_done
            global_load_dwordx4 v[28:31], v3, s[30:31]
            L_hp_done:
            s_mov_b64 exec, -1
            """)
        h("s_waitcnt vmcnt(0)")
        iend = next(i for i, l in enumerate(lines) if l.startswith("L_end") and l.endswith(":"))
        lines[iend:iend] = h.lines
        e.grid = (256, 1, 1)
    lines[i0+1:i0+1] = pre
MODE_SH = 7; CODE_ALL = True
def kernels(own=True, helper=True):
    ks = [gen_k1(), gen_k1b(), gen_k2(), gen_k3()]
    patch(ks[0], 200, 60, helper=helper, own=own)
    patch(ks[1], 152, 60, own=own)
    patch(ks[2], 140, 30, own=own)
    patch(ks[3], 100, 30, own=own)
    return ks
if __name__ == "__main__":
    import gen_pf as G
    for name, own, helper, sh in (("pf_a", True, False, 7), ("pf_b", False, True, 7), ("pf_c", True, True, 7), ("pf_d", True, True, 6)):
        MODE_SH = sh
        open(f"{name}.s", "w").write(build(kernels(own, helper), header=HEADER))
```

```python
import re, sys
def regs(tok):
    tok = tok.strip()
    if tok.startswith("-"): tok = tok[1:]
    if tok.startswith("|"): tok = tok.strip("|")
    m = re.fullmatch(r"([vas])(\d+)", tok)
    if m: return [(m.group(1), int(m.group(2)))]
    m = re.fullmatch(r"([vas])\[(\d+):(\d+)\]", tok)
    if m: return [(m.group(1), i) for i in range(int(m.group(2)), int(m.group(3)) + 1)]
    if tok in ("vcc",): return [("s", "vcc_lo"), ("s", "vcc_hi")]
    if tok in ("vcc_lo", "vcc_hi", "m0", "exec_lo", "exec_hi"): return [("s", tok)]
    if tok == "exec": return [("s", "exec_lo"), ("s", "exec_hi")]
    return []
TRANS = ("v_exp_", "v_log_", "v_rcp_", "v_rsq_", "v_sqrt_", "v_sin_", "v_cos_")
class I:
    def __init__(s, text, ln):
        s.text, s.ln = text, ln
        t = text.split(";")[0].strip()
        p = t.split(None, 1)
        s.op = p[0]
        rest = p[1] if len(p) > 1 else ""
        toks = []
        for part in rest.split(","):
            part = part.strip()
            if not part: continue
            w = part.split()
            toks.append(w[0]); toks += [("MOD", x) for x in w[1:]]
        s.mods = [t[1] for t in toks if isinstance(t, tuple)]
        s.ops = [t for t in toks if not isinstance(t, tuple)]
        op = s.op
        s.mfma = op.startswith("v_mfma")
        s.valu = op.startswith("v_") and not s.mfma
        s.ds = op.startswith("ds_")
        s.vmem = op.startswith(("buffer_", "global_", "flat_"))
        s.salu = op.startswith("s_")
        s.trans = op.startswith(TRANS)
        s.dl = op.startswith("v_dot")
        s.lds_dma = s.vmem and ("lds" in s.mods or "lds" in s.ops)
        R = [regs(o) for o in s.ops]
        s.w, s.r = [], []
        if s.mfma:
            s.w = R[0]; s.A, s.B, s.C = R[1], R[2], R[3]; s.r = R[1] + R[2] + R[3]
            s.passes = 8 if "32x32" in op else 4
        elif s.valu:
            if op.startswith("v_cmp"):
                s.w = R[0]; s.r = sum(R[1:], [])
            elif op.startswith("v_permlane"):
                s.w = R[0] + R[1]; s.r = R[0] + R[1]
            elif op.startswith(("v_dot2c", "v_fmac", "v_mac", "v_pk_fmac")):
                s.w = R[0]; s.r = sum(R, [])
            elif op.startswith(("v_add_co", "v_sub_co", "v_addc_co", "v_subb_co")):
                s.w = R[0] + R[1]; s.r = sum(R[2:], [])
            else:
                s.w = R[0]; s.r = sum(R[1:], [])
                if op.startswith("v_cndmask") and len(s.ops) == 3: s.r += regs("vcc")
                if op.startswith("v_writelane"): s.r += R[0]
        elif s.ds:
            if op.startswith(("ds_read", "ds_bpermute", "ds_permute", "ds_swizzle")): s.w = R[0]; s.r = sum(R[1:], [])
            else: s.r = sum(R, [])
        elif s.vmem:
            if "load" in op and not s.lds_dma: s.w = R[0]; s.r = sum(R[1:], [])
            elif "atomic" in op and ("glc" in s.mods or "sc0" in s.mods): s.w = R[0]; s.r = sum(R, [])
            else: s.r = sum(R, [])
            if s.lds_dma: s.r += [("s", "m0")]
        elif s.salu:
            if op.startswith(("s_cmp", "s_cbranch", "s_branch", "s_waitcnt", "s_barrier", "s_nop", "s_endpgm", "s_setprio", "s_sleep")): s.r = sum(R, [])
            elif op.startswith(("s_and_saveexec", "s_or_saveexec")): s.w = R[0] + regs("exec"); s.r = sum(R[1:], []) + regs("exec")
            else: s.w = R[0] if R else []; s.r = sum(R[1:], [])
        s.states = 1
        if op == "s_nop": s.states = int(s.ops[0], 0) + 1
        s.wide_store = (s.vmem and "store" in op and op.endswith(("x3", "x4")))
def check(lines, name="", fix=False):
    ins = []
    flat = []
    for l in lines:
        flat += l.split("\n")
    for n, l in enumerate(flat):
        t = l.strip()
        if t.startswith("; HZ_"): ins.append(("mark", t, n)); continue
        if not t or t.startswith(";") or t.startswith("."): continue
        if t.endswith(":"): ins.append(("label", t[:-1], n)); continue
        ins.append(("ins", I(t, n), n))
    labpos = {x[1]: k for k, x in enumerate(ins) if x[0] == "label"}
    for k, x in enumerate(ins):
        if x[0] == "ins": x[1].region = set()
    rid = 0
    for k, x in enumerate(ins):
        if x[0] == "ins" and x[1].op.startswith("s_cbranch"):
            tgt = labpos.get(x[1].ops[0])
            if tgt is not None and tgt > k and tgt - k < 400:
                rid += 1
                for y in ins[k + 1:tgt]:
                    if y[0] == "ins": y[1].region.add(rid)
    errs = []
    hist = []
    lq, vq = [], []
    saved = {}
    prev_uncond = False
    pads = {}
    def ov(a, b): return set(a) & set(b)
    for kind, it, n in ins:
        if kind == "mark":
            w = it.split()
            if w[1] == "HZ_SAVE": saved[w[2]] = (list(hist), list(lq), list(vq))
            else:
                hist, lq, vq = [list(z) for z in saved[w[2]]]; prev_uncond = False
            continue
        if kind == "label":
            if prev_uncond: hist = []; lq = []; vq = []
            continue
        c = it
        prev_uncond = c.op in ("s_branch", "s_endpgm")
        d = 0
        short = 0
        for p in reversed(hist):
            if d > 20: break
            need = 0; why = ""
            def upd(n_, w):
                nonlocal need, why
                if n_ > need: need, why = n_, w
            vw = [x for x in p.w if x[0] in "va"]
            sw = [x for x in p.w if x[0] == "s"]
            if p.valu and not p.dl:
                if c.mfma and ov(vw, c.r): upd(2, "valu->mfma")
                if c.op.startswith(("v_readfirstlane", "v_readlane")) and ov(vw, c.r): upd(1, "valu->readlane")
                if c.op.startswith("v_permlane") and ov(vw, c.r): upd(2, "valu->permlane")
                if c.valu and ("row_" in c.text or "quad_perm" in c.text or "dpp" in c.text) and ov(vw, c.r): upd(2, "valu->dpp")
                if sw:
                    if c.vmem and ov(sw, c.r): upd(5, "valu sgpr->vmem")
                    if c.valu and ov(sw, c.r): upd(2, "valu sgpr->valu")
                    if c.op.startswith(("v_readlane", "v_writelane")) and ov(sw, c.r): upd(4, "valu sgpr->lane sel")
                if p.trans and c.valu and not c.trans and ov(vw, c.r): upd(1, "trans->valu")
                if p.trans and (c.mfma) and ov(vw, c.r): upd(2, "trans->mfma")
            if p.dl:
                if c.dl and c.op == p.op:
                    srcs = sum([regs(o) for o in c.ops[1:3]], [])
                    if ov(vw, srcs): upd(3, "dl->dl AB")
                elif (c.valu or c.mfma or c.ds or c.vmem) and (ov(vw, c.r) or ov(vw, c.w)): upd(3, "dl->other")
            if p.mfma:
                big = 12 if p.passes == 8 else 8
                if c.mfma:
                    if ov(p.w, c.C):
                        if not (c.C == p.w and c.passes == p.passes): upd(10 if p.passes == 8 else 6, "mfma D->C overlap")
                    if ov(p.w, c.A + c.B): upd(big, "mfma D->AB")
                    if ov(p.w, c.w) and not (c.C == p.w): upd(10 if p.passes == 8 else 6, "mfma D->D WAW")
                elif c.valu and (ov(p.w, c.r) or ov(p.w, c.w)): upd(big, "mfma D->valu")
                elif (c.ds or c.vmem) and (ov(p.w, c.r) or ov(p.w, c.w)): upd(big, "mfma D->mem")
                if c.valu and ov(p.C, c.w): upd(7 if p.passes == 8 else 3, "mfma C WAR")
            if p.salu and ("s", "m0") in p.w and c.lds_dma: upd(1, "m0->dma")
            if p.wide_store and c.valu and ov(regs(p.ops[0]) if p.op.startswith("buffer") else regs(p.ops[1]), c.w): upd(2, "store data WAR")
            if d < need:
                errs.append(f"{name} HAZ {why} need {need} got {d}: [{p.text}] -> [{c.text}]")
                short = max(short, need - d)
            if p.region <= c.region or True:
                if not p.region or (p.region & c.region) == p.region: d += p.states
        if short:
            pads[n] = short
            pad = I(f"s_nop {short-1}", n); pad.region = c.region
            hist.append(pad)
        if c.op == "s_waitcnt":
            m = re.search(r"vmcnt\((\d+)\)", c.text)
            if m:
                k = int(m.group(1)); vq = vq[len(vq) - k:] if k < len(vq) and k else ([] if k == 0 else vq)
            m = re.search(r"lgkmcnt\((\d+)\)", c.text)
            if m:
                k = int(m.group(1))
                if any(x.salu for x in lq):
                    if k == 0: lq = []
                else: lq = lq[len(lq) - k:] if k < len(lq) and k else ([] if k == 0 else lq)
        else:
            for q, nm in ((lq, "lgkm"), (vq, "vm")):
                for p in q:
                    if ov(p.w, c.r) or ov(p.w, c.w):
                        errs.append(f"{name} PEND {nm}: [{p.text}] -> [{c.text}]")
            if c.ds or (c.salu and c.op.startswith(("s_load", "s_memtime", "s_memrealtime", "s_buffer_load"))): lq.append(c)
            if c.vmem: vq.append(c)
        hist.append(c)
        if len(hist) > 60: hist = hist[-60:]
    out = []
    for n, l in enumerate(flat):
        if n in pads: out.append(f"    s_nop {pads[n]-1}    ; hz")
        out.append(l)
    return errs, out
def fix_kernel(e, verbose=True):
    errs, out = check(e.lines, e.name)
    npad = sum(1 for x in errs if " HAZ " in x)
    pend = [x for x in errs if " PEND " in x]
    if verbose:
        for x in errs[:30]: print("  ", x)
    e.lines = out
    errs2, _ = check(e.lines, e.name)
    assert not [x for x in errs2 if " HAZ " in x], errs2[:5]
    return npad, pend
if __name__ == "__main__":
    for f in sys.argv[1:]:
        txt = open(f).read().split("\n")
        i0 = txt.index(".text")
        errs, _ = check(txt[i0:], f)
        for x in errs[:40]: print(x)
        print(f, len(errs), "issues")
```

```python
from emit import *
def code_prefetch(e, start_label, end_label, nthreads, vdst, voff, nwg=8, sbase=30):
    L = e.label("cpf")
    e(f"""
    s_cmp_ge_u32 s2, {nwg}
    s_cbranch_scc1 {L}_done
    s_getpc_b64 s[{sbase}:{sbase+1}]
    {L}_p:
    s_sub_u32 s{sbase}, s{sbase}, {L}_p-{start_label}
    s_subb_u32 s{sbase+1}, s{sbase+1}, 0
    s_mov_b32 s{sbase+2}, {end_label}-{start_label}-16
    v_lshlrev_b32 v{voff}, 4, v0
    {L}_loop:
    v_cmp_ge_u32 vcc, s{sbase+2}, v{voff}
    s_and_b64 exec, exec, vcc
    s_cbranch_execz {L}_fin
    global_load_dwordx4 v[{vdst}:{vdst+3}], v{voff}, s[{sbase}:{sbase+1}]
    v_add_u32 v{voff}, {nthreads*16}, v{voff}
    s_branch {L}_loop
    {L}_fin:
    s_mov_b64 exec, -1
    {L}_done:
    """)
```

```python
import sys
from g2common import *
import g3k1, g3k2
from g3k1 import *
from g3k2 import *
import hz, gen, gen_pf
from gen4 import start

OPT = {}
def aux_code_pf(e, first, last):
    e(f"""
    s_getpc_b64 s[52:53]
    L_hp:
    s_sub_u32 s52, s52, L_hp-{first}
    s_subb_u32 s53, s53, 0
    s_mov_b32 s54, {last}-{first}-16
    s_sub_u32 s55, s2, 224
    s_lshl_b32 s55, s55, 13
    v_lshlrev_b32 v3, 4, v0
    v_add_u32 v3, s55, v3
    v_cmp_ge_u32 vcc, s54, v3
    s_and_b64 exec, exec, vcc
    s_cbranch_execz L_hp_done
    global_load_dwordx4 v[28:31], v3, s[52:53]
    L_hp_done:
    s_mov_b64 exec, -1
    """)
def gen_k1():
    e = E("k1_kernel", (256, 1, 1), (512, 1, 1), K1_LDS, vgpr=256, sgpr=96, accum=144)
    start(e, "L_end_k1", "L_aux_k1", srds=["x", "win", "wqkv", "ws"], dbg=True, pf=(64, 70))
    tile_ids(e)
    k1_main(e, fused=False, opt=OPT.get("k1", {}))
    e("s_branch L_fin_k1")
    e("L_aux_k1:")
    e.lq, e.vq = [], []
    k1_aux(e)
    aux_code_pf(e, "k1_kernel", "L_end_k3")
    e("s_waitcnt vmcnt(0)")
    e("L_fin_k1:")
    e("L_end_k1:")
    e("s_endpgm")
    return e
def gen_k2():
    e = E("k2_kernel", (256, 1, 1), (512, 1, 1), K2_LDS, vgpr=256, sgpr=96, accum=256)
    start(e, "L_end_k2", "L_aux_k2", srds=["wsp", "ws", "bsp"], pf=(120, 124))
    tile_ids(e)
    k2_main(e, fused=False, opt=OPT.get("k2", {"npro": 5, "pb": (1, 2, 3)}))
    e("s_branch L_fin_k2")
    e("L_aux_k2:")
    e.lq, e.vq = [], []
    k2_attn(e, opt=OPT.get("k2", {}))
    e("L_fin_k2:")
    e("L_end_k2:")
    e("s_endpgm")
    return e
def kernels():
    ks = [gen_k1(), gen_k2()]
    if OPT.get("k3new"):
        import g3k3
        ks.append(g3k3.gen_k3(start, OPT.get("k3", {})))
    else:
        k3 = gen.gen_k3()
        gen_pf.patch(k3, 100, 30)
        ks.append(k3)
    for k in ks:
        n, pend = hz.fix_kernel(k, verbose=OPT.get("hzv", False))
        print(k.name, "pads", n, "pend", len(pend), file=sys.stderr)
    return ks
if __name__ == "__main__":
    out = sys.argv[1] if len(sys.argv) > 1 else "n5.s"
    if len(sys.argv) > 2: OPT.update(eval(sys.argv[2]))
    open(out, "w").write(build(kernels(), header=HEADER))
    print("wrote", out)
```

```python
from g2common import *

K3_NW, K3_NX = 10, 8
K3_WR, K3_XR = 0, 10 * 8192
K3_XS = K3_XR + K3_NX * 8192
K3_LDS = K3_XS + 8192
S_TT, S_NT, S_KH, S_TB, S_DB, S_T0 = 43, 44, 45, 46, 47, 50

def late(e, txt):
    return [lambda l=l: e(l) for l in txt.strip("\n").split("\n") if l.strip()]

def k3_ids(e):
    e(f"""
    s_and_b32 s48, s2, 7
    s_lshr_b32 s49, s2, 3
    s_lshl_b32 s48, s48, 2
    s_and_b32 s51, s49, 3
    s_add_u32 s{S_TT}, s48, s51
    s_lshr_b32 s{S_NT}, s49, 2
    s_lshl_b32 s{S_T0}, s{S_TT}, 6
    s_and_b32 s{S_TB}, s{S_W}, 1
    s_lshr_b32 s{S_DB}, s{S_W}, 1
    s_and_b32 s{S_DB}, s{S_DB}, 1
    s_lshr_b32 s{S_KH}, s{S_W}, 2
    """)

def k3_main(e, fused=False, opt=None):
    opt = opt or {}
    WR, XR, XS, NW, NX = K3_WR, K3_XR, K3_XS, K3_NW, K3_NX
    L = 1
    XG, WG, RG = 2, 3, 4
    XA, XH, WA, WH = 8, 10, 12, 14
    XF, WF, ACC = 32, 48, 64
    T = 80
    RA, RW, XRD, STW, STR, GO = 16, 17, 18, 19, 20, 21
    sX, sW, sM0, sT, sT2, sT3, sR = 52, 53, 54, 55, 56, 57, 58
    NCH = 21
    order = [14 + i for i in range(7)] + list(range(14))
    t0, t1, t2, t3 = T, T + 1, T + 2, T + 3
    e(f"""
    v_lshrrev_b32 v{t0}, 3, v{L}
    v_lshrrev_b32 v{t1}, 4, v{L}
    v_and_b32 v{t2}, 7, v{L}
    v_and_b32 v{t3}, 1, v{t1}
    v_lshlrev_b32 v{t3}, 2, v{t3}
    v_xor_b32 v{t3}, v{t2}, v{t3}
    v_lshlrev_b32 v{t3}, 4, v{t3}
    v_mul_u32_u24 v{WG}, 896, v{t0}
    v_add_u32 v{WG}, v{WG}, v{t3}
    s_lshl_b32 s{sT}, s{S_TB}, 2
    v_add_u32 v{t1}, s{sT}, v{t1}
    v_xor_b32 v{t3}, v{t2}, v{t1}
    v_lshlrev_b32 v{t3}, 4, v{t3}
    v_mul_u32_u24 v{XG}, 2688, v{t0}
    v_add_u32 v{XG}, v{XG}, v{t3}
    v_mul_u32_u24 v{RG}, 896, v{t0}
    v_add_u32 v{RG}, v{RG}, v{t3}
    s_lshl_b32 s{sT}, s{S_W}, 3
    s_add_u32 s{sT2}, s{sT}, s{S_T0}
    s_mul_i32 s{sX}, s{sT2}, 2688
    s_add_u32 s{sX}, s{sX}, {WS_HO}
    s_mul_i32 s{sR}, s{sT2}, 896
    s_mul_i32 s{sW}, s{sT}, 896
    s_lshl_b32 s{sT2}, s{S_NT}, 7
    s_add_u32 s{sW}, s{sW}, s{sT2}
    s_add_u32 s{sR}, s{sR}, s{sT2}
    s_lshl_b32 s{sM0}, s{S_W}, 10
    s_waitcnt lgkmcnt(0)
    """)
    fin_srds(e, ["wout", "wo", "ws", "x", "out"])
    sc = " sc1" if fused else ""
    def x_dma(c):
        if c >= NCH: return []
        def op():
            e(f"s_add_u32 m0, s{sM0}, {XR + (c % NX) * 8192}")
            e(f"s_add_u32 s{sT}, s{sX}, {order[c] * 128}")
            e.vm(f"buffer_load_dwordx4 v{XG}, {sq(R_WS)}, s{sT} offen{sc} lds", ("x", c))
        return [op]
    def w_dma(c):
        if c >= NCH: return []
        k = order[c]
        def op():
            e(f"s_add_u32 m0, s{sM0}, {WR + (c % NW) * 8192}")
            e(f"s_add_u32 s{sT2}, s{sW}, {(k if k < 14 else k - 14) * 64 * 896}")
            e.vm(f"buffer_load_dwordx4 v{WG}, {sq(R_WOUT if k < 14 else R_WO)}, s{sT2} offen lds", ("w", c))
        return [op]
    for op in x_dma(0) + w_dma(0): op()
    e.c("TS 1")
    n_, h_, r_, qd_, chf_, u_ = T + 4, T + 5, T + 6, T + 7, T + 8, T + 9
    e(f"""
    v_and_b32 v{n_}, 31, v{L}
    v_lshrrev_b32 v{h_}, 5, v{L}
    v_and_b32 v{r_}, 15, v{L}
    v_and_b32 v{qd_}, 3, v{r_}
    v_lshlrev_b32 v{qd_}, 3, v{qd_}
    v_lshrrev_b32 v{r_}, 2, v{r_}
    v_lshrrev_b32 v{chf_}, 4, v{L}
    v_and_b32 v{chf_}, 1, v{chf_}
    v_lshlrev_b32 v{chf_}, 5, v{chf_}
    v_add_u32 v{chf_}, v{chf_}, v{qd_}
    v_lshlrev_b32 v{u_}, 3, v{h_}
    v_add_u32 v{u_}, v{u_}, v{r_}
    v_lshlrev_b32 v{u_}, 7, v{u_}
    v_add_u32 v{u_}, v{u_}, v{chf_}
    v_lshrrev_b32 v{r_}, 1, v{r_}
    v_xor_b32 v{r_}, s{S_DB}, v{r_}
    v_lshlrev_b32 v{r_}, 6, v{r_}
    v_add_u32 v{u_}, v{u_}, v{r_}
    v_lshrrev_b32 v{qd_}, 1, v{n_}
    v_and_b32 v{qd_}, 7, v{qd_}
    s_lshl_b32 s{sT2}, s{S_TB}, 5
    v_add_u32 v{n_}, s{sT2}, v{n_}
    v_lshlrev_b32 v{chf_}, 7, v{n_}
    """)
    for p in range(2):
        e(f"""
        s_lshl_b32 s{sT2}, s{S_KH}, 1
        s_add_u32 s{sT2}, s{sT2}, {p}
        s_lshl_b32 s{sT3}, s{sT2}, 1
        v_add_u32 v{r_}, s{sT3}, v{h_}
        v_xor_b32 v{r_}, v{r_}, v{qd_}
        v_lshlrev_b32 v{r_}, 4, v{r_}
        v_add_u32 v{r_}, v{chf_}, v{r_}
        v_add_u32 v{XA+p}, {XR}, v{r_}
        s_lshl_b32 s{sT3}, s{sT2}, 11
        s_add_u32 s{sT3}, s{sT3}, {WR}
        v_add_u32 v{WA+p}, s{sT3}, v{u_}
        v_add_u32 v{WH+p}, 0x10000, v{WA+p}
        """)
    npro = opt.get("npro", 4)
    e("s_barrier")
    for c in range(1, npro):
        for op in x_dma(c) + w_dma(c): op()
        if c in opt.get("pb", (1, 2)): e("s_barrier")
    e(f"s_add_u32 m0, s{sM0}, {XS}")
    e.vm(f"buffer_load_dwordx4 v{RG}, {sq(R_X)}, s{sR} offen lds", "res")
    e.c("TS 2")
    def x_read(c, p):
        d = XF + 8 * (c % 2) + 4 * p
        return lambda: e.ds(f"ds_read_b128 v[{d}:{d+3}], v{XA+p} offset:{(c % NX) * 8192}", ("f", c))
    def w_read(c, p):
        ops = []
        s = c % NW
        a = (WA if s < 8 else WH) + p
        for t in range(2):
            d = WF + 8 * (c % 2) + 4 * p + 2 * t
            ops.append(lambda d=d, t=t: e.ds(f"ds_read_b64_tr_b16 v[{d}:{d+1}], v{a} offset:{(s % 8) * 8192 + t * 512}", ("f", c)))
        return ops
    def mfma(c, p):
        cin = "0" if (c == 0 and p == 0) else f"v[{ACC}:{ACC+15}]"
        b = 8 * (c % 2) + 4 * p
        e(f"v_mfma_f32_32x32x16_bf16 v[{ACC}:{ACC+15}], v[{WF+b}:{WF+b+3}], v[{XF+b}:{XF+b+3}], {cin}")
    a0, a1, a2 = T, T + 1, T + 2
    RED = WR
    STG = WR + 16384
    setup = late(e, f"""
    s_and_b32 s{sT3}, s{S_W}, 3
    s_lshl_b32 s{sT3}, s{sT3}, 12
    s_lshl_b32 s59, s{S_KH}, 11
    s_add_u32 s60, s{sT3}, s59
    s_xor_b32 s59, s59, 2048
    s_add_u32 s61, s{sT3}, s59
    v_lshlrev_b32 v{a0}, 4, v{L}
    v_add_u32 v{RA}, s60, v{a0}
    v_add_u32 v{RW}, s61, v{a0}
    v_and_b32 v{a0}, 31, v{L}
    v_lshrrev_b32 v{a1}, 5, v{L}
    s_lshl_b32 s{sT3}, s{S_TB}, 5
    v_add_u32 v{a2}, s{sT3}, v{a0}
    v_lshlrev_b32 v{a1}, 3, v{a1}
    s_lshl_b32 s59, s{S_DB}, 6
    s_lshl_b32 s60, s{S_KH}, 5
    s_add_u32 s59, s59, s60
    v_lshrrev_b32 v{a0}, 1, v{a0}
    v_and_b32 v{a0}, 7, v{a0}
    v_lshlrev_b32 v{a0}, 4, v{a0}
    v_xor_b32 v{a0}, s59, v{a0}
    v_lshl_add_u32 v{XRD}, v{a2}, 7, v{a0}
    v_add_u32 v{XRD}, v{XRD}, v{a1}
    v_mul_u32_u24 v{STW}, 144, v{a2}
    v_add3_u32 v{STW}, v{STW}, v{a1}, s59
    v_lshrrev_b32 v{a0}, 3, v0
    v_and_b32 v{a1}, 7, v0
    v_lshlrev_b32 v{a1}, 4, v{a1}
    v_mul_u32_u24 v{STR}, 144, v{a0}
    v_add_u32 v{STR}, v{STR}, v{a1}
    v_mul_u32_u24 v{GO}, 896, v{a0}
    v_add_u32 v{GO}, v{GO}, v{a1}
    """)
    gaps = {c: [] for c in range(NCH)}
    for c, sl in zip(range(1, 9), spread(setup, 8)): gaps[c] += sl
    wsched = {c: [] for c in range(NCH)}; xsched = {c: [] for c in range(NCH)}
    nw = nx = npro
    for c in range(NCH):
        for _ in range(opt.get("dn", 2)):
            if nx < NCH and nx <= c + NX - 1: xsched[c].append(nx); nx += 1
            if nw < NCH and nw <= c + NW - 1: wsched[c].append(nw); nw += 1
    assert nx == NCH and nw == NCH
    e.need_v([("x", 0), ("w", 0)]); e("s_barrier")
    e.c("TS 3")
    for p in range(2):
        x_read(0, p)()
        for op in w_read(0, p): op()
    for c in range(NCH):
        tsl = opt.get("ts", (2, 7, 12, 17))
        if c in tsl: e.c(f"TS {4 + tsl.index(c)}")
        if c + 1 < NCH:
            e.need_v([("x", c + 1), ("w", c + 1)])
            e("s_barrier")
        dm = []
        for a, b in zip(xsched[c] + [None] * 2, wsched[c] + [None] * 2):
            if a is not None: dm += x_dma(a)
            if b is not None: dm += w_dma(b)
        e.need_l(("f", c))
        rd = []
        if c + 1 < NCH:
            for p in range(2): rd += [x_read(c + 1, p)] + w_read(c + 1, p)
        mfma(c, 0)
        for f in rd[:3] + dm[:2]: f()
        mfma(c, 1)
        for f in rd[3:] + dm[2:] + gaps[c]: f()
    e.c("TS 8")
    e.need_v("res")
    e("s_barrier")
    L0, L1 = e.label("k3a"), e.label("k3b")
    e(f"s_cmp_lg_u32 s{S_KH}, 0\ns_cbranch_scc1 {L0}")
    e(f"ds_write_b128 v{RW}, v[{ACC+8}:{ACC+11}] offset:{RED}\nds_write_b128 v{RW}, v[{ACC+12}:{ACC+15}] offset:{RED+1024}")
    e(f"s_branch {L1}\n{L0}:")
    e(f"ds_write_b128 v{RW}, v[{ACC}:{ACC+3}] offset:{RED}\nds_write_b128 v{RW}, v[{ACC+4}:{ACC+7}] offset:{RED+1024}")
    for i in range(8): e(f"v_mov_b32 v{ACC+i}, v{ACC+8+i}")
    e(f"{L1}:")
    e(f"v_add_u32 v{XRD}, {XS}, v{XRD}\nv_xor_b32 v{XRD+4}, 16, v{XRD}")
    e.ds(f"ds_read_b64 v[{XF}:{XF+1}], v{XRD}", "xr")
    e.ds(f"ds_read_b64 v[{XF+2}:{XF+3}], v{XRD+4}", "xr")
    e("s_waitcnt lgkmcnt(0)"); e.lq = []
    e("s_barrier")
    e.ds(f"ds_read_b128 v[{WF}:{WF+3}], v{RA} offset:{RED}", "rd")
    e.ds(f"ds_read_b128 v[{WF+4}:{WF+7}], v{RA} offset:{RED+1024}", "rd")
    U = T
    for i in range(4):
        e(f"v_lshlrev_b32 v{U+2*i}, 16, v{XF+i}\nv_and_b32 v{U+2*i+1}, 0xffff0000, v{XF+i}")
    for i in range(8): e(f"v_add_f32 v{ACC+i}, v{ACC+i}, v{U+i}")
    e.need_l("rd")
    for i in range(8): e(f"v_add_f32 v{ACC+i}, v{ACC+i}, v{WF+i}")
    for i in range(4): e(f"v_cvt_pk_bf16_f32 v{U+i}, v{ACC+2*i}, v{ACC+2*i+1}")
    e.ds(f"ds_write_b64 v{STW}, v[{U}:{U+1}] offset:{STG}", "stg")
    e.ds(f"ds_write_b64 v{STW}, v[{U+2}:{U+3}] offset:{STG+16}", "stg")
    e(f"""
    s_mul_i32 s{sT}, s{S_T0}, 896
    s_lshl_b32 s{sT2}, s{S_NT}, 7
    s_add_u32 s{sT}, s{sT}, s{sT2}
    """)
    e.need_l("stg"); e("s_barrier")
    e.c("TS 9")
    e.ds(f"ds_read_b128 v[{XF}:{XF+3}], v{STR} offset:{STG}", "rb")
    e.need_l("rb")
    e.vm(f"buffer_store_dwordx4 v[{XF}:{XF+3}], v{GO}, {sq(R_OUT)}, s{sT} offen", "st")

def gen_k3(start, opt):
    e = E("k3_kernel", (224, 1, 1), (512, 1, 1), K3_LDS, vgpr=128, sgpr=96, accum=128)
    start(e, "L_end_k3", None, nwg=224, srds=["wout", "wo", "ws", "x", "out"], pf=(100, 104))
    k3_ids(e)
    k3_main(e, fused=False, opt=opt)
    e("L_fin_k3:")
    e("L_end_k3:")
    e("s_endpgm")
    return e
```

```python
from g2common import *

K2_XR, K2_WR = 0, 98304
K2_NS = 6
K2_LDS = 150016
V_Z1 = 96

def late(e, txt):
    return [lambda l=l: e(l) for l in txt.strip("\n").split("\n") if l.strip()]

def k2_main(e, fused=False, opt=None):
    opt = opt or {}
    XR, WR, NS = K2_XR, K2_WR, K2_NS
    L = 1
    XG, WGI = 2, 4
    XA, XH, WA = 8, 12, 16
    BIAS, STW, STR, GH, CK1, CK2 = 20, 21, 22, 23, 24, 25
    T = 26
    XF, WF, ACC, ZF, U1, GT = 32, 48, 64, 80, V_Z1, 104
    sX, sW, sM0X, sM0W, sT, sT2, sT3 = 48, 49, 52, 53, 55, 56, 57
    t0, t1, t2, t3 = GT, GT + 1, GT + 2, GT + 3
    NCH = 32
    e(f"""
    v_lshrrev_b32 v{t0}, 3, v{L}
    v_lshrrev_b32 v{t1}, 4, v{L}
    v_and_b32 v{t2}, 7, v{L}
    v_lshlrev_b32 v{XG}, 12, v{t0}
    v_xor_b32 v{t3}, v{t2}, v{t1}
    v_lshlrev_b32 v{t3}, 4, v{t3}
    v_add_u32 v{XG+1}, {8*4096-1024}, v{XG}
    v_add_u32 v{XG}, v{XG}, v{t3}
    v_xor_b32 v{t3}, 64, v{t3}
    v_add_u32 v{XG+1}, v{XG+1}, v{t3}
    v_and_b32 v{t3}, 1, v{t1}
    v_lshlrev_b32 v{t3}, 2, v{t3}
    v_xor_b32 v{t3}, v{t2}, v{t3}
    v_lshlrev_b32 v{t3}, 4, v{t3}
    v_mul_u32_u24 v{WGI}, 1792, v{t0}
    v_add_u32 v{WGI}, v{WGI}, v{t3}
    s_lshl_b32 s{sT}, s{S_W}, 4
    s_add_u32 s{sT}, s{sT}, s{S_ROW0}
    s_lshl_b32 s{sX}, s{sT}, 12
    s_mul_i32 s{sT}, s{S_W}, {8*1792}
    s_lshl_b32 s{sT2}, s{S_J}, 7
    s_add_u32 s{sW}, s{sT}, s{sT2}
    s_add_u32 s{sW}, s{sW}, {WS_Z2}
    s_lshl_b32 s{sM0X}, s{S_W}, 11
    s_add_u32 s{sM0X}, s{sM0X}, {XR}
    s_lshl_b32 s{sM0W}, s{S_W}, 10
    s_add_u32 s{sM0W}, s{sM0W}, {WR}
    s_waitcnt lgkmcnt(0)
    """)
    fin_srds(e, ["wsp", "ws", "bsp"])
    if opt.get("rot"):
        ra, rb = opt["rot"]
        e(f"s_and_b32 s60, s{S_MT}, 3\ns_mul_i32 s60, s60, {ra}\ns_lshr_b32 s61, s2, 5\ns_mul_i32 s61, s61, {rb}\ns_add_u32 s60, s60, s61")
    def x_dma(c):
        if c >= NCH: return []
        def pre():
            e(f"s_add_u32 m0, s{sM0X}, {(c % NS) * 16384}")
            if opt.get("rot"):
                e(f"s_add_u32 s{sT}, s60, {c}\ns_and_b32 s{sT}, s{sT}, 31\ns_lshl_b32 s{sT}, s{sT}, 7\ns_add_u32 s{sT}, s{sT}, s{sX}")
            else:
                e(f"s_add_u32 s{sT}, s{sX}, {c * 128}")
        ops = [pre]
        for i in range(2):
            ops.append(lambda i=i: e.vm(f"buffer_load_dwordx4 v{XG+i}, {sq(R_WSP)}, s{sT} offen offset:{1024*i} lds", ("x", c)))
        return ops
    def w_dma(c):
        if c >= NCH: return []
        def op():
            e(f"s_add_u32 m0, s{sM0W}, {(c % NS) * 8192}")
            if opt.get("rot"):
                e(f"s_add_u32 s{sT2}, s60, {c}\ns_and_b32 s{sT2}, s{sT2}, 31\ns_mul_i32 s{sT2}, s{sT2}, {64*1792}\ns_add_u32 s{sT2}, s{sT2}, s{sW}")
            else:
                e(f"s_add_u32 s{sT2}, s{sW}, {c * 64 * 1792}")
            e.vm(f"buffer_load_dwordx4 v{WGI}, {sq(R_WS)}, s{sT2} offen lds", ("w", c))
        return [op]
    npro = opt.get("npro", 3)
    for op in x_dma(0) + w_dma(0): op()
    e.c("TS 1")
    e(f"""
    v_lshlrev_b32 v{t0}, 5, v0
    s_lshl_b32 s{sT3}, s2, 14
    s_add_u32 s{sT3}, s{sT3}, {WS_Z1R}
    v_and_b32 v{t1}, 31, v{L}
    v_lshlrev_b32 v{t1}, 1, v{t1}
    s_lshl_b32 s58, s{S_RG}, 5
    s_add_u32 s58, s58, s{S_ROW0}
    s_lshl_b32 s58, s58, 1
    """)
    def u1_load():
        e.vm(f"buffer_load_dwordx4 v[{U1}:{U1+3}], v{t0}, {sq(R_WS)}, s{sT3} offen", "u1")
        e.vm(f"buffer_load_dwordx4 v[{U1+4}:{U1+7}], v{t0}, {sq(R_WS)}, s{sT3} offen offset:16", "u1")
        e.vm(f"buffer_load_ushort v{BIAS}, v{t1}, {sq(R_BSP)}, s58 offen", "u1")
    n_, h_, r_, qd_, chf_, u_ = GT + 4, GT + 5, GT + 6, GT + 7, GT + 8, GT + 9
    e(f"""
    v_and_b32 v{n_}, 31, v{L}
    v_lshrrev_b32 v{h_}, 5, v{L}
    v_and_b32 v{r_}, 15, v{L}
    v_and_b32 v{qd_}, 3, v{r_}
    v_lshlrev_b32 v{qd_}, 3, v{qd_}
    v_lshrrev_b32 v{r_}, 2, v{r_}
    v_lshrrev_b32 v{chf_}, 4, v{L}
    v_and_b32 v{chf_}, 1, v{chf_}
    v_lshlrev_b32 v{chf_}, 5, v{chf_}
    v_add_u32 v{chf_}, v{chf_}, v{qd_}
    s_lshl_b32 s{sT}, s{S_CH}, 1
    s_add_u32 s{sT}, s{sT}, s{S_RG}
    v_lshlrev_b32 v{u_}, 3, v{h_}
    v_add_u32 v{u_}, v{u_}, v{r_}
    v_lshlrev_b32 v{u_}, 7, v{u_}
    v_add_u32 v{u_}, v{u_}, v{chf_}
    v_lshrrev_b32 v{r_}, 1, v{r_}
    v_xor_b32 v{r_}, s{S_CH}, v{r_}
    v_lshlrev_b32 v{r_}, 6, v{r_}
    v_add_u32 v{u_}, v{u_}, v{r_}
    v_lshrrev_b32 v{qd_}, 1, v{n_}
    v_and_b32 v{qd_}, 7, v{qd_}
    v_lshlrev_b32 v{chf_}, 7, v{n_}
    s_lshl_b32 s{sT2}, s{S_RG}, 12
    s_add_u32 s{sT2}, s{sT2}, {XR}
    v_add_u32 v{chf_}, s{sT2}, v{chf_}
    """)
    for p in range(4):
        e(f"""
        s_add_u32 s{sT2}, s{sT}, {p}
        s_and_b32 s{sT2}, s{sT2}, 3
        s_lshl_b32 s{sT3}, s{sT2}, 1
        v_add_u32 v{r_}, s{sT3}, v{h_}
        v_xor_b32 v{r_}, v{r_}, v{qd_}
        v_lshlrev_b32 v{r_}, 4, v{r_}
        v_add_u32 v{XA+p}, v{chf_}, v{r_}
        s_lshl_b32 s{sT3}, s{sT2}, 11
        s_add_u32 s{sT3}, s{sT3}, {WR}
        v_add_u32 v{WA+p}, s{sT3}, v{u_}
        v_add_u32 v{XH+p}, 0x10000, v{XA+p}
        """)
    if not opt.get("nopb"): e("s_barrier")
    for c in range(1, npro):
        for op in x_dma(c) + w_dma(c): op()
        if c in opt.get("pb", (1,)): e("s_barrier")
    e(f"s_lshl_b32 s{sT3}, s2, 14\ns_add_u32 s{sT3}, s{sT3}, {WS_Z1R}")
    u1_load()
    e.c("TS 2")
    dsched = {c: [] for c in range(NCH)}
    nxt = npro
    for c in range(NCH):
        for _ in range(opt.get("dn", 2)):
            if nxt < NCH and nxt <= c + NS - 1: dsched[c].append(nxt); nxt += 1
    assert nxt == NCH

    def x_read(c, p):
        s = c % NS
        a = (XA if s < 4 else XH) + p
        return lambda: e.ds(f"ds_read_b128 v[{XF+4*p}:{XF+4*p+3}], v{a} offset:{(s % 4) * 16384}", ("f", c, p))
    def w_read(c, p):
        ops = []
        for t in range(2):
            d = WF + 4 * p + 2 * t
            ops.append(lambda d=d, t=t: e.ds(f"ds_read_b64_tr_b16 v[{d}:{d+1}], v{WA+p} offset:{(c % NS) * 8192 + t * 512}", ("f", c, p)))
        return ops
    def mfma(c, p):
        cin = "0" if (c == 0 and p == 0) else f"v[{ACC}:{ACC+15}]"
        e(f"v_mfma_f32_32x32x16_bf16 v[{ACC}:{ACC+15}], v[{WF+4*p}:{WF+4*p+3}], v[{XF+4*p}:{XF+4*p+3}], {cin}")

    a0, a1, a2 = T, T + 1, T + 2
    setup = late(e, f"""
    v_mov_b32 v{CK1}, {fbits(GELU_K1)}
    v_mov_b32 v{CK2}, {fbits(GELU_K2)}
    v_and_b32 v{a0}, 31, v{L}
    v_lshrrev_b32 v{a1}, 5, v{L}
    s_lshl_b32 s{sT3}, s{S_RG}, 5
    v_add_u32 v{a2}, s{sT3}, v{a0}
    v_mul_u32_u24 v{a2}, 144, v{a2}
    v_lshlrev_b32 v{a1}, 3, v{a1}
    s_lshl_b32 s{sT3}, s{S_CH}, 6
    s_add_u32 s{sT3}, s{sT3}, {XR + 2 * 16384}
    v_add3_u32 v{STW}, v{a2}, v{a1}, s{sT3}
    v_lshrrev_b32 v{a0}, 3, v{L}
    v_and_b32 v{a1}, 7, v{L}
    v_lshlrev_b32 v{a1}, 4, v{a1}
    v_mul_u32_u24 v{GH}, 2688, v{a0}
    v_add_u32 v{GH}, v{GH}, v{a1}
    s_lshl_b32 s{sT3}, s{S_W}, 4
    v_add_u32 v{a0}, s{sT3}, v{a0}
    v_mul_u32_u24 v{STR}, 144, v{a0}
    v_add_u32 v{STR}, v{STR}, v{a1}
    v_add_u32 v{STR}, {XR + 2 * 16384}, v{STR}
    """)
    gel = []
    for q in range(4):
        z = [ZF + 4 * q + i for i in range(4)]
        t = [GT + 4 * (q % 2) + i for i in range(4)]
        gel.append(lambda q=q: (e.need_v("u1"), e(f"v_lshlrev_b32 v{ZF+4*q}, 16, v{U1+2*q}")))
        gel += late(e, f"""
            v_and_b32 v{ZF+4*q+1}, 0xffff0000, v{U1+2*q}
            v_lshlrev_b32 v{ZF+4*q+2}, 16, v{U1+2*q+1}
            v_and_b32 v{ZF+4*q+3}, 0xffff0000, v{U1+2*q+1}
            """)
        for fmt in ("v_mul_f32 v{t}, v{a}, v{a}", f"v_fma_f32 v{{t}}, v{{t}}, v{CK2}, v{CK1}", "v_mul_f32 v{t}, v{a}, v{t}",
                    "v_exp_f32 v{t}, v{t}", "v_add_f32 v{t}, 1.0, v{t}", "v_rcp_f32 v{t}, v{t}", "v_mul_f32 v{a}, v{a}, v{t}"):
            for i in range(4):
                gel.append(lambda fmt=fmt, i=i, z=z, t=t: e(fmt.format(t=t[i], a=z[i])))
    gel.append(lambda: e(f"v_lshlrev_b32 v{BIAS}, 16, v{BIAS}"))
    gaps = {(c, p): [] for c in range(NCH) for p in range(4)}
    def spread_gaps(ops, a_, b_):
        slots = [(c, p) for c in range(a_[0], b_[0] + 1) for p in range(4) if (c, p) >= tuple(a_) and (c, p) <= tuple(b_)]
        for sl, s_ in zip(spread(ops, len(slots)), slots): gaps[s_] += sl
    spread_gaps(setup, (0, 0), (2, 3))
    spread_gaps(gel, (4, 0), (29, 3))

    e.need_v([("x", 0), ("w", 0)]); e("s_barrier")
    e.c("TS 3")
    for p in range(4):
        x_read(0, p)()
        for op in w_read(0, p): op()
    dpos = opt.get("dpos", (0, 2))
    for c in range(NCH):
        tsl = opt.get("ts", (4, 12, 20, 28))
        if c in tsl: e.c(f"TS {4 + tsl.index(c)}")
        if c + 1 < NCH: e.need_v([("x", c + 1), ("w", c + 1)])
        if c + 1 < NCH or fused: e("s_barrier")
        dl = [x_dma(k) + w_dma(k) for k in dsched[c]] + [[], []]
        if opt.get("nodma"): dl = [[], []]
        for p in range(4):
            e.need_l(("f", c, p))
            mfma(c, p)
            if c + 1 < NCH:
                x_read(c + 1, p)()
                for f in w_read(c + 1, p): f()
            if p == dpos[0]:
                for f in dl[0]: f()
            if p == dpos[1]:
                for f in dl[1]: f()
            for f in gaps[(c, p)]: f()
    e.c("TS 8")
    BV = GT
    e(f"v_mov_b32 v{BIAS+0}, v{BIAS}")
    for q in range(4):
        a = ACC + 4 * q
        for i in range(4): e(f"v_add_f32 v{a+i}, v{a+i}, v{BIAS}")
        for i in range(4): e(f"v_mul_f32 v{a+i}, v{a+i}, v{ZF+4*q+i}")
        e(f"v_cvt_pk_bf16_f32 v{BV+2*q}, v{a}, v{a+1}")
        e(f"v_cvt_pk_bf16_f32 v{BV+2*q+1}, v{a+2}, v{a+3}")
        e.ds(f"ds_write_b64 v{STW}, v[{BV+2*q}:{BV+2*q+1}] offset:{q*16}", "stg")
    e(f"""
    s_lshl_b32 s{sT}, s{S_W}, 4
    s_add_u32 s{sT}, s{sT}, s{S_ROW0}
    s_mul_i32 s{sT}, s{sT}, 2688
    s_lshl_b32 s{sT2}, s{S_J}, 7
    s_add_u32 s{sT}, s{sT}, s{sT2}
    s_add_u32 s{sT}, s{sT}, {WS_HO}
    s_add_u32 s{sT2}, s{sT}, {8*2688}
    """)
    e.need_l("stg"); e("s_barrier")
    e.c("TS 9")
    sc = " sc1" if fused else ""
    for i in range(2):
        e.ds(f"ds_read_b128 v[{XF+4*i}:{XF+4*i+3}], v{STR} offset:{i*8*144}", ("rb", i))
    for i in range(2):
        e.need_l(("rb", i))
        e.vm(f"buffer_store_dwordx4 v[{XF+4*i}:{XF+4*i+3}], v{GH}, {sq(R_WS)}, s{(sT, sT2)[i]} offen{sc}", "st")

def k2_attn(e, fused=False, opt=None):
    opt = opt or {}
    L = 1
    PITCH = 1920
    QA, QB, KV, LA, LB, OA, OB = 8, 22, 36, 162, 170, 178, 206
    PA, PB = 234, 238
    VA, VQ, VL, VS, VM, VN = 242, 243, 244, 245, 246, 247
    PT = QA
    sA, sR, sT, sT2, sQ, sQ2, sLo, sHi = 48, 49, 50, 51, 52, 53, 54, 55
    e(f"""
    s_sub_u32 s{sA}, s2, 224
    s_lshl_b32 s{sR}, s{sA}, 6
    v_and_b32 v{VM}, 15, v{L}
    v_mul_u32_u24 v{VM}, 56, v{VM}
    v_lshrrev_b32 v{VN}, 4, v{L}
    v_and_b32 v{VS}, 1, v{VN}
    v_lshrrev_b32 v{VN}, 1, v{VN}
    v_lshl_add_u32 v{VS}, v{VN}, 2, v{VS}
    s_lshl_b32 s{sT}, s{S_W}, 3
    v_add_u32 v{VS}, s{sT}, v{VS}
    v_mul_u32_u24 v{VQ}, 2688, v{VS}
    v_add_u32 v{VQ}, v{VQ}, v{VM}
    v_mul_u32_u24 v{VA}, {PITCH}, v{VS}
    v_add_u32 v{VA}, v{VA}, v{VM}
    v_lshlrev_b32 v{VL}, 4, v{L}
    s_mul_i32 s{sQ}, s{sR}, 2688
    s_add_u32 s{sQ}, s{sQ}, {WS_QKV}
    s_add_u32 s{sQ2}, s{sQ}, {2*2688}
    s_waitcnt lgkmcnt(0)
    """)
    fin_srds(e, ["ws"])
    sc = " sc1" if fused else ""
    def kv_dma(part):
        e("s_mov_b32 exec_hi, 0x00ffffff")
        for i in range(10):
            e(f"""
            s_add_u32 s{sT}, s{S_W}, {8*i}
            s_min_u32 s{sT}, s{sT}, 77
            s_mul_i32 s{sT2}, s{sT}, {PITCH}
            s_add_u32 m0, s{sT2}, {896*part}
            s_add_u32 s{sT}, s{sT}, s{sR}
            s_sub_i32 s{sT}, s{sT}, 14
            s_max_i32 s{sT}, s{sT}, 0
            s_mul_i32 s{sT}, s{sT}, 2688
            s_add_u32 s{sT}, s{sT}, {WS_QKV + 896 + 896*part}
            """)
            e.vm(f"buffer_load_dwordx4 v{VL}, {sq(R_WS)}, s{sT} offen{sc} lds", ("kv", part))
        e("s_mov_b32 exec_hi, -1")
    kv_dma(0)
    for base, so in ((QA, sQ), (QB, sQ2)):
        for i in range(3):
            e.vm(f"buffer_load_dwordx4 v[{base+4*i}:{base+4*i+3}], v{VQ}, {sq(R_WS)}, s{so} offen offset:{16*i}{sc}", "q")
        e.vm(f"buffer_load_dwordx2 v[{base+12}:{base+13}], v{VQ}, {sq(R_WS)}, s{so} offen offset:48{sc}", "q")
    kv_dma(1)
    e.c("TS 1")
    e.need_v([("kv", 0), "q"]); e("s_barrier")
    e.c("TS 2")
    def rd(j, part):
        for i in range(7):
            e.ds(f"ds_read_b64 v[{KV+14*j+2*i}:{KV+14*j+2*i+1}], v{VA} offset:{(16-2*j)*PITCH + 896*part + 8*i}", ("kv", part, j))
    for j in range(9): rd(j, 0)
    for j0 in range(0, 9, 2):
        js = [j for j in (j0, j0 + 1) if j < 9]
        e.need_l([("kv", 0, j) for j in js])
        for i in range(14):
            for j in js:
                if j <= 7: e(f"v_dot2_f32_bf16 v{LB+j}, v{QB+i}, v{KV+14*j+i}, {'0' if i == 0 else f'v{LB+j}'}")
                if j >= 1: e(f"v_dot2_f32_bf16 v{LA+j-1}, v{QA+i}, v{KV+14*j+i}, {'0' if i == 0 else f'v{LA+j-1}'}")
        if j0 == 2:
            e.c("TS 3")
            e.need_v(("kv", 1)); e("s_barrier")
        if j0 >= 2:
            for j in (js if j0 > 2 else [0, 1, 2, 3]): rd(j, 1)
    e.c("TS 4")
    LM = e.label("am")
    e(f"""
    s_cmp_lg_u32 s{sA}, 0
    s_cbranch_scc1 {LM}
    v_mov_b32 v{VM}, {fbits(-1e9)}
    v_add_u32 v{VN}, 2, v{VS}
    """)
    for w in range(1, 8):
        e(f"v_cmp_le_u32 vcc, {2*w}, v{VS}\nv_cndmask_b32 v{LA+w}, v{VM}, v{LA+w}, vcc")
        e(f"v_cmp_le_u32 vcc, {2*w}, v{VN}\nv_cndmask_b32 v{LB+w}, v{VM}, v{LB+w}, vcc")
    e(f"{LM}:")
    SC = (28 ** -0.5) * 1.4426950408889634
    e(f"s_mov_b32 s{sT}, {fbits(SC)}")
    X = ((LA, VM), (LB, VN))
    for l, m in X: e(f"v_max3_f32 v{m}, v{l}, v{l+1}, v{l+2}")
    for l, m in X: e(f"v_max3_f32 v{m}, v{m}, v{l+3}, v{l+4}")
    for l, m in X: e(f"v_max3_f32 v{m}, v{m}, v{l+5}, v{l+6}")
    for l, m in X: e(f"v_max_f32 v{m}, v{m}, v{l+7}")
    for l, m in X: e(f"v_mul_f32 v{m}, {fbits(-SC)}, v{m}")
    for w in range(8):
        for l, m in X: e(f"v_fma_f32 v{l+w}, v{l+w}, s{sT}, v{m}")
    for w in range(8):
        for l, m in X: e(f"v_exp_f32 v{l+w}, v{l+w}")
    tA, tB = PA, PB
    for l, t in ((LA, tA), (LB, tB)):
        for u in range(4): e(f"v_add_f32 v{t+u}, v{l+2*u}, v{l+2*u+1}")
    for t in (tA, tB): e(f"v_add_f32 v{t}, v{t}, v{t+1}\nv_add_f32 v{t+2}, v{t+2}, v{t+3}")
    for t in (tA, tB): e(f"v_add_f32 v{t}, v{t}, v{t+2}")
    for t, m in ((tA, VM), (tB, VN)): e(f"v_rcp_f32 v{m}, v{t}")
    for w in range(8):
        for l, m in X: e(f"v_mul_f32 v{l+w}, v{l+w}, v{m}")
    for u in range(4): e(f"v_cvt_pk_bf16_f32 v{PA+u}, v{LA+2*u}, v{LA+2*u+1}")
    for u, (a, b) in enumerate(((1, 2), (3, 4), (5, 6), (0, 7))): e(f"v_cvt_pk_bf16_f32 v{PB+u}, v{LB+a}, v{LB+b}")
    e.c("TS 5")
    e(f"s_mov_b32 s{sLo}, 0x05040100\ns_mov_b32 s{sHi}, 0x07060302")
    def perm(ja, jb):
        e.need_l([("kv", 1, ja), ("kv", 1, jb)])
        for i in range(14):
            a, b = KV + 14 * ja + i, KV + 14 * jb + i
            e(f"v_perm_b32 v{PT+2*i}, v{b}, v{a}, s{sLo}")
            e(f"v_perm_b32 v{PT+2*i+1}, v{b}, v{a}, s{sHi}")
    for u, (ja, jb) in enumerate(((1, 2), (3, 4), (5, 6))):
        perm(ja, jb)
        for d in range(28):
            e(f"v_dot2_f32_bf16 v{OA+d}, v{PT+d}, v{PA+u}, {'0' if u == 0 else f'v{OA+d}'}")
            e(f"v_dot2_f32_bf16 v{OB+d}, v{PT+d}, v{PB+u}, {'0' if u == 0 else f'v{OB+d}'}")
    perm(7, 8)
    for d in range(28): e(f"v_dot2_f32_bf16 v{OA+d}, v{PT+d}, v{PA+3}, v{OA+d}")
    perm(0, 7)
    for d in range(28): e(f"v_dot2_f32_bf16 v{OB+d}, v{PT+d}, v{PB+3}, v{OB+d}")
    e.c("TS 6")
    for o, q in ((OA, KV), (OB, KV + 14)):
        for i in range(14): e(f"v_cvt_pk_bf16_f32 v{q+i}, v{o+2*i}, v{o+2*i+1}")
    if opt.get("stage_o"):
        OP = 912
        e("s_barrier")
        e(f"""
        v_and_b32 v{VM}, 15, v{L}
        v_mul_u32_u24 v{VM}, 56, v{VM}
        v_mul_u32_u24 v{VN}, {OP}, v{VS}
        v_add_u32 v{VM}, v{VM}, v{VN}
        """)
        for r_, q in ((0, KV), (2, KV + 14)):
            for i in range(7):
                e.ds(f"ds_write_b64 v{VM}, v[{q+2*i}:{q+2*i+1}] offset:{r_*OP + 8*i}", "ow")
        e(f"""
        s_mul_i32 s{sT}, s{S_W}, {8*OP}
        v_add_u32 v{VN}, s{sT}, v{VL}
        s_lshl_b32 s{sT}, s{S_W}, 3
        s_add_u32 s{sT}, s{sT}, s{sR}
        s_mul_i32 s{sQ}, s{sT}, 2688
        s_add_u32 s{sQ}, s{sQ}, {WS_HO + 1792}
        """)
        e.need_l("ow")
        e("s_mov_b32 exec_hi, 0x00ffffff")
        for i in range(8): e.ds(f"ds_read_b128 v[{OA+4*i}:{OA+4*i+3}], v{VN} offset:{i*OP}", ("or", i))
        for i in range(8):
            e.need_l(("or", i))
            if i: e(f"s_add_u32 s{sQ}, s{sQ}, 2688")
            e.vm(f"buffer_store_dwordx4 v[{OA+4*i}:{OA+4*i+3}], v{VL}, {sq(R_WS)}, s{sQ} offen sc1", "st")
        e("s_mov_b32 exec_hi, -1")
        return
    e(f"""
    s_mul_i32 s{sQ}, s{sR}, 2688
    s_add_u32 s{sQ}, s{sQ}, {WS_HO + 1792}
    s_add_u32 s{sQ2}, s{sQ}, {2*2688}
    """)
    for base, so in ((KV, sQ), (KV + 14, sQ2)):
        for i in range(3):
            e.vm(f"buffer_store_dwordx4 v[{base+4*i}:{base+4*i+3}], v{VQ}, {sq(R_WS)}, s{so} offen offset:{16*i}{sc}", "st")
        e.vm(f"buffer_store_dwordx2 v[{base+12}:{base+13}], v{VQ}, {sq(R_WS)}, s{so} offen offset:48{sc}", "st")
```

```python
from g2common import *

F_H  = WS_FLG
F_O  = WS_FLG + 0x1000
F_Z2 = WS_FLG + 0x2000
F_Q  = WS_FLG + 0x3000
F_N  = WS_FLG + 0x4000

K2_XR, K2_WR, K2_NS = 0, 98304, 6
K23_LDS = 160 * 1024 - 960
K3_W = [114688, 122880, 131072, 139264, 98304, 106496, 0, 8192, 16384, 24576]
K3_X = [65536, 73728, 81920, 90112, 49152, 57344, 32768, 40960]
HSTG = 32768
K3_XS = 147456
S3_TT, S3_NT, S3_KH, S3_TB, S3_DB, S3_T0, S3_X, S3_WW, S3_R, S3_M0 = 92, 93, 94, 95, 96, 97, 98, 99, 100, 101
V_Z1 = 96

def late(e, txt):
    return [lambda l=l: e(l) for l in txt.strip("\n").split("\n") if l.strip()]

def flag_store(e, off_sgpr_txt, base, vt=(28, 29), stmp=62):
    LZ = e.label("fs")
    e(f"s_cmp_lg_u32 s{S_W}, 0\ns_cbranch_scc1 {LZ}")
    e(off_sgpr_txt)
    e(f"""
    s_add_u32 s{stmp}, s{stmp}, {base}
    v_mov_b32 v{vt[0]}, 0
    v_mov_b32 v{vt[1]}, s{S_NONCE}
    s_mov_b64 exec, 1
    buffer_store_dword v{vt[1]}, v{vt[0]}, {sq(R_WS)}, s{stmp} offen sc1
    s_mov_b64 exec, -1
    {LZ}:
    """)

class Poll:
    def __init__(self, e, n, va, vd, soff, tag):
        self.e, self.n, self.va, self.vd, self.soff, self.tag = e, n, va, vd, soff, tag
    def mask(self): return (1 << self.n) - 1
    def load(self):
        e = self.e
        e(f"s_mov_b64 exec, {self.mask()}") if self.mask() <= 64 else e(f"s_mov_b32 exec_lo, {self.mask()}\ns_mov_b32 exec_hi, 0")
        e(f"buffer_load_dword v{self.vd}, v{self.va}, {sq(R_WS)}, s{self.soff} offen sc1")
        e("s_mov_b64 exec, -1")
    def issue(self, pre=""):
        e = self.e
        LZ = e.label("pi")
        e(f"s_cmp_lg_u32 s{S_W}, 0\ns_cbranch_scc1 {LZ}")
        if pre: e(pre)
        self.load()
        e(f"{LZ}:")
        self.pos = e.vcount
    def check(self, stmp=51, limit=0x8000, wait=True):
        e = self.e
        LZ = e.label("pc")
        e(f"s_cmp_lg_u32 s{S_W}, 0\ns_cbranch_scc1 {LZ}_ok")
        if wait: e.wait_v_since(self.pos)
        else: e("s_waitcnt vmcnt(0)")
        e(f"s_mov_b32 s{stmp}, 0\n{LZ}_chk:")
        e(f"s_mov_b32 exec_lo, {self.mask()}\ns_mov_b32 exec_hi, 0")
        e(f"v_cmp_ne_u32 vcc, s{S_NONCE}, v{self.vd}")
        e("s_mov_b64 exec, -1")
        e(f"""
        s_cmp_eq_u64 vcc, 0
        s_cbranch_scc1 {LZ}_ok
        s_add_u32 s{stmp}, s{stmp}, 1
        s_cmp_ge_u32 s{stmp}, {limit}
        s_cbranch_scc1 {LZ}_ok
        """)
        self.load()
        e(f"s_waitcnt vmcnt(0)\ns_branch {LZ}_chk\n{LZ}_ok:")

def k3_ids(e):
    return late(e, f"""
    s_and_b32 s62, s2, 7
    s_lshr_b32 s63, s2, 3
    s_lshl_b32 s62, s62, 2
    s_and_b32 s{S3_TT}, s63, 3
    s_add_u32 s{S3_TT}, s{S3_TT}, s62
    s_lshr_b32 s{S3_NT}, s63, 2
    s_lshl_b32 s{S3_T0}, s{S3_TT}, 6
    s_and_b32 s{S3_TB}, s{S_W}, 1
    s_lshr_b32 s{S3_DB}, s{S_W}, 1
    s_and_b32 s{S3_DB}, s{S3_DB}, 1
    s_lshr_b32 s{S3_KH}, s{S_W}, 2
    """)

def k23_main(e, opt=None, entry="cold"):
    opt = opt or {}
    XR, WR, NS = K2_XR, K2_WR, K2_NS
    L = 1
    XG, WGI = 2, 4
    XA, XH, WA = 8, 12, 16
    BIAS, STW, STR, GH, CK1, CK2 = 20, 21, 22, 23, 24, 25
    T = 26
    XF, WF, ACC, ZF, U1, GT = 32, 48, 64, 80, V_Z1, 104
    sX, sW, sM0X, sM0W, sT, sT2, sT3 = 48, 49, 52, 53, 55, 56, 57
    t0, t1, t2, t3 = GT, GT + 1, GT + 2, GT + 3
    NCH = 32
    zsc = " sc1" if entry == "k1" else ""
    e(f"""
    v_lshrrev_b32 v{t0}, 3, v{L}
    v_lshrrev_b32 v{t1}, 4, v{L}
    v_and_b32 v{t2}, 7, v{L}
    v_lshlrev_b32 v{XG}, 12, v{t0}
    v_xor_b32 v{t3}, v{t2}, v{t1}
    v_lshlrev_b32 v{t3}, 4, v{t3}
    v_add_u32 v{XG+1}, {8*4096-1024}, v{XG}
    v_add_u32 v{XG}, v{XG}, v{t3}
    v_xor_b32 v{t3}, 64, v{t3}
    v_add_u32 v{XG+1}, v{XG+1}, v{t3}
    v_and_b32 v{t3}, 1, v{t1}
    v_lshlrev_b32 v{t3}, 2, v{t3}
    v_xor_b32 v{t3}, v{t2}, v{t3}
    v_lshlrev_b32 v{t3}, 4, v{t3}
    v_mul_u32_u24 v{WGI}, 1792, v{t0}
    v_add_u32 v{WGI}, v{WGI}, v{t3}
    s_lshl_b32 s{sT}, s{S_W}, 4
    s_add_u32 s{sT}, s{sT}, s{S_ROW0}
    s_lshl_b32 s{sX}, s{sT}, 12
    s_mul_i32 s{sT}, s{S_W}, {8*1792}
    s_lshl_b32 s{sT2}, s{S_J}, 7
    s_add_u32 s{sW}, s{sT}, s{sT2}
    s_add_u32 s{sW}, s{sW}, {WS_Z2}
    s_lshl_b32 s{sM0X}, s{S_W}, 11
    s_add_u32 s{sM0X}, s{sM0X}, {XR}
    s_lshl_b32 s{sM0W}, s{S_W}, 10
    s_add_u32 s{sM0W}, s{sM0W}, {WR}
    s_mov_b32 s60, {F_N}
    s_waitcnt lgkmcnt(0)
    """)
    fin_srds(e, ["wsp", "ws", "bsp", "wout", "wo", "x", "out"])
    e(f"s_load_dword s{S_NONCE}, s[{R_WS}:{R_WS+1}], s60")
    def x_dma(c):
        if c >= NCH: return []
        def pre():
            e(f"s_add_u32 m0, s{sM0X}, {(c % NS) * 16384}")
            e(f"s_add_u32 s{sT}, s{sX}, {c * 128}")
        ops = [pre]
        for i in range(2):
            ops.append(lambda i=i: e.vm(f"buffer_load_dwordx4 v{XG+i}, {sq(R_WSP)}, s{sT} offen offset:{1024*i} lds", ("x", c)))
        return ops
    def w_dma(c):
        if c >= NCH: return []
        def op():
            e(f"s_add_u32 m0, s{sM0W}, {(c % NS) * 8192}")
            e(f"s_add_u32 s{sT2}, s{sW}, {c * 64 * 1792}")
            e.vm(f"buffer_load_dwordx4 v{WGI}, {sq(R_WS)}, s{sT2} offen{zsc} lds", ("w", c))
        return [op]
    npro = opt.get("npro", 5)
    for op in x_dma(0) + w_dma(0): op()
    e.c("TS 1")
    e(f"""
    v_lshlrev_b32 v{t0}, 5, v0
    v_and_b32 v{t1}, 31, v{L}
    v_lshlrev_b32 v{t1}, 1, v{t1}
    s_lshl_b32 s58, s{S_RG}, 5
    s_add_u32 s58, s58, s{S_ROW0}
    s_lshl_b32 s58, s58, 1
    """)
    def u1_load():
        e.vm(f"buffer_load_dwordx4 v[{U1}:{U1+3}], v{t0}, {sq(R_WS)}, s{sT3} offen", "u1")
        e.vm(f"buffer_load_dwordx4 v[{U1+4}:{U1+7}], v{t0}, {sq(R_WS)}, s{sT3} offen offset:16", "u1")
        e.vm(f"buffer_load_ushort v{BIAS}, v{t1}, {sq(R_BSP)}, s58 offen", "u1")
    def frag_addr(rot_txt, xrow_txt, xbase, wbase, XAr, WAr, nstep, step_txt, chreg):
        pass
    n_, h_, r_, qd_, chf_, u_ = GT + 4, GT + 5, GT + 6, GT + 7, GT + 8, GT + 9
    e(f"""
    v_and_b32 v{n_}, 31, v{L}
    v_lshrrev_b32 v{h_}, 5, v{L}
    v_and_b32 v{r_}, 15, v{L}
    v_and_b32 v{qd_}, 3, v{r_}
    v_lshlrev_b32 v{qd_}, 3, v{qd_}
    v_lshrrev_b32 v{r_}, 2, v{r_}
    v_lshrrev_b32 v{chf_}, 4, v{L}
    v_and_b32 v{chf_}, 1, v{chf_}
    v_lshlrev_b32 v{chf_}, 5, v{chf_}
    v_add_u32 v{chf_}, v{chf_}, v{qd_}
    s_lshl_b32 s{sT}, s{S_CH}, 1
    s_add_u32 s{sT}, s{sT}, s{S_RG}
    v_lshlrev_b32 v{u_}, 3, v{h_}
    v_add_u32 v{u_}, v{u_}, v{r_}
    v_lshlrev_b32 v{u_}, 7, v{u_}
    v_add_u32 v{u_}, v{u_}, v{chf_}
    v_lshrrev_b32 v{r_}, 1, v{r_}
    v_xor_b32 v{r_}, s{S_CH}, v{r_}
    v_lshlrev_b32 v{r_}, 6, v{r_}
    v_add_u32 v{u_}, v{u_}, v{r_}
    v_lshrrev_b32 v{qd_}, 1, v{n_}
    v_and_b32 v{qd_}, 7, v{qd_}
    v_lshlrev_b32 v{chf_}, 7, v{n_}
    s_lshl_b32 s{sT2}, s{S_RG}, 12
    s_add_u32 s{sT2}, s{sT2}, {XR}
    v_add_u32 v{chf_}, s{sT2}, v{chf_}
    """)
    for p in range(4):
        e(f"""
        s_add_u32 s{sT2}, s{sT}, {p}
        s_and_b32 s{sT2}, s{sT2}, 3
        s_lshl_b32 s{sT3}, s{sT2}, 1
        v_add_u32 v{r_}, s{sT3}, v{h_}
        v_xor_b32 v{r_}, v{r_}, v{qd_}
        v_lshlrev_b32 v{r_}, 4, v{r_}
        v_add_u32 v{XA+p}, v{chf_}, v{r_}
        s_lshl_b32 s{sT3}, s{sT2}, 11
        s_add_u32 s{sT3}, s{sT3}, {WR}
        v_add_u32 v{WA+p}, s{sT3}, v{u_}
        v_add_u32 v{XH+p}, 0x10000, v{XA+p}
        """)
    e("s_barrier")
    for c in range(1, npro):
        for op in x_dma(c) + w_dma(c): op()
        if c in opt.get("pb", (1, 2, 3)): e("s_barrier")
    e(f"s_lshl_b32 s{sT3}, s2, 14\ns_add_u32 s{sT3}, s{sT3}, {WS_Z1R}")
    u1_load()
    e.c("TS 2")
    dsched = {c: [] for c in range(NCH)}
    nxt = npro
    for c in range(NCH):
        for _ in range(opt.get("dn", 2)):
            if nxt < NCH and nxt <= c + NS - 1: dsched[c].append(nxt); nxt += 1
    assert nxt == NCH

    def x_read(c, p):
        s = c % NS
        a = (XA if s < 4 else XH) + p
        return lambda: e.ds(f"ds_read_b128 v[{XF+4*p}:{XF+4*p+3}], v{a} offset:{(s % 4) * 16384}", ("f", c, p))
    def w_read(c, p):
        ops = []
        for t in range(2):
            d = WF + 4 * p + 2 * t
            ops.append(lambda d=d, t=t: e.ds(f"ds_read_b64_tr_b16 v[{d}:{d+1}], v{WA+p} offset:{(c % NS) * 8192 + t * 512}", ("f", c, p)))
        return ops
    def mfma(c, p):
        cin = "0" if (c == 0 and p == 0) else f"v[{ACC}:{ACC+15}]"
        e(f"v_mfma_f32_32x32x16_bf16 v[{ACC}:{ACC+15}], v[{WF+4*p}:{WF+4*p+3}], v[{XF+4*p}:{XF+4*p+3}], {cin}")

    XG3, WG3, RG3 = 128, 129, 130
    XA3, WA3 = 132, 136
    RA, RW, XRD, XRD2, STW3, STR3, GO = 142, 143, 144, 145, 146, 147, 148
    PA_, PD_ = 150, 151
    T3 = 152
    order = [14 + i for i in range(7)] + list(range(14))
    if opt.get('swap'): order = order[:7] + [k ^ 1 for k in range(14)]
    N3 = 21
    u0, u1_, u2, u3 = T3, T3 + 1, T3 + 2, T3 + 3
    k3_setup = k3_ids(e) + late(e, f"""
    v_lshrrev_b32 v{u0}, 3, v{L}
    v_lshrrev_b32 v{u1_}, 4, v{L}
    v_and_b32 v{u2}, 7, v{L}
    v_and_b32 v{u3}, 1, v{u1_}
    v_lshlrev_b32 v{u3}, 2, v{u3}
    v_xor_b32 v{u3}, v{u2}, v{u3}
    v_lshlrev_b32 v{u3}, 4, v{u3}
    v_mul_u32_u24 v{WG3}, 896, v{u0}
    v_add_u32 v{WG3}, v{WG3}, v{u3}
    s_lshl_b32 s62, s{S3_TB}, 2
    v_add_u32 v{u1_}, s62, v{u1_}
    v_xor_b32 v{u3}, v{u2}, v{u1_}
    v_lshlrev_b32 v{u3}, 4, v{u3}
    v_mul_u32_u24 v{XG3}, 2688, v{u0}
    v_add_u32 v{XG3}, v{XG3}, v{u3}
    v_mul_u32_u24 v{RG3}, 896, v{u0}
    v_add_u32 v{RG3}, v{RG3}, v{u3}
    s_lshl_b32 s62, s{S_W}, 3
    s_add_u32 s63, s62, s{S3_T0}
    s_mul_i32 s{S3_X}, s63, 2688
    s_add_u32 s{S3_X}, s{S3_X}, {WS_HO}
    s_mul_i32 s{S3_R}, s63, 896
    s_mul_i32 s{S3_WW}, s62, 896
    s_lshl_b32 s63, s{S3_NT}, 7
    s_add_u32 s{S3_WW}, s{S3_WW}, s63
    s_add_u32 s{S3_R}, s{S3_R}, s63
    s_lshl_b32 s{S3_M0}, s{S_W}, 10
    v_lshlrev_b32 v{PA_}, 2, v{L}
    v_lshlrev_b32 v196, 4, v0
    v_add_u32 v197, 0x10000, v196
    """)
    n3, h3, r3, qd3, chf3, w3 = T3 + 4, T3 + 5, T3 + 6, T3 + 7, T3 + 8, T3 + 9
    k3_addr = late(e, f"""
    v_and_b32 v{n3}, 31, v{L}
    v_lshrrev_b32 v{h3}, 5, v{L}
    v_and_b32 v{r3}, 15, v{L}
    v_and_b32 v{qd3}, 3, v{r3}
    v_lshlrev_b32 v{qd3}, 3, v{qd3}
    v_lshrrev_b32 v{r3}, 2, v{r3}
    v_lshrrev_b32 v{chf3}, 4, v{L}
    v_and_b32 v{chf3}, 1, v{chf3}
    v_lshlrev_b32 v{chf3}, 5, v{chf3}
    v_add_u32 v{chf3}, v{chf3}, v{qd3}
    v_lshlrev_b32 v{w3}, 3, v{h3}
    v_add_u32 v{w3}, v{w3}, v{r3}
    v_lshlrev_b32 v{w3}, 7, v{w3}
    v_add_u32 v{w3}, v{w3}, v{chf3}
    v_lshrrev_b32 v{r3}, 1, v{r3}
    v_xor_b32 v{r3}, s{S3_DB}, v{r3}
    v_lshlrev_b32 v{r3}, 6, v{r3}
    v_add_u32 v{w3}, v{w3}, v{r3}
    v_lshrrev_b32 v{qd3}, 1, v{n3}
    v_and_b32 v{qd3}, 7, v{qd3}
    s_lshl_b32 s62, s{S3_TB}, 5
    v_add_u32 v{n3}, s62, v{n3}
    v_lshlrev_b32 v{chf3}, 7, v{n3}
    """)
    for p in range(2):
        k3_addr += late(e, f"""
        s_lshl_b32 s62, s{S3_KH}, 1
        s_add_u32 s62, s62, {p}
        s_lshl_b32 s63, s62, 1
        v_add_u32 v{r3}, s63, v{h3}
        v_xor_b32 v{r3}, v{r3}, v{qd3}
        v_lshlrev_b32 v{r3}, 4, v{r3}
        v_add_u32 v{XA3+p}, v{chf3}, v{r3}
        v_add_u32 v{XA3+2+p}, 0x10000, v{XA3+p}
        s_lshl_b32 s63, s62, 11
        v_add_u32 v{WA3+p}, s63, v{w3}
        v_add_u32 v{WA3+2+p}, 0x10000, v{WA3+p}
        v_add_u32 v{WA3+4+p}, 0x20000, v{WA3+p}
        """)
    RED, STG = 0, 16384
    a0, a1, a2 = T3, T3 + 1, T3 + 2
    k3_epi_addr = late(e, f"""
    s_and_b32 s62, s{S_W}, 3
    s_lshl_b32 s62, s62, 12
    s_lshl_b32 s63, s{S3_KH}, 11
    s_add_u32 s60, s62, s63
    s_xor_b32 s63, s63, 2048
    s_add_u32 s61, s62, s63
    v_lshlrev_b32 v{a0}, 4, v{L}
    v_add_u32 v{RA}, s60, v{a0}
    v_add_u32 v{RW}, s61, v{a0}
    v_and_b32 v{a0}, 31, v{L}
    v_lshrrev_b32 v{a1}, 5, v{L}
    s_lshl_b32 s62, s{S3_TB}, 5
    v_add_u32 v{a2}, s62, v{a0}
    v_lshlrev_b32 v{a1}, 3, v{a1}
    s_lshl_b32 s63, s{S3_DB}, 6
    s_lshl_b32 s60, s{S3_KH}, 5
    s_add_u32 s63, s63, s60
    v_lshrrev_b32 v{a0}, 1, v{a0}
    v_and_b32 v{a0}, 7, v{a0}
    v_lshlrev_b32 v{a0}, 4, v{a0}
    v_xor_b32 v{a0}, s63, v{a0}
    v_lshl_add_u32 v{XRD}, v{a2}, 7, v{a0}
    v_add_u32 v{XRD}, v{XRD}, v{a1}
    v_add_u32 v{XRD}, {K3_XS}, v{XRD}
    v_xor_b32 v{XRD2}, 16, v{XRD}
    v_mul_u32_u24 v{STW3}, 144, v{a2}
    v_add3_u32 v{STW3}, v{STW3}, v{a1}, s63
    v_lshrrev_b32 v{a0}, 3, v0
    v_and_b32 v{a1}, 7, v0
    v_lshlrev_b32 v{a1}, 4, v{a1}
    v_mul_u32_u24 v{STR3}, 144, v{a0}
    v_add_u32 v{STR3}, v{STR3}, v{a1}
    v_mul_u32_u24 v{GO}, 896, v{a0}
    v_add_u32 v{GO}, v{GO}, v{a1}
    """)
    XR3, LW3 = 164, 196
    def x3_land(c):
        if not (opt.get("xreg") and c >= 7): return
        off = K3_X[c % 8]
        e.need_v(("x3", c))
        r = XR3 + 4 * (c % 8)
        e.ds(f"ds_write_b128 v{LW3 + (off >> 16)}, v[{r}:{r+3}] offset:{off & 0xffff}", ("xw", c))
        e.need_l(("xw", c))
    def x3_dma(c):
        if opt.get("xreg") and c >= 7:
            def opr():
                r = XR3 + 4 * (c % 8)
                e(f"s_add_u32 s{sT}, s{S3_X}, {order[c] * 128}")
                e.vm(f"buffer_load_dwordx4 v[{r}:{r+3}], v{XG3}, {sq(R_WS)}, s{sT} offen sc1", ("x3", c))
            return [opr]
        def op():
            e(f"s_add_u32 m0, s{S3_M0}, {K3_X[c % 8]}")
            e(f"s_add_u32 s{sT}, s{S3_X}, {order[c] * 128}")
            e.vm(f"buffer_load_dwordx4 v{XG3}, {sq(R_WS)}, s{sT} offen sc1 lds", ("x3", c))
        return [op]
    def w3_dma(c):
        k = order[c]
        def op():
            e(f"s_add_u32 m0, s{S3_M0}, {K3_W[c % 10]}")
            e(f"s_add_u32 s{sT2}, s{S3_WW}, {(k if k < 14 else k - 14) * 64 * 896}")
            e.vm(f"buffer_load_dwordx4 v{WG3}, {sq(R_WOUT if k < 14 else R_WO)}, s{sT2} offen lds", ("w3", c))
        return [op]
    def res_dma():
        e(f"s_add_u32 m0, s{S3_M0}, {K3_XS}")
        e.vm(f"buffer_load_dwordx4 v{RG3}, {sq(R_X)}, s{S3_R} offen lds", "res")
    def x3_read(c, p):
        d = XF + 8 * (c % 2) + 4 * p
        off = K3_X[c % 8]
        return lambda: e.ds(f"ds_read_b128 v[{d}:{d+3}], v{XA3 + 2 * (off >> 16) + p} offset:{off & 0xffff}", ("f3", c))
    def w3_read(c, p):
        ops = []
        off = K3_W[c % 10]
        for t in range(2):
            d = WF + 8 * (c % 2) + 4 * p + 2 * t
            ops.append(lambda d=d, t=t: e.ds(f"ds_read_b64_tr_b16 v[{d}:{d+1}], v{WA3 + 2 * (off >> 16) + p} offset:{(off & 0xffff) + t * 512}", ("f3", c)))
        return ops
    def mfma3(c, p):
        cin = "0" if (c == 0 and p == 0) else f"v[{ACC}:{ACC+15}]"
        b = 8 * (c % 2) + 4 * p
        e(f"v_mfma_f32_32x32x16_bf16 v[{ACC}:{ACC+15}], v[{WF+b}:{WF+b+3}], v[{XF+b}:{XF+b+3}], {cin}")
    pollO = Poll(e, 1, PA_, PD_, 50, "o")
    pollH = Poll(e, 14, PA_, PD_, 50, "h")

    a0, a1, a2 = T, T + 1, T + 2
    setup = late(e, f"""
    v_mov_b32 v{CK1}, {fbits(GELU_K1)}
    v_mov_b32 v{CK2}, {fbits(GELU_K2)}
    v_and_b32 v{a0}, 31, v{L}
    v_lshrrev_b32 v{a1}, 5, v{L}
    s_lshl_b32 s{sT3}, s{S_RG}, 5
    v_add_u32 v{a2}, s{sT3}, v{a0}
    v_lshlrev_b32 v{a2}, 7, v{a2}
    v_lshlrev_b32 v{a1}, 3, v{a1}
    v_add_u32 v{a2}, v{a2}, v{a1}
    v_add_u32 v{a2}, {HSTG}, v{a2}
    v_lshrrev_b32 v{a0}, 1, v{a0}
    v_and_b32 v{a0}, 7, v{a0}
    s_lshl_b32 s{sT3}, s{S_CH}, 2
    v_xor_b32 v{a0}, s{sT3}, v{a0}
    v_lshl_add_u32 v{STW}, v{a0}, 4, v{a2}
    v_lshrrev_b32 v{a0}, 3, v{L}
    v_and_b32 v{a1}, 7, v{L}
    v_lshlrev_b32 v{a2}, 4, v{a1}
    v_mul_u32_u24 v{GH}, 2688, v{a0}
    v_add_u32 v{GH}, v{GH}, v{a2}
    s_lshl_b32 s{sT3}, s{S_W}, 4
    v_add_u32 v{a0}, s{sT3}, v{a0}
    v_lshrrev_b32 v{a2}, 4, v{L}
    v_xor_b32 v{a1}, v{a1}, v{a2}
    v_lshlrev_b32 v{a1}, 4, v{a1}
    v_lshl_add_u32 v{STR}, v{a0}, 7, v{a1}
    v_add_u32 v{STR}, {HSTG}, v{STR}
    v_xor_b32 v{T+3}, 64, v{STR}
    v_xor_b32 v{T}, 16, v{STW}
    v_xor_b32 v{T+1}, 32, v{STW}
    v_xor_b32 v{T+2}, 48, v{STW}
    """)
    gel = []
    for q in range(4):
        z = [ZF + 4 * q + i for i in range(4)]
        t = [GT + 4 * (q % 2) + i for i in range(4)]
        gel.append(lambda q=q: (e.need_v("u1"), e(f"v_lshlrev_b32 v{ZF+4*q}, 16, v{U1+2*q}")))
        gel += late(e, f"""
            v_and_b32 v{ZF+4*q+1}, 0xffff0000, v{U1+2*q}
            v_lshlrev_b32 v{ZF+4*q+2}, 16, v{U1+2*q+1}
            v_and_b32 v{ZF+4*q+3}, 0xffff0000, v{U1+2*q+1}
            """)
        for fmt in ("v_mul_f32 v{t}, v{a}, v{a}", f"v_fma_f32 v{{t}}, v{{t}}, v{CK2}, v{CK1}", "v_mul_f32 v{t}, v{a}, v{t}",
                    "v_exp_f32 v{t}, v{t}", "v_add_f32 v{t}, 1.0, v{t}", "v_rcp_f32 v{t}, v{t}", "v_mul_f32 v{a}, v{a}, v{t}"):
            for i in range(4):
                gel.append(lambda fmt=fmt, i=i, z=z, t=t: e(fmt.format(t=t[i], a=z[i])))
    gel.append(lambda: e(f"v_lshlrev_b32 v{BIAS}, 16, v{BIAS}"))
    gaps = {(c, p): [] for c in range(NCH) for p in range(4)}
    def spread_gaps(ops, a_, b_):
        slots = [(c, p) for c in range(a_[0], b_[0] + 1) for p in range(4) if (c, p) >= tuple(a_) and (c, p) <= tuple(b_)]
        for sl, s_ in zip(spread(ops, len(slots)), slots): gaps[s_] += sl
    spread_gaps(setup, (0, 0), (2, 3))
    spread_gaps(gel, (4, 0), (17, 3))
    spread_gaps(k3_setup, (18, 0), (20, 3))
    spread_gaps(k3_addr, (21, 0), (24, 3))
    spread_gaps(k3_epi_addr, (25, 0), (28, 3))
    gaps[(21, 1)].append(res_dma)
    gaps[(24, 0)].append(lambda: pollO.issue(f"s_lshl_b32 s50, s{S3_TT}, 7\ns_add_u32 s50, s50, {F_O}"))
    pre3 = {27: w3_dma(0), 28: w3_dma(1), 29: x3_dma(0) + x3_dma(1) + w3_dma(2), 30: x3_dma(2) + x3_dma(3) + w3_dma(3),
            31: x3_dma(4) + x3_dma(5) + w3_dma(4) + w3_dma(6) + w3_dma(7)}

    e.need_v([("x", 0), ("w", 0)]); e("s_waitcnt lgkmcnt(0)"); e("s_barrier")
    e.c("TS 3")
    for p in range(4):
        x_read(0, p)()
        for op in w_read(0, p): op()
    dpos = opt.get("dpos", (0, 2))
    tsl = opt.get("ts", (8, 27))
    for c in range(NCH):
        if c in tsl: e.c(f"TS {4 + tsl.index(c)}")
        if c + 1 < NCH: e.need_v([("x", c + 1), ("w", c + 1)])
        if c == 29:
            pollO.check()
            if opt.get("inv"): e("buffer_inv sc1\ns_waitcnt vmcnt(0)")
        e("s_barrier")
        dl = [x_dma(k) + w_dma(k) for k in dsched[c]] + [[], []]
        if c in pre3: dl[0] = dl[0] + pre3[c][:len(pre3[c]) // 2]; dl[1] = dl[1] + pre3[c][len(pre3[c]) // 2:]
        for p in range(4):
            e.need_l(("f", c, p))
            mfma(c, p)
            if c + 1 < NCH:
                x_read(c + 1, p)()
                for f in w_read(c + 1, p): f()
            if p == dpos[0]:
                for f in dl[0]: f()
            if p == dpos[1]:
                for f in dl[1]: f()
            for f in gaps[(c, p)]: f()
    e.c("TS 6")
    BV = GT
    STWS = [STW, T, T + 1, T + 2]
    for q in range(4):
        a = ACC + 4 * q
        for i in range(4): e(f"v_add_f32 v{a+i}, v{a+i}, v{BIAS}")
        for i in range(4): e(f"v_mul_f32 v{a+i}, v{a+i}, v{ZF+4*q+i}")
        e(f"v_cvt_pk_bf16_f32 v{BV+2*q}, v{a}, v{a+1}")
        e(f"v_cvt_pk_bf16_f32 v{BV+2*q+1}, v{a+2}, v{a+3}")
        e.ds(f"ds_write_b64 v{STWS[q]}, v[{BV+2*q}:{BV+2*q+1}]", "stg")
    e(f"""
    s_lshl_b32 s{sT3}, s{S_W}, 4
    s_add_u32 s{sT3}, s{sT3}, s{S_ROW0}
    s_mul_i32 s{sT3}, s{sT3}, 2688
    s_lshl_b32 s58, s{S_J}, 7
    s_add_u32 s{sT3}, s{sT3}, s58
    s_add_u32 s{sT3}, s{sT3}, {WS_HO}
    s_add_u32 s58, s{sT3}, {8*2688}
    """)
    e.need_v([("x3", 0), ("w3", 0), ("x3", 1), ("w3", 1)])
    e.need_l("stg"); e("s_barrier")
    e.ds(f"ds_read_b128 v[{ZF}:{ZF+3}], v{STR}", ("rb", 0))
    e.ds(f"ds_read_b128 v[{ZF+4}:{ZF+7}], v{T+3} offset:1024", ("rb", 1))
    for p in range(2):
        x3_read(0, p)()
        for op in w3_read(0, p): op()
    if opt.get("diag"): e("s_memrealtime s[64:65]")
    for i in range(2):
        e.need_l(("rb", i))
        e.vm(f"buffer_store_dwordx4 v[{ZF+4*i}:{ZF+4*i+3}], v{GH}, {sq(R_WS)}, s{(sT3, 58)[i]} offen {opt.get('stf', 'sc1')}", "st_h")
    if opt.get("rbk"):
        if opt["rbk"] == 1: e("s_waitcnt vmcnt(0)"); e.vq = []
        for i in range(2):
            e.vm(f"buffer_load_dword v{200+i}, v{GH}, {sq(R_WS)}, s{(sT3, 58)[i]} offen sc1", "st_h")
    for op in w3_dma(5) + w3_dma(8) + w3_dma(9): op()
    e.c("TS 7")
    cH = opt.get("ch", 3)
    cX6 = 1
    wq = list(range(10, N3))
    xq = list(range(14, N3))
    def reads3(c):
        rd = []
        for p in range(2): rd += [x3_read(c, p)] + w3_read(c, p)
        return rd
    for c in range(N3):
        dm = []
        if c == 6:
            pollH.issue(f"s_lshr_b32 s50, s{S3_TT}, 1\ns_lshl_b32 s50, s50, 7\ns_add_u32 s50, s50, {F_H}")
            pollH.check(wait=False)
            if opt.get("inv"): e("buffer_inv sc1\ns_waitcnt vmcnt(0)")
            e("s_barrier")
            e.c("TS 8")
            if opt.get("diag"): e("s_memrealtime s[68:69]")
            for k in range(7, 14):
                for f in x3_dma(k): f()
            while wq and wq[0] <= c + 9:
                for f in w3_dma(wq.pop(0)): f()
            e.need_l(("f3", c))
            mfma3(c, 0); mfma3(c, 1)
            x3_land(7)
            if opt.get("allv0"): e.wait_v0()
            e.need_v([("x3", 7), ("w3", 7)])
            e("s_barrier")
            e.c("TS 9")
            if opt.get("diag"): e("s_memrealtime s[70:71]")
            for f in reads3(7): f()
            continue
        if c >= 1 and c + 1 < N3:
            need = [("x3", c + 1), ("w3", c + 1)]
            if c == cH: need.append("st_h")
            x3_land(c + 1)
            if opt.get("allv0") and c >= 7: e.wait_v0()
            e.need_v(need)
            if c == cH and opt.get("hv0"): e.wait_v0()
            if c == cH and opt.get("diag"): e("s_memrealtime s[66:67]")
            e("s_barrier")
            if c == cH:
                if opt.get("fdelay"): e(f"s_sleep {opt['fdelay']}")
                if opt.get("wbl2"):
                    LW = e.label("wb")
                    e(f"s_cmp_lg_u32 s{S_W}, 0\ns_cbranch_scc1 {LW}\nbuffer_wbl2 sc1\ns_waitcnt vmcnt(0)\n{LW}:")
                flag_store(e, f"s_lshl_b32 s62, s{S_MT}, 7\ns_lshl_b32 s63, s{S_J}, 2\ns_add_u32 s62, s62, s63", F_H, vt=(162, 163))
                if opt.get("tsf"): e.c("TS 5")
        if c == cX6: dm += x3_dma(6)
        if c >= 1:
            n = 0
            while wq and wq[0] <= c + 9 and n < 2: dm += w3_dma(wq.pop(0)); n += 1
        if c >= 7:
            n = 0
            while xq and xq[0] <= c + 7 and n < 2: dm += x3_dma(xq.pop(0)); n += 1
        e.need_l(("f3", c))
        rd = reads3(c + 1) if c + 1 < N3 else []
        mfma3(c, 0)
        for f in rd[:3] + dm[:1]: f()
        mfma3(c, 1)
        for f in rd[3:] + dm[1:]: f()
    assert not wq and not xq
    e.c("TS 10")
    e.need_v("res")
    e("s_barrier")
    L0, L1 = e.label("k3a"), e.label("k3b")
    e(f"s_cmp_lg_u32 s{S3_KH}, 0\ns_cbranch_scc1 {L0}")
    e(f"ds_write_b128 v{RW}, v[{ACC+8}:{ACC+11}] offset:{RED}\nds_write_b128 v{RW}, v[{ACC+12}:{ACC+15}] offset:{RED+1024}")
    e(f"s_branch {L1}\n{L0}:")
    e(f"ds_write_b128 v{RW}, v[{ACC}:{ACC+3}] offset:{RED}\nds_write_b128 v{RW}, v[{ACC+4}:{ACC+7}] offset:{RED+1024}")
    for i in range(8): e(f"v_mov_b32 v{ACC+i}, v{ACC+8+i}")
    e(f"{L1}:")
    e.ds(f"ds_read_b64 v[{XF}:{XF+1}], v{XRD}", "xr")
    e.ds(f"ds_read_b64 v[{XF+2}:{XF+3}], v{XRD2}", "xr")
    e("s_waitcnt lgkmcnt(0)"); e.lq = []
    e("s_barrier")
    e.ds(f"ds_read_b128 v[{WF}:{WF+3}], v{RA} offset:{RED}", "rd")
    e.ds(f"ds_read_b128 v[{WF+4}:{WF+7}], v{RA} offset:{RED+1024}", "rd")
    U = T3
    for i in range(4):
        e(f"v_lshlrev_b32 v{U+2*i}, 16, v{XF+i}\nv_and_b32 v{U+2*i+1}, 0xffff0000, v{XF+i}")
    for i in range(8): e(f"v_add_f32 v{ACC+i}, v{ACC+i}, v{U+i}")
    e.need_l("rd")
    for i in range(8): e(f"v_add_f32 v{ACC+i}, v{ACC+i}, v{WF+i}")
    for i in range(4): e(f"v_cvt_pk_bf16_f32 v{U+i}, v{ACC+2*i}, v{ACC+2*i+1}")
    e.ds(f"ds_write_b64 v{STW3}, v[{U}:{U+1}] offset:{STG}", "stg")
    e.ds(f"ds_write_b64 v{STW3}, v[{U+2}:{U+3}] offset:{STG+16}", "stg")
    e(f"""
    s_mul_i32 s{sT}, s{S3_T0}, 896
    s_lshl_b32 s{sT2}, s{S3_NT}, 7
    s_add_u32 s{sT}, s{sT}, s{sT2}
    """)
    e.need_l("stg"); e("s_barrier")
    e.ds(f"ds_read_b128 v[{XF}:{XF+3}], v{STR3} offset:{STG}", "rb")
    e.need_l("rb")
    e.vm(f"buffer_store_dwordx4 v[{XF}:{XF+3}], v{GO}, {sq(R_OUT)}, s{sT} offen", "st")
    if opt.get("diag"):
        e(f"""
        s_getreg_b32 s72, hwreg(HW_REG_XCC_ID)
        s_getreg_b32 s73, hwreg(HW_REG_HW_ID)
        s_waitcnt lgkmcnt(0)
        v_mov_b32 v8, s64
        v_mov_b32 v9, s66
        v_mov_b32 v10, s68
        v_mov_b32 v11, s70
        v_mov_b32 v12, s72
        v_mov_b32 v13, s73
        v_mov_b32 v14, 0
        v_mov_b32 v15, 0
        s_lshl_b32 s60, s2, 3
        s_add_u32 s60, s60, s{S_W}
        s_lshl_b32 s60, s60, 5
        s_add_u32 s60, s60, 0x1520000
        s_mov_b64 exec, 1
        buffer_store_dwordx4 v[8:11], v14, {sq(R_WS)}, s60 offen
        buffer_store_dwordx4 v[12:15], v14, {sq(R_WS)}, s60 offen offset:16
        s_mov_b64 exec, -1
        """)
```

```python
import sys
from g2common import *
import g3k1, g3k2, g4k23
from g3k1 import k1_main, k1_aux, K1_LDS
from g3k2 import k2_attn
from g4k23 import *
import hz
from gen4 import start
from gen5 import aux_code_pf

OPT = {}
def gen_k1():
    e = E("k1_kernel", (256, 1, 1), (512, 1, 1), K1_LDS, vgpr=256, sgpr=96, accum=144)
    start(e, "L_end_k1", "L_aux_k1", srds=["x", "win", "wqkv", "ws"], dbg=True, pf=(64, 70))
    tile_ids(e)
    k1_main(e, fused=False, opt=OPT.get("k1", {}))
    e(f"""
    s_lshl_b32 s60, s2, 3
    s_add_u32 s60, s60, s{S_W}
    s_cmp_lg_u32 s60, 0
    s_cbranch_scc1 L_fin_k1
    v_mov_b32 v2, 0
    v_mov_b32 v3, s{S_NONCE}
    s_mov_b32 s60, {F_N}
    s_mov_b64 exec, 1
    buffer_store_dword v3, v2, {sq(R_WS)}, s60 offen
    s_mov_b64 exec, -1
    """)
    e("s_branch L_fin_k1")
    e("L_aux_k1:")
    e.lq, e.vq = [], []
    k1_aux(e)
    aux_code_pf(e, "k1_kernel", "L_end_k23")
    e("s_waitcnt vmcnt(0)")
    e("L_fin_k1:")
    e("L_end_k1:")
    e("s_endpgm")
    return e
def aux23(e, opt):
    e(f"s_mov_b32 s60, {F_N}\ns_waitcnt lgkmcnt(0)\ns_load_dword s{S_NONCE}, s[{R_WS}:{R_WS+1}], s60")
    o = dict(opt); o["stage_o"] = 1
    k2_attn(e, fused=False, opt=o)
    fin_srds(e, ["wout", "wo"])
    if opt.get("rbk"):
        e("s_waitcnt vmcnt(0)\ns_mov_b32 exec_hi, 0x00ffffff")
        for i in range(8):
            e(f"buffer_load_dword v{60+i}, v244, {sq(R_WS)}, s52 offen sc1")
            if i < 7: e("s_sub_u32 s52, s52, 2688")
        e("s_mov_b32 exec_hi, -1")
    e("s_waitcnt vmcnt(0) lgkmcnt(0)\ns_barrier")
    if opt.get("fdelay"): e(f"s_sleep {opt['fdelay']}")
    flag_store(e, "s_sub_u32 s62, s2, 224\ns_lshl_b32 s62, s62, 7", F_O, vt=(28, 29))
    if not opt.get("nopf3"):
        e(f"""
        s_sub_u32 s60, s2, 224
        s_lshr_b32 s60, s60, 3
        v_lshlrev_b32 v2, 7, v0
        """)
        for srd, sz in ((R_WOUT, SZ_WOUT), (R_WO, SZ_WO)):
            q = sz // 4
            e(f"s_mul_i32 s61, s60, {q}")
            n = -(-q // 65536)
            for i in range(n):
                last = q - i * 65536
                if last < 65536: e(f"v_cmp_gt_u32 vcc, {last}, v2\ns_and_b64 exec, exec, vcc")
                e(f"buffer_load_dword v{30+i+(8 if srd == R_WO else 0)}, v2, {sq(srd)}, s61 offen")
                e(f"s_add_u32 s61, s61, 65536")
            e("s_mov_b64 exec, -1")
        e("s_waitcnt vmcnt(0)")
def gen_k23():
    e = E("k23_kernel", (256, 1, 1), (512, 1, 1), K23_LDS, vgpr=256, sgpr=102, accum=256)
    start(e, "L_end_k23", "L_aux_k23", srds=["wsp", "ws", "bsp", "wout", "wo", "x", "out"], pf=(120, 124))
    tile_ids(e)
    k23_main(e, opt=OPT.get("k23", {}))
    e("s_branch L_fin_k23")
    e("L_aux_k23:")
    e.lq, e.vq = [], []
    aux23(e, OPT.get("k23", {}))
    e("L_fin_k23:")
    if OPT.get("recn"):
        e(f"""
        v_mov_b32 v2, s2
        v_lshlrev_b32 v2, 2, v2
        v_mov_b32 v3, s{S_NONCE}
        s_mov_b32 s60, 0x1518000
        buffer_store_dword v3, v2, {sq(R_WS)}, s60 offen
        """)
    e("L_end_k23:")
    e("s_endpgm")
    return e
def kernels():
    ks = [gen_k1(), gen_k23()]
    for k in ks:
        n, pend = hz.fix_kernel(k, verbose=OPT.get("hzv", False))
        print(k.name, "pads", n, "pend", len(pend), file=sys.stderr)
    return ks
if __name__ == "__main__":
    out = sys.argv[1] if len(sys.argv) > 1 else "n7.s"
    if len(sys.argv) > 2: OPT.update(eval(sys.argv[2]))
    open(out, "w").write(build(kernels(), header=HEADER))
    print("wrote", out)
```

```python
from g2common import *

K1_XR, K1_WR, K1_ST, K1_ST2, K1_TAB = 0, 65536, 131072, 149504, 159744
K1_NON = K1_TAB + 3072
K1_LDS = K1_NON + 64
V_Z1 = 96
WS_PART = 0x1400000
BARS = (0, 1, 2, 3, 4, 5, 6, 7, 9, 11, 13, 14, 16, 18, 20, 21, 23, 25, 27)


def k1_main(e, fused=False, opt=None):
    opt = opt or {}
    if "tsg" in opt:
        _c = e.c
        def c2(t):
            if t.startswith("TS ") and not t.endswith(" "): return
            _c(t)
        e.c = c2
    bars = opt.get("bars", BARS)
    XR, WR, ST, ST2, TAB, NON = K1_XR, K1_WR, K1_ST, K1_ST2, K1_TAB, K1_NON
    RS, CSP, ZSP = ST2, TAB, TAB + 1024
    XSLOT = (0, 16384, 32768, 49152, ST, 0, 16384)
    STZ = XR
    L = 1
    XG, WGI, WGQ, WGQ2 = 2, 4, 5, 6
    CSW = 7
    XA, WA = 8, 12
    WB = XA
    STWZ, STRZ = WA, WA + 1
    SEL, CSA = 16, 20
    S_, SS_, ONE, GA, GB, RINV, R_, CSPR = 24, 25, 26, 27, 28, 29, 30, 31
    WF, PK, PK2, T = 32, V_Z1, 104, 112
    v4 = opt.get("v4")
    KINDS = ("z2", "q2", "q", "z1") if v4 else ("z2", "z1", "q", "q2")
    ACCS = (64, 80, 48, 80)
    if v4: STWZ, STRZ = XA, XA + 1
    GRAM, SX = 48, T
    RB = 120
    STW, STR, GZ, GQ = 128, 129, 130, 131
    CB, CA = 132, 136
    RSR, RSW, PLA, ZA = 140, 141, 142, 143
    XA4 = PK
    PL = 64
    sX, sWz2, sWz1, sWq, sM0X, sM0W, sM0W2, sT, sT2, sT3 = 48, 49, 50, 51, 52, 53, 54, 55, 56, 57
    sU, sV = 60, 61
    t0, t1, t2, t3 = T, T + 1, T + 2, T + 3

    e(f"""
    v_lshrrev_b32 v{t0}, 3, v{L}
    v_lshrrev_b32 v{t1}, 4, v{L}
    v_and_b32 v{t2}, 7, v{L}
    v_mul_u32_u24 v{XG}, 896, v{t0}
    v_xor_b32 v{t3}, v{t2}, v{t1}
    v_lshlrev_b32 v{t3}, 4, v{t3}
    v_add_u32 v{XG+1}, {8*896-1024}, v{XG}
    v_add_u32 v{XG}, v{XG}, v{t3}
    v_xor_b32 v{t3}, 64, v{t3}
    v_add_u32 v{XG+1}, v{XG+1}, v{t3}
    v_and_b32 v{t3}, 1, v{t1}
    v_lshlrev_b32 v{t3}, 2, v{t3}
    v_xor_b32 v{t3}, v{t2}, v{t3}
    v_lshlrev_b32 v{t3}, 4, v{t3}
    v_mul_u32_u24 v{WGI}, 3584, v{t0}
    v_add_u32 v{WGI}, v{WGI}, v{t3}
    s_lshl_b32 s{sT}, s{S_W}, 4
    s_add_u32 s{sT}, s{sT}, s{S_ROW0}
    s_mul_i32 s{sX}, s{sT}, 896
    s_mul_i32 s{sT}, s{S_W}, {8*3584}
    s_lshl_b32 s{sT2}, s{S_J}, 7
    s_add_u32 s{sWz1}, s{sT}, s{sT2}
    s_add_u32 s{sWz2}, s{sWz1}, 1792
    s_lshl_b32 s{sM0X}, s{S_W}, 11
    s_add_u32 s{sM0X}, s{sM0X}, {XR}
    s_lshl_b32 s{sM0W}, s{S_W}, 10
    s_add_u32 s{sM0W}, s{sM0W}, {WR}
    s_waitcnt lgkmcnt(0)
    """)
    fin_srds(e, ["x", "win"])

    def x_dma(c):
        if c >= 7: return []
        def pre():
            e(f"s_add_u32 m0, s{sM0X}, {XSLOT[c]}")
            e(f"s_add_u32 s{sT}, s{sX}, {c * 128}")
        ops = [pre]
        for i in range(2):
            ops.append(lambda i=i: e.vm(f"buffer_load_dwordx4 v{XG+i}, {sq(R_X)}, s{sT} offen offset:{1024*i} lds", ("x", c)))
        return ops
    def w_dma(g):
        if g >= 28: return []
        ph, c = divmod(g, 7)
        slot = g % 8
        if KINDS[ph] != "q2":
            base, pitch, vo, srd = {"z2": (sWz2, 3584, WGI, R_WIN), "z1": (sWz1, 3584, WGI, R_WIN), "q": (sWq, 2688, WGQ, R_WQKV)}[KINDS[ph]]
            def op():
                e(f"s_add_u32 m0, s{sM0W}, {slot * 8192}")
                e(f"s_add_u32 s{sT2}, s{base}, {c * 64 * pitch}")
                e.vm(f"buffer_load_dwordx4 v{vo}, {sq(srd)}, s{sT2} offen lds", ("w", g))
        else:
            def op():
                e(f"s_add_u32 m0, s{sM0W2}, {slot * 8192}")
                e(f"s_add_u32 s{sT2}, s{sWq}, {c * 64 * 2688 + 128}")
                e("s_mov_b32 exec_hi, 0")
                e.vm(f"buffer_load_dwordx4 v{WGQ2}, {sq(R_WQKV)}, s{sT2} offen lds", ("w", g))
                e("s_mov_b32 exec_hi, -1")
        return [op]
    for op in x_dma(0) + w_dma(0) + x_dma(1) + w_dma(1): op()
    e.c("TS 1")
    fin_srds(e, ["wqkv", "ws"])
    LN = e.label("non")
    e(f"""
    s_lshl_b32 s{sT}, s2, 3
    s_add_u32 s{sT}, s{sT}, s{S_W}
    s_cmp_lg_u32 s{sT}, 1
    s_cbranch_scc1 {LN}
    s_memrealtime s[{sU}:{sU+1}]
    v_mov_b32 v{t1}, 0
    s_waitcnt lgkmcnt(0)
    s_or_b32 s{sU}, s{sU}, 1
    v_mov_b32 v{t0}, s{sU}
    s_mov_b64 exec, 1
    global_store_dword v{t1}, v{t0}, s[{R_DBG}:{R_DBG+1}] sc1
    s_mov_b64 exec, -1
    {LN}:
    """)
    n_, h_, r_, qd_, chf_, u_, v_ = T, T + 1, T + 2, T + 3, T + 4, T + 5, T + 6
    QW = RB + 7
    e(f"""
    v_and_b32 v{n_}, 31, v{L}
    v_lshrrev_b32 v{h_}, 5, v{L}
    v_and_b32 v{r_}, 15, v{L}
    v_and_b32 v{qd_}, 3, v{r_}
    v_lshlrev_b32 v{qd_}, 3, v{qd_}          ; quad*8
    v_lshrrev_b32 v{r_}, 2, v{r_}            ; r
    v_lshrrev_b32 v{chf_}, 4, v{L}
    v_and_b32 v{chf_}, 1, v{chf_}
    v_and_b32 v{u_}, 15, v{L}
    v_cmp_eq_u32 vcc, v{u_}, v{chf_}         ; selector: m == g&1
    v_mov_b32 v{ONE}, 0x3f803f80
    v_lshlrev_b32 v{chf_}, 5, v{chf_}
    v_add_u32 v{chf_}, v{chf_}, v{qd_}
    v_cndmask_b32 v{SEL}, 0, v{ONE}, vcc
    v_cndmask_b32 v{SEL+1}, 0, v{ONE}, vcc
    v_cndmask_b32 v{SEL+2}, 0, v{ONE}, vcc
    v_cndmask_b32 v{SEL+3}, 0, v{ONE}, vcc
    s_lshl_b32 s{sT}, s{S_CH}, 1
    s_add_u32 s{sT}, s{sT}, s{S_RG}          ; rotation
    v_lshlrev_b32 v{u_}, 3, v{h_}
    v_add_u32 v{u_}, v{u_}, v{r_}            ; 8h + r
    v_lshlrev_b32 v{QW}, 6, v{u_}
    v_add_u32 v{QW}, v{QW}, v{chf_}          ; q2: (8h+r)*64 + colhalf*32 + quad*8
    v_lshlrev_b32 v{u_}, 7, v{u_}
    v_add_u32 v{u_}, v{u_}, v{chf_}
    v_lshrrev_b32 v{r_}, 1, v{r_}
    v_xor_b32 v{r_}, s{S_CH}, v{r_}          ; ch ^ ((r>>1)&1)
    v_lshlrev_b32 v{r_}, 6, v{r_}
    v_add_u32 v{u_}, v{u_}, v{r_}
    v_lshrrev_b32 v{qd_}, 1, v{n_}
    v_and_b32 v{qd_}, 7, v{qd_}              ; (n>>1)&7
    v_lshlrev_b32 v{chf_}, 7, v{n_}          ; n*128
    s_lshl_b32 s{sT2}, s{S_RG}, 12
    s_add_u32 s{sT2}, s{sT2}, {XR}
    v_add_u32 v{chf_}, s{sT2}, v{chf_}
    """)
    for p in range(4):
        e(f"""
        s_add_u32 s{sT2}, s{sT}, {p}
        s_and_b32 s{sT2}, s{sT2}, 3              ; step
        s_lshl_b32 s{sT3}, s{sT2}, 1
        v_add_u32 v{r_}, s{sT3}, v{h_}
        v_xor_b32 v{r_}, v{r_}, v{qd_}
        v_lshlrev_b32 v{r_}, 4, v{r_}
        v_add_u32 v{XA+p}, v{chf_}, v{r_}
        s_lshl_b32 s{sT3}, s{sT2}, 11
        s_add_u32 s{sT3}, s{sT3}, {WR}
        v_add_u32 v{WA+p}, s{sT3}, v{u_}
        """)
    for op in x_dma(2) + w_dma(2) + x_dma(3) + x_dma(4): op()
    e.c("TS 2")

    def late(txt):
        return [lambda l=l: e(l) for l in txt.strip("\n").split("\n") if l.strip()]
    a0, a1, a2 = RB, RB + 1, RB + 2
    setup1 = late(f"""
    v_add_u32 v{XA4}, {ST}, v{XA}
    v_add_u32 v{XA4+1}, {ST}, v{XA+1}
    v_add_u32 v{XA4+2}, {ST}, v{XA+2}
    v_add_u32 v{XA4+3}, {ST}, v{XA+3}
    v_and_b32 v{a0}, 31, v{L}
    v_lshrrev_b32 v{a1}, 5, v{L}
    s_lshl_b32 s{sT3}, s{S_RG}, 5
    v_add_u32 v{a2}, s{sT3}, v{a0}
    v_lshlrev_b32 v{RSR}, 3, v{a2}
    v_lshl_add_u32 v{ZA}, v{a1}, 2, v{RSR}
    v_mul_u32_u24 v{PLA}, 144, v{a2}
    v_add_u32 v{RSR}, {RS}, v{RSR}
    s_lshl_b32 s{sT3}, s{S_CH}, 10
    v_add_u32 v{RSW}, s{sT3}, v{RSR}
    v_lshlrev_b32 v{a1}, 3, v{a1}
    s_lshl_b32 s{sT3}, s{S_CH}, 6
    s_add_u32 s{sT3}, s{sT3}, {ST}
    v_add3_u32 v{STW}, v{PLA}, v{a1}, s{sT3}
    v_lshlrev_b32 v{a0}, 2, v{a0}
    s_lshl_b32 s{sT3}, s{S_CH}, 7
    s_add_u32 s{sT3}, s{sT3}, {CSP}
    v_add_u32 v{CSPR}, s{sT3}, v{a0}
    s_lshl_b32 s58, s{S_RG}, 8
    s_add_u32 s{sT3}, s{sT3}, s58
    v_lshlrev_b32 v{a0}, 2, v{L}
    v_add_u32 v{CSW}, s{sT3}, v{a0}
    v_lshrrev_b32 v{a0}, 3, v{L}
    v_and_b32 v{a1}, 7, v{L}
    v_lshlrev_b32 v{a1}, 4, v{a1}
    v_mul_u32_u24 v{GZ}, {128 if opt.get("tm") else 1792}, v{a0}
    v_add_u32 v{GZ}, v{GZ}, v{a1}
    v_mul_u32_u24 v{GQ}, 2688, v{a0}
    v_add_u32 v{GQ}, v{GQ}, v{a1}
    s_lshl_b32 s{sT3}, s{S_W}, 4
    v_add_u32 v{a0}, s{sT3}, v{a0}
    v_mul_u32_u24 v{STR}, 144, v{a0}
    v_add_u32 v{STR}, v{STR}, v{a1}
    v_add_u32 v{STR}, {ST}, v{STR}
    v_mov_b32 v{CB+2}, 0
    v_mov_b32 v{CB+3}, 0
    v_mov_b32 v{CA+2}, 0
    v_mov_b32 v{CA+3}, 0
    v_mov_b32 v{S_}, 0
    v_mov_b32 v{SS_}, 0
    """)
    setup_q = late(f"""
    v_lshrrev_b32 v{a0}, 3, v{L}
    v_lshrrev_b32 v{a1}, 4, v{L}
    v_and_b32 v{a1}, 1, v{a1}
    v_lshlrev_b32 v{a1}, 2, v{a1}
    v_and_b32 v{a2}, 7, v{L}
    v_xor_b32 v{a1}, v{a2}, v{a1}
    v_lshlrev_b32 v{a1}, 4, v{a1}
    v_mul_u32_u24 v{WGQ}, 2688, v{a0}
    v_add_u32 v{WGQ}, v{WGQ}, v{a1}
    v_lshrrev_b32 v{WGQ2}, 2, v{L}
    v_mul_u32_u24 v{WGQ2}, 2688, v{WGQ2}
    v_and_b32 v{a0}, 3, v{L}
    v_lshlrev_b32 v{a0}, 4, v{a0}
    v_add_u32 v{WGQ2}, v{WGQ2}, v{a0}
    s_mul_i32 s{sT3}, s{S_W}, {8*2688}
    s_mul_i32 s58, s{S_J}, 192
    s_add_u32 s{sWq}, s{sT3}, s58
    s_lshl_b32 s{sM0W2}, s{S_W}, 9
    s_add_u32 s{sM0W2}, s{sM0W2}, {WR}
    """)
    def setup_wb(ps=range(4)):
        ops = []
        for p in ps:
            ops += late(f"""
            s_lshl_b32 s{sT3}, s{S_CH}, 1
            s_add_u32 s{sT3}, s{sT3}, s{S_RG}
            s_add_u32 s{sT3}, s{sT3}, {p}
            s_and_b32 s{sT3}, s{sT3}, 3
            s_lshl_b32 s{sT3}, s{sT3}, 10
            s_add_u32 s{sT3}, s{sT3}, {WR}
            v_add_u32 v{WB+p}, s{sT3}, v{QW}
            """)
        return ops

    def xfr(c, p):
        b = (4*c+p)*4
        return f"v[{144+b}:{144+b+3}]" if fused else f"a[{b}:{b+3}]"
    def x_read(c, p):
        if c == 4: return lambda: e.ds(f"ds_read_b128 {xfr(c, p)}, v{XA4+p}", ("xf", c, p))
        return lambda: e.ds(f"ds_read_b128 {xfr(c, p)}, v{XA+p} offset:{XSLOT[c]}", ("xf", c, p))
    def w_read(g, p):
        if g >= 28: return []
        q2 = KINDS[g // 7] == "q2"
        ops = []
        for t in range(2):
            d = WF + 4 * p + 2 * t
            a = (WB if q2 else WA) + p
            off = (g % 8) * 8192 + t * (256 if q2 else 512)
            ops.append(lambda d=d, a=a, off=off: e.ds(f"ds_read_b64_tr_b16 v[{d}:{d+1}], v{a} offset:{off}", ("wf", g, p)))
        return ops
    def mfma(g, p):
        ph, c = divmod(g, 7)
        acc = ACCS[ph]
        a = WF + 4 * p
        b = xfr(c, p)
        cin = "0" if (c == 0 and p == 0) else f"v[{acc}:{acc+15}]"
        e(f"v_mfma_f32_32x32x16_bf16 v[{acc}:{acc+15}], v[{a}:{a+3}], {b}, {cin}")
        if p == 0 and not opt.get("nocs"):
            cc = "0" if c == 0 else f"v[{CSA}:{CSA+3}]"
            e(f"v_mfma_f32_16x16x32_bf16 v[{CSA}:{CSA+3}], v[{SEL}:{SEL+3}], v[{a}:{a+3}], {cc}")
        if ph == 0 and p < 2 and not opt.get("nostats"):
            first = (c == 0 and p == 0)
            e(f"v_mfma_f32_32x32x16_bf16 v[{GRAM}:{GRAM+15}], {b}, {b}, {'0' if first else f'v[{GRAM}:{GRAM+15}]'}")
            e(f"v_mfma_f32_16x16x32_bf16 v[{SX}:{SX+3}], v[{SEL}:{SEL+3}], {b}, {'0' if first else f'v[{SX}:{SX+3}]'}")
    def cs_put():
        e("s_mov_b64 exec, 0xffff")
        e.ds(f"ds_write2_b32 v{CSW}, v{CSA}, v{CSA+1} offset0:0 offset1:16", "put")
        e("s_mov_b64 exec, -1")
    def mask(val32):
        e(f"s_mov_b32 vcc_lo, {val32}\ns_mov_b32 vcc_hi, {val32}")
    def rs_put():
        G = GRAM
        e("s_mov_b64 exec, 0xffff")
        e.ds(f"ds_write2_b32 v{RSW}, v{SX}, v{SX+1} offset0:0 offset1:32", "put")
        e("s_mov_b64 exec, -1")
        for lvl, m in enumerate((0xAAAAAAAA, 0xCCCCCCCC, 0xFF00FF00, 0xFFFF0000)):
            mask(m)
            st = 1 << lvl
            for j in range(0, 16, 2 * st):
                e(f"v_cndmask_b32 v{G+j}, v{G+j}, v{G+j+st}, vcc")
        e("s_mov_b32 exec_lo, 0x0F0F0F0F\ns_mov_b32 exec_hi, 0xF0F0F0F0")
        e.ds(f"ds_write_b32 v{RSW}, v{G} offset:4", "put")
        e("s_mov_b64 exec, -1")
    def hilo_A(src):
        return late(f"""
        v_cvt_pk_bf16_f32 v{CA}, v{src}, v{src}
        v_lshlrev_b32 v{CA+1}, 16, v{CA}
        v_sub_f32 v{CA+1}, v{src}, v{CA+1}
        v_cvt_pk_bf16_f32 v{CA+1}, v{CA+1}, v{CA+1}
        """)
    def cs_reduce(ph):
        r = RB
        g1 = [lambda: e.ds(f"ds_read2st64_b32 v[{r}:{r+1}], v{CSPR} offset0:0 offset1:1", ("cr", ph)),
              lambda: e.ds(f"ds_read2st64_b32 v[{r+2}:{r+3}], v{CSPR} offset0:2 offset1:3", ("cr", ph))]
        g2 = [lambda: (e.need_l(("cr", ph)), e(f"v_add_f32 v{r}, v{r}, v{r+1}")),
              lambda: e(f"v_add_f32 v{r+2}, v{r+2}, v{r+3}"),
              lambda: e(f"v_add_f32 v{r}, v{r}, v{r+2}")] + hilo_A(r)
        acc = ACCS[ph]
        corr = [lambda: e(f"v_mfma_f32_32x32x16_bf16 v[{acc}:{acc+15}], v[{CA}:{CA+3}], v[{CB}:{CB+3}], v[{acc}:{acc+15}]")]
        return g1, g2, corr
    def rowstat_ops():
        a, b = T, T + 1
        rd = [lambda: e.ds(f"ds_read_b64 v[{a}:{b}], v{RSR}", "rs"), lambda: e.ds(f"ds_read_b64 v[{a+2}:{b+2}], v{RSR} offset:1024", "rs")]
        seq = f"""
            v_add_f32 v{b}, v{b}, v{b+2}
            v_mul_f32 v{a}, {fbits(-1.0/448)}, v{a}
            v_mul_f32 v{b}, {fbits(1.0/448)}, v{b}
            v_fma_f32 v{b}, -v{a}, v{a}, v{b}
            v_max_f32 v{b}, 0, v{b}
            v_add_f32 v{b}, {fbits(1e-5)}, v{b}
            v_rsq_f32 v{R_}, v{b}
            v_cvt_pk_bf16_f32 v{CB}, v{a}, v{a}
            v_lshlrev_b32 v{CB}, 16, v{CB}
            v_sub_f32 v{CB}, v{a}, v{CB}
            v_cvt_pk_bf16_f32 v{CB}, v{a}, v{CB}
            s_mov_b32 vcc_lo, -1
            s_mov_b32 vcc_hi, 0
            v_cndmask_b32 v{CB}, 0, v{CB}, vcc
            v_mov_b32 v{CB+1}, v{CB}
            v_mul_f32 v{RINV}, v{b}, v{R_}
            v_mul_f32 v{GA}, {fbits(GELU_K1)}, v{R_}
            v_mul_f32 v{GB}, v{R_}, v{R_}
            v_mul_f32 v{GB}, v{GB}, v{R_}
            v_mul_f32 v{GB}, {fbits(GELU_K2)}, v{GB}
            """
        ops = [lambda: (e.need_l("rs"), e(f"v_add_f32 v{a}, v{a}, v{a+2}"))] + late(seq)
        return rd, ops
    def epi_ops(acc, gelu, pk):
        ops = []
        for q in range(4):
            a = [acc + 4 * q + i for i in range(4)]
            t = [T + 4 * (q % 2) + i for i in range(4)]
            if gelu:
                for fmt in ("v_mul_f32 v{t}, v{a}, v{a}", f"v_fma_f32 v{{t}}, v{{t}}, v{GB}, v{GA}", "v_mul_f32 v{t}, v{a}, v{t}",
                            "v_exp_f32 v{t}, v{t}", f"v_fma_f32 v{{t}}, v{{t}}, v{RINV}, v{RINV}", "v_rcp_f32 v{t}, v{t}",
                            "v_mul_f32 v{a}, v{a}, v{t}"):
                    for i in range(4):
                        ops.append(lambda fmt=fmt, i=i, a=a, t=t: e(fmt.format(t=t[i], a=a[i])))
            else:
                for i in range(4):
                    ops.append(lambda i=i, a=a: e(f"v_mul_f32 v{a[i]}, v{a[i]}, v{R_}"))
            ops.append(lambda a=a, q=q: e(f"v_cvt_pk_bf16_f32 v{pk+2*q}, v{a[0]}, v{a[1]}"))
            ops.append(lambda a=a, q=q: e(f"v_cvt_pk_bf16_f32 v{pk+2*q+1}, v{a[2]}, v{a[3]}"))
        return ops
    def stage_w(pk, addr, tag):
        return [lambda q=q: e.ds(f"ds_write_b64 v{addr}, v[{pk+2*q}:{pk+2*q+1}] offset:{q*16}", tag) for q in range(4)]
    def readback(straddr, rb, gaddr, pitch, base_imm, jmul, tag, sb, n=2, stp=144):
        rds = []
        for i in range(n):
            rds.append(lambda i=i: e.ds(f"ds_read_b128 v[{rb+4*i}:{rb+4*i+3}], v{straddr} offset:{i*8*stp}", (tag, i)))
        base = late(f"""
            s_lshl_b32 s{sb}, s{S_W}, 4
            s_add_u32 s{sb}, s{sb}, s{S_ROW0}
            s_mul_i32 s{sb}, s{sb}, {pitch}
            s_mul_i32 s{sT3}, s{S_J}, {jmul}
            s_add_u32 s{sb}, s{sb}, s{sT3}
            s_add_u32 s{sb}, s{sb}, {base_imm}
            """)
        def basef():
            for f in base: f()
        sts = [basef]
        sc = " sc1" if fused else ""
        for i in range(n):
            def st(i=i):
                e.need_l((tag, i))
                if i: e(f"s_add_u32 s{sb}, s{sb}, {8*pitch}")
                e.vm(f"buffer_store_dwordx4 v[{rb+4*i}:{rb+4*i+3}], v{gaddr}, {sq(R_WS)}, s{sb} offen{sc}", "st_" + tag)
            sts.append(st)
        return rds, sts

    NV, NA = RB + 4, RB + 5
    npos = [0]
    def non_load():
        LZ = e.label("nl")
        e(f"""
        v_mov_b32 v{NA}, 0
        s_cmp_lg_u32 s{S_W}, 0
        s_cbranch_scc1 {LZ}
        global_load_dword v{NV}, v{NA}, s[{R_DBG}:{R_DBG+1}] sc1
        {LZ}:
        """)
        npos[0] = e.vcount
    def non_put():
        LZ = e.label("np")
        e(f"s_cmp_lg_u32 s{S_W}, 0\ns_cbranch_scc1 {LZ}")
        e.wait_v_since(npos[0])
        e(f"""
        s_mov_b32 s{sU}, 0
        {LZ}_chk:
        v_readfirstlane_b32 s{S_NONCE}, v{NV}
        s_cmp_lg_u32 s{S_NONCE}, 0
        s_cbranch_scc1 {LZ}_ok
        s_add_u32 s{sU}, s{sU}, 1
        s_cmp_ge_u32 s{sU}, 0x40000
        s_cbranch_scc1 {LZ}_ok
        global_load_dword v{NV}, v{NA}, s[{R_DBG}:{R_DBG+1}] sc1
        s_waitcnt vmcnt(0)
        s_branch {LZ}_chk
        {LZ}_ok:
        v_mov_b32 v{NA}, {NON}
        ds_write_b32 v{NA}, v{NV}
        s_waitcnt lgkmcnt(0)
        {LZ}:
        """)
    non_get = [lambda: e(f"v_mov_b32 v{NA}, {NON}"), lambda: e.ds(f"ds_read_b32 v{NV}, v{NA}", "non")]
    non_fin = [lambda: (e.need_l("non"), e(f"v_readfirstlane_b32 s{S_NONCE}, v{NV}"))]

    Z0 = RB + 4
    def zs_local():
        ops = []
        for i in range(8):
            ops.append(lambda i=i: e(f"v_dot2c_f32_bf16 v{S_}, v{PK2+i}, v{ONE}"))
            ops.append(lambda i=i: e(f"v_dot2c_f32_bf16 v{SS_}, v{PK2+i}, v{PK2+i}"))
        ops += late(f"""
            s_lshl_b32 s{sU}, s{S_CH}, 10
            s_add_u32 s{sU}, s{sU}, {ZSP}
            v_add_u32 v{Z0}, s{sU}, v{ZA}
            v_permlane32_swap_b32 v{S_}, v{SS_}
            """)
        ops.append(lambda: (e(f"v_add_f32 v{S_}, v{S_}, v{SS_}"), e.ds(f"ds_write_b32 v{Z0}, v{S_}", "put")))
        return ops
    def zs_publish():
        rd = [lambda: e(f"v_add_u32 v{Z0}, {ZSP}, v{ZA}"),
              lambda: e.ds(f"ds_read2st64_b32 v[{Z0+2}:{Z0+3}], v{Z0} offset0:0 offset1:4", "zr")]
        def st():
            LZ = e.label("zs")
            e.need_l("zr")
            e(f"""
            v_add_f32 v{Z0+2}, v{Z0+2}, v{Z0+3}
            v_mov_b32 v{Z0+3}, s{S_NONCE}
            v_lshlrev_b32 v{Z0}, 1, v{ZA}
            s_mul_i32 s{sU}, s{S_MT}, 14
            s_add_u32 s{sU}, s{sU}, s{S_J}
            s_lshl_b32 s{sU}, s{sU}, 11
            s_add_u32 s{sU}, s{sU}, {WS_PART}
            s_cmp_lg_u32 s{S_CH}, 0
            s_cbranch_scc1 {LZ}
            buffer_store_dwordx2 v[{Z0+2}:{Z0+3}], v{Z0}, {sq(R_WS)}, s{sU} offen sc1
            {LZ}:
            """)
        return rd, [st]
    def pl_addr():
        return late(f"""
            v_and_b32 v{PLA}, 31, v{L}
            v_lshrrev_b32 v{Z0}, 4, v{PLA}
            v_and_b32 v{PLA}, 15, v{PLA}
            v_lshlrev_b32 v{PLA}, 4, v{PLA}
            v_lshl_add_u32 v{PLA}, v{Z0}, 3, v{PLA}
            v_lshrrev_b32 v{Z0}, 5, v{L}
            v_mul_u32_u24 v{Z0}, {7*2048}, v{Z0}
            v_add_u32 v{PLA}, v{PLA}, v{Z0}
            s_mul_i32 s{sV}, s{S_MT}, {14*2048}
            s_lshl_b32 s{sU}, s{S_W}, 8
            s_add_u32 s{sV}, s{sV}, s{sU}
            s_add_u32 s{sV}, s{sV}, {WS_PART}
            """)
    def pl_loads(track=True):
        ops = []
        for i in range(7):
            def ld(i=i):
                if i and i % 2 == 0: e(f"s_add_u32 s{sV}, s{sV}, 4096")
                s_ = f"buffer_load_dwordx2 v[{PL+2*i}:{PL+2*i+1}], v{PLA}, {sq(R_WS)}, s{sV} offen offset:{(i%2)*2048} sc1"
                if track: e.vm(s_, "pl")
                else: e(s_)
                if i == 6: e(f"s_sub_u32 s{sV}, s{sV}, {3*4096}")
            ops.append(ld)
        return ops
    def pl_check():
        LZ = e.label("pc")
        e.need_v("pl")
        e(f"s_mov_b32 s{sU}, 0\n{LZ}_chk:")
        for i in range(7):
            e(f"v_cmp_ne_u32 vcc, s{S_NONCE}, v{PL+2*i+1}")
            e("s_mov_b64 s[62:63], vcc" if i == 0 else "s_or_b64 s[62:63], s[62:63], vcc")
        e(f"""
        s_cmp_eq_u64 s[62:63], 0
        s_cbranch_scc1 {LZ}_ok
        s_add_u32 s{sU}, s{sU}, 1
        s_cmp_ge_u32 s{sU}, 0x10000
        s_cbranch_scc1 {LZ}_ok
        """)
        for f in pl_loads(False): f()
        e(f"s_waitcnt vmcnt(0)\ns_branch {LZ}_chk\n{LZ}_ok:")
        if opt.get("cnt"): e(f"s_add_u32 s{64+2*10}, s{sU}, s64\ns_add_u32 s{64+2*10}, s{64+2*10}, 1000")
    def pl_reduce():
        P = PL
        ops = late(f"""
            v_add_f32 v{P}, v{P}, v{P+2}
            v_add_f32 v{P+4}, v{P+4}, v{P+6}
            v_add_f32 v{P+8}, v{P+8}, v{P+10}
            v_add_f32 v{P}, v{P}, v{P+4}
            v_add_f32 v{P+8}, v{P+8}, v{P+12}
            v_add_f32 v{P}, v{P}, v{P+8}
            v_and_b32 v{P+2}, 31, v{L}
            v_mov_b32 v{P+1}, v{P}
            v_lshrrev_b32 v{P+3}, 4, v{P+2}
            v_and_b32 v{P+2}, 15, v{P+2}
            v_permlane32_swap_b32 v{P}, v{P+1}
            v_lshlrev_b32 v{P+2}, 3, v{P+2}
            v_lshl_add_u32 v{P+2}, v{P+3}, 2, v{P+2}
            v_add_f32 v{P}, v{P}, v{P+1}
            s_lshl_b32 s{sU}, s{S_W}, 7
            s_add_u32 s{sU}, s{sU}, {ZSP}
            v_add_u32 v{P+2}, s{sU}, v{P+2}
            """)
        def wr():
            e("s_mov_b32 exec_hi, 0")
            e.ds(f"ds_write_b32 v{P+2}, v{P}", "put")
            e("s_mov_b32 exec_hi, -1")
        return ops + [wr]
    RHO, NMR = PL + 4, PL + 5
    def zn_stats():
        a, b = PL, PL + 1
        rd = [lambda: e(f"v_add_u32 v{PL+2}, {ZSP - RS}, v{RSR}"), lambda: e.ds(f"ds_read_b64 v[{a}:{b}], v{PL+2}", "zt")]
        ops = [lambda: (e.need_l("zt"), e(f"v_mul_f32 v{a}, {fbits(1.0/896)}, v{a}"))] + late(f"""
            v_mul_f32 v{b}, {fbits(1.0/896)}, v{b}
            v_fma_f32 v{b}, -v{a}, v{a}, v{b}
            v_max_f32 v{b}, 0, v{b}
            v_add_f32 v{b}, {fbits(1e-5)}, v{b}
            v_rsq_f32 v{RHO}, v{b}
            v_subrev_u32 v{STWZ}, {ST - STZ}, v{STW}
            v_mul_f32 v{NMR}, v{a}, v{RHO}
            v_sub_f32 v{NMR}, 0, v{NMR}
            """)
        return rd, ops
    def zn_norm():
        ops = []
        for half in range(2):
            regs_ = [PK2 + 4 * half + i for i in range(4)]
            lo = [PL + 6 + i for i in range(4)]
            hi = [PL + 10 + i for i in range(4)]
            for i in range(4): ops.append(lambda i=i, r=regs_, lo=lo: e(f"v_lshlrev_b32 v{lo[i]}, 16, v{r[i]}"))
            for i in range(4): ops.append(lambda i=i, r=regs_, hi=hi: e(f"v_and_b32 v{hi[i]}, 0xffff0000, v{r[i]}"))
            for i in range(4): ops.append(lambda i=i, lo=lo: e(f"v_fma_f32 v{lo[i]}, v{lo[i]}, v{RHO}, v{NMR}"))
            for i in range(4): ops.append(lambda i=i, hi=hi: e(f"v_fma_f32 v{hi[i]}, v{hi[i]}, v{RHO}, v{NMR}"))
            for i in range(4): ops.append(lambda i=i, r=regs_, lo=lo, hi=hi: e(f"v_cvt_pk_bf16_f32 v{r[i]}, v{lo[i]}, v{hi[i]}"))
        return ops

    NG = 28
    gaps = {(g, p): [] for g in range(NG + 1) for p in range(4)}
    def put(g, p, ops): gaps[(g, p)] += list(ops)
    def spread_gaps(ops, a_, b_):
        slots = [(g, p) for g in range(a_[0], b_[0] + 1) for p in range(4) if (g, p) >= tuple(a_) and (g, p) <= tuple(b_)]
        for sl, s_ in zip(spread(ops, len(slots)), slots): gaps[s_] += sl
    if v4:
        sp = dict(z2=((8, 0), (11, 3)), zl=((12, 0), (12, 3)), pub=13, q2=((15, 0), (15, 2)), q=((22, 1), (23, 3)), pa=((14, 0), (15, 3)),
                  pl=((16, 2), (17, 3)), plc=(20, 0), zn=((21, 2), (22, 3)))
        sp.update(opt.get("sp", {}))
        spread_gaps(setup1, (0, 0), (2, 1))
        spread_gaps(setup_q, (2, 2), (3, 3))
        for p in range(4): put(5, p, setup_wb([p]))
        put(6, 3, [rs_put, cs_put])
        rd, ops = rowstat_ops()
        g1, g2, corr = cs_reduce(0)
        put(7, 0, rd + g1); spread_gaps(ops, (7, 1), (7, 2)); put(7, 2, g2); put(7, 3, corr + [non_load])
        spread_gaps(epi_ops(ACCS[0], True, PK2), *sp["z2"])
        put(9, 3, [non_put]); put(11, 0, non_get); put(12, 0, non_fin)
        spread_gaps(zs_local(), *sp["zl"])
        assert sp["pub"] in bars
        rd, st = zs_publish()
        put(sp["pub"], 0, rd); put(sp["pub"], 2, st)
        g1, g2, corr = cs_reduce(1)
        put(14, 0, g1); put(14, 2, g2); put(14, 3, corr)
        A2W, A2R = T + 7, T + 6
        def q2addr():
            LZ = e.label("q2a")
            e(f"""
            v_and_b32 v{T}, 31, v{L}
            s_lshl_b32 s{sT}, s{S_RG}, 5
            v_add_u32 v{T}, s{sT}, v{T}
            v_mul_u32_u24 v{T}, 80, v{T}
            v_lshrrev_b32 v{T+1}, 5, v{L}
            v_lshlrev_b32 v{T+1}, 3, v{T+1}
            v_add_u32 v{T}, v{T}, v{T+1}
            v_add_u32 v{A2W}, {ST2}, v{T}
            s_cmp_eq_u32 s{S_CH}, 0
            s_cbranch_scc1 {LZ}
            v_lshlrev_b32 v{A2W}, 3, v{L}
            v_add_u32 v{A2W}, {XR + 32768}, v{A2W}
            {LZ}:
            v_lshrrev_b32 v{T}, 2, v{L}
            s_lshl_b32 s{sT}, s{S_W}, 4
            v_add_u32 v{T}, s{sT}, v{T}
            v_mul_u32_u24 v{T}, 80, v{T}
            v_and_b32 v{T+1}, 3, v{L}
            v_lshlrev_b32 v{T+1}, 4, v{T+1}
            v_add_u32 v{T}, v{T}, v{T+1}
            v_add_u32 v{A2R}, {ST2}, v{T}
            """)
        put(14, 1, [q2addr])
        spread_gaps(epi_ops(ACCS[1], False, PK), *sp["q2"])
        put(15, 3, stage_w(PK, A2W, "stg"))
        rds2, sts2 = readback(A2R, T, WGQ2, 2688, WS_QKV + 128, 192, "q2", 58, n=1)
        put(16, 0, rds2); put(16, 2, sts2)
        spread_gaps(pl_addr(), *sp["pa"])
        spread_gaps(pl_loads(), *sp["pl"])
        plc = sp["plc"]
        put(*plc, [pl_check])
        spread_gaps(pl_reduce(), (plc[0], plc[1] + 1), (plc[0], 3))
        zb = min(b for b in bars if b > plc[0])
        rd, ops = zn_stats()
        put(zb, 0, rd); put(zb, 1, ops)
        spread_gaps(zn_norm(), *sp["zn"])
        zl = sp["zn"][1]
        put(*zl, stage_w(PK2, STWZ, "stg") + [lambda: e(f"v_subrev_u32 v{STRZ}, {ST - STZ}, v{STR}")])
        zr = min(b for b in bars if b > zl[0])
        rds, sts = readback(STRZ, PK2, GZ, 128, WS_Z2, 262144, "z2", 58) if opt.get("tm") else readback(STRZ, PK2, GZ, 1792, WS_Z2, 128, "z2", 58)
        put(zr, 0, rds); put(zr, 1, sts[:1]); put(zr, 2, sts[1:])
        put(20, 3, [cs_put])
        g1, g2, corr = cs_reduce(2)
        put(21, 0, g1); put(21, 2, g2); put(21, 3, corr)
        QPK = RB
        spread_gaps(epi_ops(ACCS[2], False, QPK), *sp["q"])
        put(24, 0, stage_w(QPK, STW, "stg"))
        rdq, stq = readback(STR, RB, GQ, 2688, WS_QKV, 192, "q", sT)
        put(25, 0, rdq); put(25, 2, stq)
        put(27, 3, [cs_put])
    else:
        sp = dict(z2=((8, 1), (14, 1)), z1=((15, 1), (16, 3)), q=((22, 1), (23, 3)), pl=((19, 0), (20, 2)), plc=(24, 0), zn=((25, 1), (26, 3)))
        sp.update(opt.get("sp", {}))
        spread_gaps(setup1, (0, 0), (2, 3))
        spread_gaps(setup_q, (3, 0), (5, 3))
        put(6, 3, [rs_put, cs_put])
        rd, ops = rowstat_ops()
        g1, g2, corr = cs_reduce(0)
        put(7, 0, rd + g1); spread_gaps(ops, (7, 1), (7, 2)); put(7, 2, g2); put(7, 3, corr + [non_load])
        spread_gaps(setup_wb(), (8, 0), (12, 3))
        spread_gaps(epi_ops(ACCS[0], True, PK2), *sp["z2"])
        put(9, 3, [non_put]); put(11, 0, non_get); put(12, 0, non_fin)
        put(13, 3, [cs_put])
        g1, g2, corr = cs_reduce(1)
        put(14, 0, g1); put(14, 2, g2); put(14, 3, corr)
        spread_gaps(zs_local(), (14, 2), (15, 2))
        rd, st = zs_publish()
        put(16, 0, rd)
        if not opt.get("nopub"): put(16, 2, st)
        spread_gaps(epi_ops(ACCS[1], False, PK), *sp["z1"])
        spread_gaps(pl_addr(), (17, 0), (18, 3))
        if not opt.get("nopl"): spread_gaps(pl_loads(), *sp["pl"])
        put(20, 3, [cs_put])
        g1, g2, corr = cs_reduce(2)
        put(21, 0, g1); put(21, 2, g2); put(21, 3, corr)
        if not fused and not opt.get("noz1s"):
            def z1save():
                e(f"""
                v_lshlrev_b32 v{T}, 5, v0
                s_lshl_b32 s{sT3}, s2, 14
                s_add_u32 s{sT3}, s{sT3}, {WS_Z1R}
                """)
                e.vm(f"buffer_store_dwordx4 v[{PK}:{PK+3}], v{T}, {sq(R_WS)}, s{sT3} offen", "st_z1")
                e.vm(f"buffer_store_dwordx4 v[{PK+4}:{PK+7}], v{T}, {sq(R_WS)}, s{sT3} offen offset:16", "st_z1")
            put(17, 1, [z1save])
        plc = sp["plc"]
        if not opt.get("nopl"): put(*plc, [pl_check])
        spread_gaps(pl_reduce(), (plc[0], plc[1] + 1), (plc[0], 3))
        QPK = RB
        spread_gaps(epi_ops(ACCS[2], False, QPK), *sp["q"])
        put(24, 0, stage_w(QPK, STW, "stg"))
        zb = min(b for b in bars if b > plc[0])
        rd, ops = zn_stats()
        put(zb, 0, rd); put(zb, 1, ops)
        spread_gaps(zn_norm(), *sp["zn"])
        zl = sp["zn"][1]
        put(*zl, stage_w(PK2, STWZ, "stg") + [lambda: e(f"v_subrev_u32 v{STRZ}, {ST - STZ}, v{STR}")])
        zr = min(b for b in bars if b > zl[0])
        if opt.get("tm"): rds, sts = readback(STRZ, PK2, GZ, 128, WS_Z2, 262144, "z2", 58)
        else: rds, sts = readback(STRZ, PK2, GZ, 1792, WS_Z2, 128, "z2", 58)
        rdq, stq = readback(STR, RB, GQ, 2688, WS_QKV, 192, "q", sT)
        put(25, 0, rdq); put(25, 2, stq)
        put(zr, 0, rds); put(zr, 1, sts[:1]); put(zr, 2, sts[1:])

    def lastbar(g): return max(b for b in bars if b <= g)
    wsched = {g: [] for g in range(NG)}
    nxt = 3
    for g in range(NG):
        n = 2 if 4 <= g <= 7 or g >= 8 else 1
        if g >= 8: n = opt.get("wn", 1) if (g not in bars or g + 1 not in bars) else 1
        for _ in range(n):
            if nxt < 28 and nxt <= lastbar(g) + 7: wsched[g].append(nxt); nxt += 1
    assert nxt == 28, wsched
    issued = {k: g for g in wsched for k in wsched[g]}
    for b in bars:
        nb = min([x for x in bars if x > b] + [27])
        for k in range(b + 1, min(nb, 27) + 1): assert issued.get(k, -1) < b, (b, k, wsched)
    if opt.get("show"): print(wsched)

    e.c("TS 3")
    e.need_v([("x", 0), ("w", 0)]); e("s_barrier")
    e.c("TS 4")
    for p in range(4):
        x_read(0, p)()
        for op in w_read(0, p): op()

    def iteration(g, active=True):
        ph, c = divmod(g, 7)
        if "tsg" in opt and 0 <= g - opt["tsg"] < 10: e.c(f"TS {g - opt['tsg'] + 1}" + " ")
        if g in bars:
            nb = min([x for x in bars if x > g] + [27])
            e.need_l(["put", "stg"])
            e.need_v([("w", k) for k in range(g + 1, nb + 1)] + [("x", g + 1)])
            if not opt.get("nobar"): e("s_barrier")
        nxt_active = g + 1 < 28 and (active or (v4 and KINDS[(g + 1) // 7] != "q2"))
        xd = x_dma(g + 4) if g >= 1 else []
        wd = [w_dma(k) for k in wsched[g]]
        if opt.get("nodma"): xd, wd = [], []
        dpos = opt.get("dpos", (1, 3))
        for p in range(4):
            if active:
                e.need_l([("wf", g, p), ("xf", c, p) if ph == 0 else ("wf", g, p)])
                mfma(g, p)
            if ph == 0 and c < 6: x_read(c + 1, p)()
            if nxt_active:
                for f in w_read(g + 1, p): f()
            if p == dpos[0] and wd:
                for f in wd[0]: f()
            if p == dpos[1] and len(wd) > 1:
                for f in wd[1]: f()
            if p == 2 and xd:
                for f in xd[:2]: f()
            if p == 3 and xd:
                for f in xd[2:]: f()
            if not opt.get("noextra"):
                for f in gaps[(g, p)]: f()
            if active and p == 3 and g == (13 if v4 else 27): cs_put()

    if v4:
        for g in range(7): iteration(g)
        e.c("TS 5")
        L1, LJ = e.label("p1c1"), e.label("p1j")
        e(f"s_cmp_lg_u32 s{S_CH}, 0\ns_cbranch_scc1 {L1}")
        e.c("HZ_SAVE p1")
        sv = e.save()
        for g in range(7, 14): iteration(g, True)
        e.wait_l0()
        e.c("HZ_SAVE p1j")
        e(f"s_branch {LJ}")
        stA = e.save()
        e(f"{L1}:")
        e.c("HZ_RESTORE p1")
        e.restore(sv)
        for g in range(7, 14): iteration(g, False)
        e.wait_l0()
        e("s_nop 7")
        e(f"{LJ}:")
        e.c("HZ_RESTORE p1j")
        assert stA[1] == e.vq and stA[2] == e.vcount
        e.c("TS 6")
        for g in range(14, 28):
            if g == 21: e.c("TS 7")
            iteration(g)
        e.c("TS 8")
        e.need_l("put"); e.need_v("st_z2"); e("s_barrier")
        g1, g2, corr = cs_reduce(3)
        e.k1_tail = g1 + g2 + corr + epi_ops(ACCS[3], False, PK)
        e.c("TS 9")
        return
    for g in range(21):
        if g in (7, 14): e.c(f"TS {5 + g // 7 - 1}")
        iteration(g)
    e.c("TS 7")
    L1, LJ = e.label("p4c1"), e.label("p4j")
    e(f"s_cmp_lg_u32 s{S_CH}, 0\ns_cbranch_scc1 {L1}")
    e.c("HZ_SAVE p4")
    sv = e.save()
    for g in range(21, 28): iteration(g, True)
    e.c("TS 8")
    e.need_l("put"); e("s_barrier")
    g1, g2, corr = cs_reduce(3)
    for op in g1: op()
    e(f"""
    v_and_b32 v{RB+4}, 31, v{L}
    s_lshl_b32 s{sT}, s{S_RG}, 5
    v_add_u32 v{RB+4}, s{sT}, v{RB+4}
    v_mul_u32_u24 v{RB+4}, 80, v{RB+4}
    v_lshrrev_b32 v{RB+5}, 5, v{L}
    v_lshlrev_b32 v{RB+5}, 3, v{RB+5}
    v_add_u32 v{RB+4}, v{RB+4}, v{RB+5}
    v_add_u32 v{STW}, {ST2}, v{RB+4}
    """)
    for op in g2 + corr: op()
    for op in epi_ops(ACCS[3], False, WF): op()
    for op in stage_w(WF, STW, "stg"): op()
    e.need_l("stg")
    e(f"s_branch {LJ}")
    stA = e.save()
    e(f"{L1}:")
    e.c("HZ_RESTORE p4")
    e.restore(sv)
    for g in range(21, 28): iteration(g, False)
    e.wait_l0()
    e("s_barrier")
    e(f"{LJ}:")
    e.lq = []
    e.vq = ["unk"] * max(len(stA[1]), len(e.vq))
    assert stA[2] == e.vcount
    e("s_barrier")
    e.pos_join = e.vcount
    e(f"""
    v_lshrrev_b32 v{T}, 2, v{L}
    s_lshl_b32 s{sT}, s{S_W}, 4
    v_add_u32 v{T}, s{sT}, v{T}
    v_mul_u32_u24 v{T}, 80, v{T}
    v_and_b32 v{T+1}, 3, v{L}
    v_lshlrev_b32 v{T+1}, 4, v{T+1}
    v_add_u32 v{T}, v{T}, v{T+1}
    v_add_u32 v{STR}, {ST2}, v{T}
    """)
    rds, sts = readback(STR, RB, WGQ2, 2688, WS_QKV + 128, 192, "q2", 58, n=1)
    for op in rds + sts: op()
    e.pos_q2 = e.vcount
    e.c("TS 9")

def k1_aux(e, fused=False):
    h = 48
    e(f"""
    s_load_dwordx2 s[{R_WSP}:{R_WSP+1}], s[0:1], {K_WSP}
    s_load_dwordx2 s[{R_WOUT}:{R_WOUT+1}], s[0:1], {K_WOUT}
    s_load_dwordx2 s[{R_WO}:{R_WO+1}], s[0:1], {K_WO}
    s_sub_u32 s{h}, s2, 224
    s_waitcnt lgkmcnt(0)
    """)
    fin_srds(e, ["wsp", "wout", "wo"])
    e(f"""
    v_lshlrev_b32 v2, 7, v0
    s_lshl_b32 s49, s{h}, 18
    """)
    stride = 512 * 128
    k = 0
    for i in range((256 * 1024) // stride):
        e(f"s_add_u32 s50, s49, {i*stride}")
        e(f"buffer_load_dword v{8+k%16}, v2, {sq(R_WSP)}, s50 offen"); k += 1
    e(f"s_mul_i32 s49, s{h}, {SZ_WOUT//32}")
    e(f"v_cmp_gt_u32 vcc, {SZ_WOUT//32}, v2")
    e(f"s_and_b64 exec, exec, vcc")
    e(f"buffer_load_dword v{8+k%16}, v2, {sq(R_WOUT)}, s49 offen"); k += 1
    e(f"s_mul_i32 s49, s{h}, {SZ_WO//32}")
    e(f"v_cmp_gt_u32 vcc, {SZ_WO//32}, v2")
    e(f"s_and_b64 exec, exec, vcc")
    e(f"buffer_load_dword v{8+k%16}, v2, {sq(R_WO)}, s49 offen"); k += 1
    e("s_mov_b64 exec, -1")
```

```python
from g2common import *

K2_XR, K2_WR = 0, 98304
K2_NS = 6
K2_LDS = 150016
V_Z1 = 96

def late(e, txt):
    return [lambda l=l: e(l) for l in txt.strip("\n").split("\n") if l.strip()]

def k2_main(e, fused=False, opt=None):
    opt = opt or {}
    XR, WR, NS = K2_XR, K2_WR, K2_NS
    L = 1
    XG, WGI = 2, 4
    XA, XH, WA = 8, 12, 16
    BIAS, STW, STR, GH, CK1, CK2 = 20, 21, 22, 23, 24, 25
    T = 26
    XF, WF, ACC, ZF, U1, GT = 32, 48, 64, 80, V_Z1, 104
    sX, sW, sM0X, sM0W, sT, sT2, sT3 = 48, 49, 52, 53, 55, 56, 57
    t0, t1, t2, t3 = GT, GT + 1, GT + 2, GT + 3
    NCH = 32
    e(f"""
    v_lshrrev_b32 v{t0}, 3, v{L}
    v_lshrrev_b32 v{t1}, 4, v{L}
    v_and_b32 v{t2}, 7, v{L}
    v_lshlrev_b32 v{XG}, 12, v{t0}
    v_xor_b32 v{t3}, v{t2}, v{t1}
    v_lshlrev_b32 v{t3}, 4, v{t3}
    v_add_u32 v{XG+1}, {8*4096-1024}, v{XG}
    v_add_u32 v{XG}, v{XG}, v{t3}
    v_xor_b32 v{t3}, 64, v{t3}
    v_add_u32 v{XG+1}, v{XG+1}, v{t3}
    v_and_b32 v{t3}, 1, v{t1}
    v_lshlrev_b32 v{t3}, 2, v{t3}
    v_xor_b32 v{t3}, v{t2}, v{t3}
    v_lshlrev_b32 v{t3}, 4, v{t3}
    v_mul_u32_u24 v{WGI}, 1792, v{t0}
    v_add_u32 v{WGI}, v{WGI}, v{t3}
    s_lshl_b32 s{sT}, s{S_W}, 4
    s_add_u32 s{sT}, s{sT}, s{S_ROW0}
    s_lshl_b32 s{sX}, s{sT}, 12
    s_mul_i32 s{sT}, s{S_W}, {8*1792}
    s_lshl_b32 s{sT2}, s{S_J}, 7
    s_add_u32 s{sW}, s{sT}, s{sT2}
    s_add_u32 s{sW}, s{sW}, {WS_Z2}
    s_lshl_b32 s{sM0X}, s{S_W}, 11
    s_add_u32 s{sM0X}, s{sM0X}, {XR}
    s_lshl_b32 s{sM0W}, s{S_W}, 10
    s_add_u32 s{sM0W}, s{sM0W}, {WR}
    s_waitcnt lgkmcnt(0)
    """)
    fin_srds(e, ["wsp", "ws", "bsp"])
    if opt.get("rot"):
        ra, rb = opt["rot"]
        e(f"s_and_b32 s60, s{S_MT}, 3\ns_mul_i32 s60, s60, {ra}\ns_lshr_b32 s61, s2, 5\ns_mul_i32 s61, s61, {rb}\ns_add_u32 s60, s60, s61")
    def x_dma(c):
        if c >= NCH: return []
        def pre():
            e(f"s_add_u32 m0, s{sM0X}, {(c % NS) * 16384}")
            if opt.get("rot"):
                e(f"s_add_u32 s{sT}, s60, {c}\ns_and_b32 s{sT}, s{sT}, 31\ns_lshl_b32 s{sT}, s{sT}, 7\ns_add_u32 s{sT}, s{sT}, s{sX}")
            else:
                e(f"s_add_u32 s{sT}, s{sX}, {c * 128}")
        ops = [pre]
        for i in range(2):
            ops.append(lambda i=i: e.vm(f"buffer_load_dwordx4 v{XG+i}, {sq(R_WSP)}, s{sT} offen offset:{1024*i} lds", ("x", c)))
        return ops
    def w_dma(c):
        if c >= NCH: return []
        def op():
            e(f"s_add_u32 m0, s{sM0W}, {(c % NS) * 8192}")
            if opt.get("rot"):
                e(f"s_add_u32 s{sT2}, s60, {c}\ns_and_b32 s{sT2}, s{sT2}, 31\ns_mul_i32 s{sT2}, s{sT2}, {64*1792}\ns_add_u32 s{sT2}, s{sT2}, s{sW}")
            else:
                e(f"s_add_u32 s{sT2}, s{sW}, {c * 64 * 1792}")
            e.vm(f"buffer_load_dwordx4 v{WGI}, {sq(R_WS)}, s{sT2} offen lds", ("w", c))
        return [op]
    npro = opt.get("npro", 3)
    for op in x_dma(0) + w_dma(0): op()
    e.c("TS 1")
    e(f"""
    v_lshlrev_b32 v{t0}, 5, v0
    s_lshl_b32 s{sT3}, s2, 14
    s_add_u32 s{sT3}, s{sT3}, {WS_Z1R}
    v_and_b32 v{t1}, 31, v{L}
    v_lshlrev_b32 v{t1}, 1, v{t1}
    s_lshl_b32 s58, s{S_RG}, 5
    s_add_u32 s58, s58, s{S_ROW0}
    s_lshl_b32 s58, s58, 1
    """)
    def u1_load():
        e.vm(f"buffer_load_dwordx4 v[{U1}:{U1+3}], v{t0}, {sq(R_WS)}, s{sT3} offen", "u1")
        e.vm(f"buffer_load_dwordx4 v[{U1+4}:{U1+7}], v{t0}, {sq(R_WS)}, s{sT3} offen offset:16", "u1")
        e.vm(f"buffer_load_ushort v{BIAS}, v{t1}, {sq(R_BSP)}, s58 offen", "u1")
    n_, h_, r_, qd_, chf_, u_ = GT + 4, GT + 5, GT + 6, GT + 7, GT + 8, GT + 9
    e(f"""
    v_and_b32 v{n_}, 31, v{L}
    v_lshrrev_b32 v{h_}, 5, v{L}
    v_and_b32 v{r_}, 15, v{L}
    v_and_b32 v{qd_}, 3, v{r_}
    v_lshlrev_b32 v{qd_}, 3, v{qd_}
    v_lshrrev_b32 v{r_}, 2, v{r_}
    v_lshrrev_b32 v{chf_}, 4, v{L}
    v_and_b32 v{chf_}, 1, v{chf_}
    v_lshlrev_b32 v{chf_}, 5, v{chf_}
    v_add_u32 v{chf_}, v{chf_}, v{qd_}
    s_lshl_b32 s{sT}, s{S_CH}, 1
    s_add_u32 s{sT}, s{sT}, s{S_RG}
    v_lshlrev_b32 v{u_}, 3, v{h_}
    v_add_u32 v{u_}, v{u_}, v{r_}
    v_lshlrev_b32 v{u_}, 7, v{u_}
    v_add_u32 v{u_}, v{u_}, v{chf_}
    v_lshrrev_b32 v{r_}, 1, v{r_}
    v_xor_b32 v{r_}, s{S_CH}, v{r_}
    v_lshlrev_b32 v{r_}, 6, v{r_}
    v_add_u32 v{u_}, v{u_}, v{r_}
    v_lshrrev_b32 v{qd_}, 1, v{n_}
    v_and_b32 v{qd_}, 7, v{qd_}
    v_lshlrev_b32 v{chf_}, 7, v{n_}
    s_lshl_b32 s{sT2}, s{S_RG}, 12
    s_add_u32 s{sT2}, s{sT2}, {XR}
    v_add_u32 v{chf_}, s{sT2}, v{chf_}
    """)
    for p in range(4):
        e(f"""
        s_add_u32 s{sT2}, s{sT}, {p}
        s_and_b32 s{sT2}, s{sT2}, 3
        s_lshl_b32 s{sT3}, s{sT2}, 1
        v_add_u32 v{r_}, s{sT3}, v{h_}
        v_xor_b32 v{r_}, v{r_}, v{qd_}
        v_lshlrev_b32 v{r_}, 4, v{r_}
        v_add_u32 v{XA+p}, v{chf_}, v{r_}
        s_lshl_b32 s{sT3}, s{sT2}, 11
        s_add_u32 s{sT3}, s{sT3}, {WR}
        v_add_u32 v{WA+p}, s{sT3}, v{u_}
        v_add_u32 v{XH+p}, 0x10000, v{XA+p}
        """)
    if not opt.get("nopb"): e("s_barrier")
    for c in range(1, npro):
        for op in x_dma(c) + w_dma(c): op()
        if c in opt.get("pb", (1,)): e("s_barrier")
    e(f"s_lshl_b32 s{sT3}, s2, 14\ns_add_u32 s{sT3}, s{sT3}, {WS_Z1R}")
    u1_load()
    e.c("TS 2")
    dsched = {c: [] for c in range(NCH)}
    nxt = npro
    for c in range(NCH):
        for _ in range(opt.get("dn", 2)):
            if nxt < NCH and nxt <= c + NS - 1: dsched[c].append(nxt); nxt += 1
    assert nxt == NCH

    def x_read(c, p):
        s = c % NS
        a = (XA if s < 4 else XH) + p
        return lambda: e.ds(f"ds_read_b128 v[{XF+4*p}:{XF+4*p+3}], v{a} offset:{(s % 4) * 16384}", ("f", c, p))
    def w_read(c, p):
        ops = []
        for t in range(2):
            d = WF + 4 * p + 2 * t
            ops.append(lambda d=d, t=t: e.ds(f"ds_read_b64_tr_b16 v[{d}:{d+1}], v{WA+p} offset:{(c % NS) * 8192 + t * 512}", ("f", c, p)))
        return ops
    def mfma(c, p):
        cin = "0" if (c == 0 and p == 0) else f"v[{ACC}:{ACC+15}]"
        e(f"v_mfma_f32_32x32x16_bf16 v[{ACC}:{ACC+15}], v[{WF+4*p}:{WF+4*p+3}], v[{XF+4*p}:{XF+4*p+3}], {cin}")

    a0, a1, a2 = T, T + 1, T + 2
    setup = late(e, f"""
    v_mov_b32 v{CK1}, {fbits(GELU_K1)}
    v_mov_b32 v{CK2}, {fbits(GELU_K2)}
    v_and_b32 v{a0}, 31, v{L}
    v_lshrrev_b32 v{a1}, 5, v{L}
    s_lshl_b32 s{sT3}, s{S_RG}, 5
    v_add_u32 v{a2}, s{sT3}, v{a0}
    v_mul_u32_u24 v{a2}, 144, v{a2}
    v_lshlrev_b32 v{a1}, 3, v{a1}
    s_lshl_b32 s{sT3}, s{S_CH}, 6
    s_add_u32 s{sT3}, s{sT3}, {XR + 2 * 16384}
    v_add3_u32 v{STW}, v{a2}, v{a1}, s{sT3}
    v_lshrrev_b32 v{a0}, 3, v{L}
    v_and_b32 v{a1}, 7, v{L}
    v_lshlrev_b32 v{a1}, 4, v{a1}
    v_mul_u32_u24 v{GH}, 2688, v{a0}
    v_add_u32 v{GH}, v{GH}, v{a1}
    s_lshl_b32 s{sT3}, s{S_W}, 4
    v_add_u32 v{a0}, s{sT3}, v{a0}
    v_mul_u32_u24 v{STR}, 144, v{a0}
    v_add_u32 v{STR}, v{STR}, v{a1}
    v_add_u32 v{STR}, {XR + 2 * 16384}, v{STR}
    """)
    gel = []
    for q in range(4):
        z = [ZF + 4 * q + i for i in range(4)]
        t = [GT + 4 * (q % 2) + i for i in range(4)]
        gel.append(lambda q=q: (e.need_v("u1"), e(f"v_lshlrev_b32 v{ZF+4*q}, 16, v{U1+2*q}")))
        gel += late(e, f"""
            v_and_b32 v{ZF+4*q+1}, 0xffff0000, v{U1+2*q}
            v_lshlrev_b32 v{ZF+4*q+2}, 16, v{U1+2*q+1}
            v_and_b32 v{ZF+4*q+3}, 0xffff0000, v{U1+2*q+1}
            """)
        for fmt in ("v_mul_f32 v{t}, v{a}, v{a}", f"v_fma_f32 v{{t}}, v{{t}}, v{CK2}, v{CK1}", "v_mul_f32 v{t}, v{a}, v{t}",
                    "v_exp_f32 v{t}, v{t}", "v_add_f32 v{t}, 1.0, v{t}", "v_rcp_f32 v{t}, v{t}", "v_mul_f32 v{a}, v{a}, v{t}"):
            for i in range(4):
                gel.append(lambda fmt=fmt, i=i, z=z, t=t: e(fmt.format(t=t[i], a=z[i])))
    gel.append(lambda: e(f"v_lshlrev_b32 v{BIAS}, 16, v{BIAS}"))
    gaps = {(c, p): [] for c in range(NCH) for p in range(4)}
    def spread_gaps(ops, a_, b_):
        slots = [(c, p) for c in range(a_[0], b_[0] + 1) for p in range(4) if (c, p) >= tuple(a_) and (c, p) <= tuple(b_)]
        for sl, s_ in zip(spread(ops, len(slots)), slots): gaps[s_] += sl
    spread_gaps(setup, (0, 0), (2, 3))
    spread_gaps(gel, (4, 0), (29, 3))

    e.need_v([("x", 0), ("w", 0)]); e("s_barrier")
    e.c("TS 3")
    for p in range(4):
        x_read(0, p)()
        for op in w_read(0, p): op()
    dpos = opt.get("dpos", (0, 2))
    for c in range(NCH):
        tsl = opt.get("ts", (4, 12, 20, 28))
        if c in tsl: e.c(f"TS {4 + tsl.index(c)}")
        if c + 1 < NCH: e.need_v([("x", c + 1), ("w", c + 1)])
        if c + 1 < NCH or fused: e("s_barrier")
        dl = [x_dma(k) + w_dma(k) for k in dsched[c]] + [[], []]
        if opt.get("nodma"): dl = [[], []]
        for p in range(4):
            e.need_l(("f", c, p))
            mfma(c, p)
            if c + 1 < NCH:
                x_read(c + 1, p)()
                for f in w_read(c + 1, p): f()
            if p == dpos[0]:
                for f in dl[0]: f()
            if p == dpos[1]:
                for f in dl[1]: f()
            for f in gaps[(c, p)]: f()
    e.c("TS 8")
    BV = GT
    e(f"v_mov_b32 v{BIAS+0}, v{BIAS}")
    for q in range(4):
        a = ACC + 4 * q
        for i in range(4): e(f"v_add_f32 v{a+i}, v{a+i}, v{BIAS}")
        for i in range(4): e(f"v_mul_f32 v{a+i}, v{a+i}, v{ZF+4*q+i}")
        e(f"v_cvt_pk_bf16_f32 v{BV+2*q}, v{a}, v{a+1}")
        e(f"v_cvt_pk_bf16_f32 v{BV+2*q+1}, v{a+2}, v{a+3}")
        e.ds(f"ds_write_b64 v{STW}, v[{BV+2*q}:{BV+2*q+1}] offset:{q*16}", "stg")
    e(f"""
    s_lshl_b32 s{sT}, s{S_W}, 4
    s_add_u32 s{sT}, s{sT}, s{S_ROW0}
    s_mul_i32 s{sT}, s{sT}, 2688
    s_lshl_b32 s{sT2}, s{S_J}, 7
    s_add_u32 s{sT}, s{sT}, s{sT2}
    s_add_u32 s{sT}, s{sT}, {WS_HO}
    s_add_u32 s{sT2}, s{sT}, {8*2688}
    """)
    e.need_l("stg"); e("s_barrier")
    e.c("TS 9")
    sc = " sc1" if fused else ""
    for i in range(2):
        e.ds(f"ds_read_b128 v[{XF+4*i}:{XF+4*i+3}], v{STR} offset:{i*8*144}", ("rb", i))
    for i in range(2):
        e.need_l(("rb", i))
        e.vm(f"buffer_store_dwordx4 v[{XF+4*i}:{XF+4*i+3}], v{GH}, {sq(R_WS)}, s{(sT, sT2)[i]} offen{sc}", "st")

def k2_attn(e, fused=False, opt=None):
    opt = opt or {}
    L = 1
    PITCH = 1920
    QA, QB, KV, LA, LB, OA, OB = 8, 22, 36, 162, 170, 178, 206
    PA, PB = 234, 238
    VA, VQ, VL, VS, VM, VN = 242, 243, 244, 245, 246, 247
    PT = QA
    sA, sR, sT, sT2, sQ, sQ2, sLo, sHi = 48, 49, 50, 51, 52, 53, 54, 55
    e(f"""
    s_sub_u32 s{sA}, s2, 224
    s_lshl_b32 s{sR}, s{sA}, 6
    v_and_b32 v{VM}, 15, v{L}
    v_mul_u32_u24 v{VM}, 56, v{VM}
    v_lshrrev_b32 v{VN}, 4, v{L}
    v_and_b32 v{VS}, 1, v{VN}
    v_lshrrev_b32 v{VN}, 1, v{VN}
    v_lshl_add_u32 v{VS}, v{VN}, 2, v{VS}
    s_lshl_b32 s{sT}, s{S_W}, 3
    v_add_u32 v{VS}, s{sT}, v{VS}
    v_mul_u32_u24 v{VQ}, 2688, v{VS}
    v_add_u32 v{VQ}, v{VQ}, v{VM}
    v_mul_u32_u24 v{VA}, {PITCH}, v{VS}
    v_add_u32 v{VA}, v{VA}, v{VM}
    v_lshlrev_b32 v{VL}, 4, v{L}
    s_mul_i32 s{sQ}, s{sR}, 2688
    s_add_u32 s{sQ}, s{sQ}, {WS_QKV}
    s_add_u32 s{sQ2}, s{sQ}, {2*2688}
    s_waitcnt lgkmcnt(0)
    """)
    fin_srds(e, ["ws"])
    sc = " sc1" if fused else ""
    def kv_dma(part):
        e("s_mov_b32 exec_hi, 0x00ffffff")
        for i in range(10):
            e(f"""
            s_add_u32 s{sT}, s{S_W}, {8*i}
            s_min_u32 s{sT}, s{sT}, 77
            s_mul_i32 s{sT2}, s{sT}, {PITCH}
            s_add_u32 m0, s{sT2}, {896*part}
            s_add_u32 s{sT}, s{sT}, s{sR}
            s_sub_i32 s{sT}, s{sT}, 14
            s_max_i32 s{sT}, s{sT}, 0
            s_mul_i32 s{sT}, s{sT}, 2688
            s_add_u32 s{sT}, s{sT}, {WS_QKV + 896 + 896*part}
            """)
            e.vm(f"buffer_load_dwordx4 v{VL}, {sq(R_WS)}, s{sT} offen{sc} lds", ("kv", part))
        e("s_mov_b32 exec_hi, -1")
    kv_dma(0)
    for base, so in ((QA, sQ), (QB, sQ2)):
        for i in range(3):
            e.vm(f"buffer_load_dwordx4 v[{base+4*i}:{base+4*i+3}], v{VQ}, {sq(R_WS)}, s{so} offen offset:{16*i}{sc}", "q")
        e.vm(f"buffer_load_dwordx2 v[{base+12}:{base+13}], v{VQ}, {sq(R_WS)}, s{so} offen offset:48{sc}", "q")
    kv_dma(1)
    e.c("TS 1")
    e.need_v([("kv", 0), "q"]); e("s_barrier")
    e.c("TS 2")
    def rd(j, part):
        for i in range(7):
            e.ds(f"ds_read_b64 v[{KV+14*j+2*i}:{KV+14*j+2*i+1}], v{VA} offset:{(16-2*j)*PITCH + 896*part + 8*i}", ("kv", part, j))
    for j in range(9): rd(j, 0)
    for j0 in range(0, 9, 2):
        js = [j for j in (j0, j0 + 1) if j < 9]
        e.need_l([("kv", 0, j) for j in js])
        for i in range(14):
            for j in js:
                if j <= 7: e(f"v_dot2_f32_bf16 v{LB+j}, v{QB+i}, v{KV+14*j+i}, {'0' if i == 0 else f'v{LB+j}'}")
                if j >= 1: e(f"v_dot2_f32_bf16 v{LA+j-1}, v{QA+i}, v{KV+14*j+i}, {'0' if i == 0 else f'v{LA+j-1}'}")
        if j0 == 2:
            e.c("TS 3")
            e.need_v(("kv", 1)); e("s_barrier")
        if j0 >= 2:
            for j in (js if j0 > 2 else [0, 1, 2, 3]): rd(j, 1)
    e.c("TS 4")
    LM = e.label("am")
    e(f"""
    s_cmp_lg_u32 s{sA}, 0
    s_cbranch_scc1 {LM}
    v_mov_b32 v{VM}, {fbits(-1e9)}
    v_add_u32 v{VN}, 2, v{VS}
    """)
    for w in range(1, 8):
        e(f"v_cmp_le_u32 vcc, {2*w}, v{VS}\nv_cndmask_b32 v{LA+w}, v{VM}, v{LA+w}, vcc")
        e(f"v_cmp_le_u32 vcc, {2*w}, v{VN}\nv_cndmask_b32 v{LB+w}, v{VM}, v{LB+w}, vcc")
    e(f"{LM}:")
    SC = (28 ** -0.5) * 1.4426950408889634
    e(f"s_mov_b32 s{sT}, {fbits(SC)}")
    X = ((LA, VM), (LB, VN))
    for l, m in X: e(f"v_max3_f32 v{m}, v{l}, v{l+1}, v{l+2}")
    for l, m in X: e(f"v_max3_f32 v{m}, v{m}, v{l+3}, v{l+4}")
    for l, m in X: e(f"v_max3_f32 v{m}, v{m}, v{l+5}, v{l+6}")
    for l, m in X: e(f"v_max_f32 v{m}, v{m}, v{l+7}")
    for l, m in X: e(f"v_mul_f32 v{m}, {fbits(-SC)}, v{m}")
    for w in range(8):
        for l, m in X: e(f"v_fma_f32 v{l+w}, v{l+w}, s{sT}, v{m}")
    for w in range(8):
        for l, m in X: e(f"v_exp_f32 v{l+w}, v{l+w}")
    tA, tB = PA, PB
    for l, t in ((LA, tA), (LB, tB)):
        for u in range(4): e(f"v_add_f32 v{t+u}, v{l+2*u}, v{l+2*u+1}")
    for t in (tA, tB): e(f"v_add_f32 v{t}, v{t}, v{t+1}\nv_add_f32 v{t+2}, v{t+2}, v{t+3}")
    for t in (tA, tB): e(f"v_add_f32 v{t}, v{t}, v{t+2}")
    for t, m in ((tA, VM), (tB, VN)): e(f"v_rcp_f32 v{m}, v{t}")
    for w in range(8):
        for l, m in X: e(f"v_mul_f32 v{l+w}, v{l+w}, v{m}")
    for u in range(4): e(f"v_cvt_pk_bf16_f32 v{PA+u}, v{LA+2*u}, v{LA+2*u+1}")
    for u, (a, b) in enumerate(((1, 2), (3, 4), (5, 6), (0, 7))): e(f"v_cvt_pk_bf16_f32 v{PB+u}, v{LB+a}, v{LB+b}")
    e.c("TS 5")
    e(f"s_mov_b32 s{sLo}, 0x05040100\ns_mov_b32 s{sHi}, 0x07060302")
    def perm(ja, jb):
        e.need_l([("kv", 1, ja), ("kv", 1, jb)])
        for i in range(14):
            a, b = KV + 14 * ja + i, KV + 14 * jb + i
            e(f"v_perm_b32 v{PT+2*i}, v{b}, v{a}, s{sLo}")
            e(f"v_perm_b32 v{PT+2*i+1}, v{b}, v{a}, s{sHi}")
    for u, (ja, jb) in enumerate(((1, 2), (3, 4), (5, 6))):
        perm(ja, jb)
        for d in range(28):
            e(f"v_dot2_f32_bf16 v{OA+d}, v{PT+d}, v{PA+u}, {'0' if u == 0 else f'v{OA+d}'}")
            e(f"v_dot2_f32_bf16 v{OB+d}, v{PT+d}, v{PB+u}, {'0' if u == 0 else f'v{OB+d}'}")
    perm(7, 8)
    for d in range(28): e(f"v_dot2_f32_bf16 v{OA+d}, v{PT+d}, v{PA+3}, v{OA+d}")
    perm(0, 7)
    for d in range(28): e(f"v_dot2_f32_bf16 v{OB+d}, v{PT+d}, v{PB+3}, v{OB+d}")
    e.c("TS 6")
    for o, q in ((OA, KV), (OB, KV + 14)):
        for i in range(14): e(f"v_cvt_pk_bf16_f32 v{q+i}, v{o+2*i}, v{o+2*i+1}")
    if opt.get("stage_o"):
        OP = 912
        e("s_barrier")
        e(f"""
        v_and_b32 v{VM}, 15, v{L}
        v_mul_u32_u24 v{VM}, 56, v{VM}
        v_mul_u32_u24 v{VN}, {OP}, v{VS}
        v_add_u32 v{VM}, v{VM}, v{VN}
        """)
        for r_, q in ((0, KV), (2, KV + 14)):
            for i in range(7):
                e.ds(f"ds_write_b64 v{VM}, v[{q+2*i}:{q+2*i+1}] offset:{r_*OP + 8*i}", "ow")
        tm = opt.get("tm")
        HP = 128 if tm else 2688
        e(f"""
        s_mul_i32 s{sT}, s{S_W}, {8*OP}
        v_add_u32 v{VN}, s{sT}, v{VL}
        s_lshl_b32 s{sT}, s{S_W}, 3
        s_add_u32 s{sT}, s{sT}, s{sR}
        s_mul_i32 s{sQ}, s{sT}, {HP}
        s_add_u32 s{sQ}, s{sQ}, {WS_HO + (14 * 262144 if tm else 1792)}
        """)
        if tm:
            e(f"""
            v_lshrrev_b32 v{VM}, 3, v{L}
            v_lshlrev_b32 v{VM}, 18, v{VM}
            v_and_b32 v{VL}, 0x70, v{VL}
            v_add_u32 v{VL}, v{VL}, v{VM}
            """)
        e.need_l("ow")
        e("s_mov_b32 exec_hi, 0x00ffffff")
        for i in range(8): e.ds(f"ds_read_b128 v[{OA+4*i}:{OA+4*i+3}], v{VN} offset:{i*OP}", ("or", i))
        for i in range(8):
            e.need_l(("or", i))
            if i: e(f"s_add_u32 s{sQ}, s{sQ}, {HP}")
            e.vm(f"buffer_store_dwordx4 v[{OA+4*i}:{OA+4*i+3}], v{VL}, {sq(R_WS)}, s{sQ} offen sc1", "st")
        e("s_mov_b32 exec_hi, -1")
        return
    e(f"""
    s_mul_i32 s{sQ}, s{sR}, 2688
    s_add_u32 s{sQ}, s{sQ}, {WS_HO + 1792}
    s_add_u32 s{sQ2}, s{sQ}, {2*2688}
    """)
    for base, so in ((KV, sQ), (KV + 14, sQ2)):
        for i in range(3):
            e.vm(f"buffer_store_dwordx4 v[{base+4*i}:{base+4*i+3}], v{VQ}, {sq(R_WS)}, s{so} offen offset:{16*i}{sc}", "st")
        e.vm(f"buffer_store_dwordx2 v[{base+12}:{base+13}], v{VQ}, {sq(R_WS)}, s{so} offen offset:48{sc}", "st")
```

```python
from g2common import *

F_H  = WS_FLG
F_O  = WS_FLG + 0x1000
F_Z2 = WS_FLG + 0x2000
F_Q  = WS_FLG + 0x3000
F_N  = WS_FLG + 0x4000

K2_XR, K2_WR, K2_NS = 0, 98304, 6
K23_LDS = 160 * 1024 - 960
K3_W = [114688, 122880, 131072, 139264, 98304, 106496, 0, 8192, 16384, 24576]
K3_X = [65536, 73728, 81920, 90112, 49152, 57344, 32768, 40960]
HSTG = 32768
K3_XS = 147456
S3_TT, S3_NT, S3_KH, S3_TB, S3_DB, S3_T0, S3_X, S3_WW, S3_R, S3_M0 = 92, 93, 94, 95, 96, 97, 98, 99, 100, 101
V_Z1 = 96

def late(e, txt):
    return [lambda l=l: e(l) for l in txt.strip("\n").split("\n") if l.strip()]

def flag_store(e, off_sgpr_txt, base, vt=(28, 29), stmp=62, wave=0):
    LZ = e.label("fs")
    e(f"s_cmp_lg_u32 s{S_W}, {wave}\ns_cbranch_scc1 {LZ}")
    e(off_sgpr_txt)
    e(f"""
    s_add_u32 s{stmp}, s{stmp}, {base}
    v_mov_b32 v{vt[0]}, 0
    v_mov_b32 v{vt[1]}, s{S_NONCE}
    s_mov_b64 exec, 1
    buffer_store_dword v{vt[1]}, v{vt[0]}, {sq(R_WS)}, s{stmp} offen sc1
    s_mov_b64 exec, -1
    {LZ}:
    """)

class Poll:
    def __init__(self, e, n, va, vd, soff, tag, mask=None, sleep=0, gap=2):
        self.e, self.va, self.soff, self.tag = e, va, soff, tag
        self.vds = list(vd) if isinstance(vd, (list, tuple)) else [vd]
        self.m = mask if mask is not None else (1 << n) - 1
        self.sleep, self.gap = sleep, gap
    def load(self, vd):
        e = self.e
        e(f"s_mov_b32 exec_lo, {self.m}\ns_mov_b32 exec_hi, 0")
        e(f"buffer_load_dword v{vd}, v{self.va}, {sq(R_WS)}, s{self.soff} offen sc1")
        e("s_mov_b64 exec, -1")
    def issue(self, pre=""):
        e = self.e
        LZ = e.label("pi")
        e(f"s_cmp_lg_u32 s{S_W}, 0\ns_cbranch_scc1 {LZ}")
        if pre: e(pre)
        self.load(self.vds[0])
        e(f"{LZ}:")
        self.pos = e.vcount
    def test(self, vd, ok):
        e = self.e
        e(f"s_mov_b32 exec_lo, {self.m}\ns_mov_b32 exec_hi, 0")
        e(f"v_cmp_ne_u32 vcc, s{S_NONCE}, v{vd}")
        e("s_mov_b64 exec, -1")
        e(f"s_cmp_eq_u64 vcc, 0\ns_cbranch_scc1 {ok}")
    def check(self, stmp=51, limit=0x8000, wait=True):
        e = self.e
        LZ = e.label("pc")
        D = len(self.vds)
        e(f"s_cmp_lg_u32 s{S_W}, 0\ns_cbranch_scc1 {LZ}_ok")
        if wait: e.wait_v_since(self.pos)
        else: e("s_waitcnt vmcnt(0)")
        self.test(self.vds[0], f"{LZ}_ok")
        for vd in self.vds[1:]:
            self.load(vd)
            if self.gap: e(f"s_sleep {self.gap}")
        e(f"s_mov_b32 s{stmp}, 0\n{LZ}_chk:")
        for k in range(D):
            if self.sleep: e(f"s_sleep {self.sleep}")
            self.load(self.vds[k])
            e(f"s_waitcnt vmcnt({D - 1})")
            self.test(self.vds[(k + 1) % D], f"{LZ}_ok")
        e(f"""
        s_add_u32 s{stmp}, s{stmp}, 1
        s_cmp_lt_u32 s{stmp}, {limit // D}
        s_cbranch_scc1 {LZ}_chk
        {LZ}_ok:
        """)

def k3_ids(e):
    return late(e, f"""
    s_and_b32 s62, s2, 7
    s_lshr_b32 s63, s2, 3
    s_lshl_b32 s62, s62, 2
    s_and_b32 s{S3_TT}, s63, 3
    s_add_u32 s{S3_TT}, s{S3_TT}, s62
    s_lshr_b32 s{S3_NT}, s63, 2
    s_lshl_b32 s{S3_T0}, s{S3_TT}, 6
    s_and_b32 s{S3_TB}, s{S_W}, 1
    s_lshr_b32 s{S3_DB}, s{S_W}, 1
    s_and_b32 s{S3_DB}, s{S3_DB}, 1
    s_lshr_b32 s{S3_KH}, s{S_W}, 2
    """)

def k23_main(e, opt=None, entry="cold"):
    opt = opt or {}
    XR, WR, NS = K2_XR, K2_WR, K2_NS
    L = 1
    XG, WGI = 2, 4
    XA, XH, WA = 8, 12, 16
    BIAS, STW, STR, GH, CK1, CK2 = 20, 21, 22, 23, 24, 25
    T = 26
    XF, WF, ACC, ZF, U1, GT = 32, 48, 64, 80, V_Z1, 104
    sX, sW, sM0X, sM0W, sT, sT2, sT3 = 48, 49, 52, 53, 55, 56, 57
    t0, t1, t2, t3 = GT, GT + 1, GT + 2, GT + 3
    NCH = 32
    tm = opt.get("tm")
    zsc = " sc1" if (entry == "k1" and not opt.get("zplain")) else ""
    hsc = "" if opt.get("hplain") else " sc1"
    ZP, ZJ = (128, 18) if tm else (1792, 7)
    HP = 128 if tm else 2688
    def hoff(k): return k * (262144 if tm else 128)
    PDS = [151, 200, 201, 202][:opt.get("pd", 4)]
    FW = opt.get("fw", 1)
    if entry == "k1" and getattr(e, "k1_tail", None) is not None:
        flag_store(e, f"s_lshl_b32 s62, s{S_J}, 7\ns_lshl_b32 s63, s{S_MT}, 2\ns_add_u32 s62, s62, s63", F_Z2, vt=(142, 143), wave=FW)
        e(f"v_lshlrev_b32 v141, 2, v{L}")
        pollZ = Poll(e, 16, 141, PDS, 50, "z")
        if not opt.get("zlate"): pollZ.issue(f"s_lshl_b32 s50, s{S_J}, 7\ns_add_u32 s50, s50, {F_Z2}")
    e(f"""
    v_lshrrev_b32 v{t0}, 3, v{L}
    v_lshrrev_b32 v{t1}, 4, v{L}
    v_and_b32 v{t2}, 7, v{L}
    v_lshlrev_b32 v{XG}, 12, v{t0}
    v_xor_b32 v{t3}, v{t2}, v{t1}
    v_lshlrev_b32 v{t3}, 4, v{t3}
    v_add_u32 v{XG+1}, {8*4096-1024}, v{XG}
    v_add_u32 v{XG}, v{XG}, v{t3}
    v_xor_b32 v{t3}, 64, v{t3}
    v_add_u32 v{XG+1}, v{XG+1}, v{t3}
    v_and_b32 v{t3}, 1, v{t1}
    v_lshlrev_b32 v{t3}, 2, v{t3}
    v_xor_b32 v{t3}, v{t2}, v{t3}
    v_lshlrev_b32 v{t3}, 4, v{t3}
    v_mul_u32_u24 v{WGI}, {ZP}, v{t0}
    v_add_u32 v{WGI}, v{WGI}, v{t3}
    s_lshl_b32 s{sT}, s{S_W}, 4
    s_add_u32 s{sT}, s{sT}, s{S_ROW0}
    s_lshl_b32 s{sX}, s{sT}, 12
    s_mul_i32 s{sT}, s{S_W}, {8*ZP}
    s_lshl_b32 s{sT2}, s{S_J}, {ZJ}
    s_add_u32 s{sW}, s{sT}, s{sT2}
    s_add_u32 s{sW}, s{sW}, {WS_Z2}
    s_lshl_b32 s{sM0X}, s{S_W}, 11
    s_add_u32 s{sM0X}, s{sM0X}, {XR}
    s_lshl_b32 s{sM0W}, s{S_W}, 10
    s_add_u32 s{sM0W}, s{sM0W}, {WR}
    """)
    k1e = entry == "k1"
    if k1e:
        fin_srds(e, ["wsp", "bsp", "wout", "wo", "out"])
    else:
        e(f"s_mov_b32 s60, {F_N}\ns_waitcnt lgkmcnt(0)")
        fin_srds(e, ["wsp", "ws", "bsp", "wout", "wo", "x", "out"])
        e(f"s_load_dword s{S_NONCE}, s[{R_WS}:{R_WS+1}], s60")
    def x_dma(c):
        if c >= NCH: return []
        def pre():
            e(f"s_add_u32 m0, s{sM0X}, {(c % NS) * 16384}")
            e(f"s_add_u32 s{sT}, s{sX}, {c * 128}")
        ops = [pre]
        for i in range(2):
            ops.append(lambda i=i: e.vm(f"buffer_load_dwordx4 v{XG+i}, {sq(R_WSP)}, s{sT} offen offset:{1024*i} lds", ("x", c)))
        return ops
    def w_dma(c):
        if c >= NCH: return []
        def op():
            e(f"s_add_u32 m0, s{sM0W}, {(c % NS) * 8192}")
            e(f"s_add_u32 s{sT2}, s{sW}, {c * 64 * ZP}")
            e.vm(f"buffer_load_dwordx4 v{WGI}, {sq(R_WS)}, s{sT2} offen{zsc} lds", ("w", c))
        return [op]
    npro = opt.get("npro", 5)
    for op in x_dma(0) + ([] if k1e else w_dma(0)): op()
    if not k1e: e.c("TS 1")
    e(f"""
    v_lshlrev_b32 v{t0}, 5, v0
    v_and_b32 v{t1}, 31, v{L}
    v_lshlrev_b32 v{t1}, 1, v{t1}
    s_lshl_b32 s58, s{S_RG}, 5
    s_add_u32 s58, s58, s{S_ROW0}
    s_lshl_b32 s58, s58, 1
    """)
    def u1_load():
        if not k1e:
            e.vm(f"buffer_load_dwordx4 v[{U1}:{U1+3}], v{t0}, {sq(R_WS)}, s{sT3} offen", "u1")
            e.vm(f"buffer_load_dwordx4 v[{U1+4}:{U1+7}], v{t0}, {sq(R_WS)}, s{sT3} offen offset:16", "u1")
        e.vm(f"buffer_load_ushort v{BIAS}, v{t1}, {sq(R_BSP)}, s58 offen", "u1")
    def frag_addr(rot_txt, xrow_txt, xbase, wbase, XAr, WAr, nstep, step_txt, chreg):
        pass
    n_, h_, r_, qd_, chf_, u_ = GT + 4, GT + 5, GT + 6, GT + 7, GT + 8, GT + 9
    e(f"""
    v_and_b32 v{n_}, 31, v{L}
    v_lshrrev_b32 v{h_}, 5, v{L}
    v_and_b32 v{r_}, 15, v{L}
    v_and_b32 v{qd_}, 3, v{r_}
    v_lshlrev_b32 v{qd_}, 3, v{qd_}
    v_lshrrev_b32 v{r_}, 2, v{r_}
    v_lshrrev_b32 v{chf_}, 4, v{L}
    v_and_b32 v{chf_}, 1, v{chf_}
    v_lshlrev_b32 v{chf_}, 5, v{chf_}
    v_add_u32 v{chf_}, v{chf_}, v{qd_}
    s_lshl_b32 s{sT}, s{S_CH}, 1
    s_add_u32 s{sT}, s{sT}, s{S_RG}
    v_lshlrev_b32 v{u_}, 3, v{h_}
    v_add_u32 v{u_}, v{u_}, v{r_}
    v_lshlrev_b32 v{u_}, 7, v{u_}
    v_add_u32 v{u_}, v{u_}, v{chf_}
    v_lshrrev_b32 v{r_}, 1, v{r_}
    v_xor_b32 v{r_}, s{S_CH}, v{r_}
    v_lshlrev_b32 v{r_}, 6, v{r_}
    v_add_u32 v{u_}, v{u_}, v{r_}
    v_lshrrev_b32 v{qd_}, 1, v{n_}
    v_and_b32 v{qd_}, 7, v{qd_}
    v_lshlrev_b32 v{chf_}, 7, v{n_}
    s_lshl_b32 s{sT2}, s{S_RG}, 12
    s_add_u32 s{sT2}, s{sT2}, {XR}
    v_add_u32 v{chf_}, s{sT2}, v{chf_}
    """)
    for p in range(4):
        e(f"""
        s_add_u32 s{sT2}, s{sT}, {p}
        s_and_b32 s{sT2}, s{sT2}, 3
        s_lshl_b32 s{sT3}, s{sT2}, 1
        v_add_u32 v{r_}, s{sT3}, v{h_}
        v_xor_b32 v{r_}, v{r_}, v{qd_}
        v_lshlrev_b32 v{r_}, 4, v{r_}
        v_add_u32 v{XA+p}, v{chf_}, v{r_}
        s_lshl_b32 s{sT3}, s{sT2}, 11
        s_add_u32 s{sT3}, s{sT3}, {WR}
        v_add_u32 v{WA+p}, s{sT3}, v{u_}
        v_add_u32 v{XH+p}, 0x10000, v{XA+p}
        """)
    if not k1e:
        e("s_barrier")
        for c in range(1, npro):
            for op in x_dma(c) + w_dma(c): op()
            if c in opt.get("pb", (1, 2, 3)): e("s_barrier")
        e(f"s_lshl_b32 s{sT3}, s2, 14\ns_add_u32 s{sT3}, s{sT3}, {WS_Z1R}")
        u1_load()
        e.c("TS 2")
    else:
        tail = getattr(e, "k1_tail", None)
        for c in range(1, npro):
            for op in x_dma(c): op()
        u1_load()
        if tail is None:
            e(f"v_lshlrev_b32 v150, 2, v{L}")
            pollZ = Poll(e, 16, 150, PDS, 50, "z")
            e.wait_v_since(e.pos_join)
            e("s_barrier")
            flag_store(e, f"s_lshl_b32 s62, s{S_J}, 7\ns_lshl_b32 s63, s{S_MT}, 2\ns_add_u32 s62, s62, s63", F_Z2, vt=(162, 163), wave=FW)
            pollZ.issue(f"s_lshl_b32 s50, s{S_J}, 7\ns_add_u32 s50, s50, {F_Z2}")
            e.c("TS 1")
            e.wait_v_since(e.pos_q2)
        else:
            for op in tail: op()
            if opt.get("zlate"): pollZ.issue(f"s_lshl_b32 s50, s{S_J}, 7\ns_add_u32 s50, s50, {F_Z2}")
            e.c("TS 1")
            e.need_v("st_q")
        e("s_barrier")
        flag_store(e, f"s_lshl_b32 s62, s{S_MT}, 7\ns_lshl_b32 s63, s{S_J}, 2\ns_add_u32 s62, s62, s63", F_Q, vt=(162, 163), wave=FW + 1)
        pollZ.check()
        e("s_barrier")
        e.c("TS 2")
        for c in range(npro):
            for op in w_dma(c): op()
            if c in opt.get("pbz", (0, 1)): e("s_barrier")
    dsched = {c: [] for c in range(NCH)}
    nxt = npro
    for c in range(NCH):
        for _ in range(opt.get("dn", 2)):
            if nxt < NCH and nxt <= c + NS - 1: dsched[c].append(nxt); nxt += 1
    assert nxt == NCH

    def x_read(c, p):
        s = c % NS
        a = (XA if s < 4 else XH) + p
        return lambda: e.ds(f"ds_read_b128 v[{XF+4*p}:{XF+4*p+3}], v{a} offset:{(s % 4) * 16384}", ("f", c, p))
    def w_read(c, p):
        ops = []
        for t in range(2):
            d = WF + 4 * p + 2 * t
            ops.append(lambda d=d, t=t: e.ds(f"ds_read_b64_tr_b16 v[{d}:{d+1}], v{WA+p} offset:{(c % NS) * 8192 + t * 512}", ("f", c, p)))
        return ops
    def mfma(c, p):
        cin = "0" if (c == 0 and p == 0) else f"v[{ACC}:{ACC+15}]"
        e(f"v_mfma_f32_32x32x16_bf16 v[{ACC}:{ACC+15}], v[{WF+4*p}:{WF+4*p+3}], v[{XF+4*p}:{XF+4*p+3}], {cin}")

    XG3, WG3, RG3 = 128, 129, 130
    XA3, WA3 = 132, 136
    RA, RW, XRD, XRD2, STW3, STR3, GO = 142, 143, 144, 145, 146, 147, 148
    PA_, PD_ = 150, 151
    T3 = 152
    order = [14 + i for i in range(7)] + list(range(14))
    if opt.get('swap'): order = order[:7] + [k ^ 1 for k in range(14)]
    N3 = 21
    u0, u1_, u2, u3 = T3, T3 + 1, T3 + 2, T3 + 3
    k3_setup = k3_ids(e) + late(e, f"""
    v_lshrrev_b32 v{u0}, 3, v{L}
    v_lshrrev_b32 v{u1_}, 4, v{L}
    v_and_b32 v{u2}, 7, v{L}
    v_and_b32 v{u3}, 1, v{u1_}
    v_lshlrev_b32 v{u3}, 2, v{u3}
    v_xor_b32 v{u3}, v{u2}, v{u3}
    v_lshlrev_b32 v{u3}, 4, v{u3}
    v_mul_u32_u24 v{WG3}, 896, v{u0}
    v_add_u32 v{WG3}, v{WG3}, v{u3}
    s_lshl_b32 s62, s{S3_TB}, 2
    v_add_u32 v{u1_}, s62, v{u1_}
    v_xor_b32 v{u3}, v{u2}, v{u1_}
    v_lshlrev_b32 v{u3}, 4, v{u3}
    v_mul_u32_u24 v{XG3}, {HP}, v{u0}
    v_add_u32 v{XG3}, v{XG3}, v{u3}
    v_mul_u32_u24 v{RG3}, 896, v{u0}
    v_add_u32 v{RG3}, v{RG3}, v{u3}
    s_lshl_b32 s62, s{S_W}, 3
    s_add_u32 s63, s62, s{S3_T0}
    s_mul_i32 s{S3_X}, s63, {HP}
    s_add_u32 s{S3_X}, s{S3_X}, {WS_HO}
    s_mul_i32 s{S3_R}, s63, 896
    s_mul_i32 s{S3_WW}, s62, 896
    s_lshl_b32 s63, s{S3_NT}, 7
    s_add_u32 s{S3_WW}, s{S3_WW}, s63
    s_add_u32 s{S3_R}, s{S3_R}, s63
    s_lshl_b32 s{S3_M0}, s{S_W}, 10
    v_lshlrev_b32 v{PA_}, 2, v{L}
    v_lshlrev_b32 v196, 4, v0
    v_add_u32 v197, 0x10000, v196
    """)
    n3, h3, r3, qd3, chf3, w3 = T3 + 4, T3 + 5, T3 + 6, T3 + 7, T3 + 8, T3 + 9
    k3_addr = late(e, f"""
    v_and_b32 v{n3}, 31, v{L}
    v_lshrrev_b32 v{h3}, 5, v{L}
    v_and_b32 v{r3}, 15, v{L}
    v_and_b32 v{qd3}, 3, v{r3}
    v_lshlrev_b32 v{qd3}, 3, v{qd3}
    v_lshrrev_b32 v{r3}, 2, v{r3}
    v_lshrrev_b32 v{chf3}, 4, v{L}
    v_and_b32 v{chf3}, 1, v{chf3}
    v_lshlrev_b32 v{chf3}, 5, v{chf3}
    v_add_u32 v{chf3}, v{chf3}, v{qd3}
    v_lshlrev_b32 v{w3}, 3, v{h3}
    v_add_u32 v{w3}, v{w3}, v{r3}
    v_lshlrev_b32 v{w3}, 7, v{w3}
    v_add_u32 v{w3}, v{w3}, v{chf3}
    v_lshrrev_b32 v{r3}, 1, v{r3}
    v_xor_b32 v{r3}, s{S3_DB}, v{r3}
    v_lshlrev_b32 v{r3}, 6, v{r3}
    v_add_u32 v{w3}, v{w3}, v{r3}
    v_lshrrev_b32 v{qd3}, 1, v{n3}
    v_and_b32 v{qd3}, 7, v{qd3}
    s_lshl_b32 s62, s{S3_TB}, 5
    v_add_u32 v{n3}, s62, v{n3}
    v_lshlrev_b32 v{chf3}, 7, v{n3}
    """)
    for p in range(2):
        k3_addr += late(e, f"""
        s_lshl_b32 s62, s{S3_KH}, 1
        s_add_u32 s62, s62, {p}
        s_lshl_b32 s63, s62, 1
        v_add_u32 v{r3}, s63, v{h3}
        v_xor_b32 v{r3}, v{r3}, v{qd3}
        v_lshlrev_b32 v{r3}, 4, v{r3}
        v_add_u32 v{XA3+p}, v{chf3}, v{r3}
        v_add_u32 v{XA3+2+p}, 0x10000, v{XA3+p}
        s_lshl_b32 s63, s62, 11
        v_add_u32 v{WA3+p}, s63, v{w3}
        v_add_u32 v{WA3+2+p}, 0x10000, v{WA3+p}
        v_add_u32 v{WA3+4+p}, 0x20000, v{WA3+p}
        """)
    RED, STG = 0, 16384
    a0, a1, a2 = T3, T3 + 1, T3 + 2
    k3_epi_addr = late(e, f"""
    s_and_b32 s62, s{S_W}, 3
    s_lshl_b32 s62, s62, 12
    s_lshl_b32 s63, s{S3_KH}, 11
    s_add_u32 s60, s62, s63
    s_xor_b32 s63, s63, 2048
    s_add_u32 s61, s62, s63
    v_lshlrev_b32 v{a0}, 4, v{L}
    v_add_u32 v{RA}, s60, v{a0}
    v_add_u32 v{RW}, s61, v{a0}
    v_and_b32 v{a0}, 31, v{L}
    v_lshrrev_b32 v{a1}, 5, v{L}
    s_lshl_b32 s62, s{S3_TB}, 5
    v_add_u32 v{a2}, s62, v{a0}
    v_lshlrev_b32 v{a1}, 3, v{a1}
    s_lshl_b32 s63, s{S3_DB}, 6
    s_lshl_b32 s60, s{S3_KH}, 5
    s_add_u32 s63, s63, s60
    v_lshrrev_b32 v{a0}, 1, v{a0}
    v_and_b32 v{a0}, 7, v{a0}
    v_lshlrev_b32 v{a0}, 4, v{a0}
    v_xor_b32 v{a0}, s63, v{a0}
    v_lshl_add_u32 v{XRD}, v{a2}, 7, v{a0}
    v_add_u32 v{XRD}, v{XRD}, v{a1}
    v_add_u32 v{XRD}, {K3_XS}, v{XRD}
    v_xor_b32 v{XRD2}, 16, v{XRD}
    v_mul_u32_u24 v{STW3}, 144, v{a2}
    v_add3_u32 v{STW3}, v{STW3}, v{a1}, s63
    v_lshrrev_b32 v{a0}, 3, v0
    v_and_b32 v{a1}, 7, v0
    v_lshlrev_b32 v{a1}, 4, v{a1}
    v_mul_u32_u24 v{STR3}, 144, v{a0}
    v_add_u32 v{STR3}, v{STR3}, v{a1}
    v_mul_u32_u24 v{GO}, 896, v{a0}
    v_add_u32 v{GO}, v{GO}, v{a1}
    """)
    XR3, LW3 = 164, 196
    def x3_land(c):
        if not (opt.get("xreg") and c >= 7): return
        off = K3_X[c % 8]
        e.need_v(("x3", c))
        r = XR3 + 4 * (c % 8)
        e.ds(f"ds_write_b128 v{LW3 + (off >> 16)}, v[{r}:{r+3}] offset:{off & 0xffff}", ("xw", c))
        e.need_l(("xw", c))
    def x3_dma(c):
        if opt.get("xreg") and c >= 7:
            def opr():
                r = XR3 + 4 * (c % 8)
                e(f"s_add_u32 s{sT}, s{S3_X}, {hoff(order[c])}")
                e.vm(f"buffer_load_dwordx4 v[{r}:{r+3}], v{XG3}, {sq(R_WS)}, s{sT} offen sc1", ("x3", c))
            return [opr]
        def op():
            e(f"s_add_u32 m0, s{S3_M0}, {K3_X[c % 8]}")
            e(f"s_add_u32 s{sT}, s{S3_X}, {hoff(order[c])}")
            e.vm(f"buffer_load_dwordx4 v{XG3}, {sq(R_WS)}, s{sT} offen{hsc} lds", ("x3", c))
        return [op]
    def w3_dma(c):
        k = order[c]
        def op():
            e(f"s_add_u32 m0, s{S3_M0}, {K3_W[c % 10]}")
            e(f"s_add_u32 s{sT2}, s{S3_WW}, {(k if k < 14 else k - 14) * 64 * 896}")
            e.vm(f"buffer_load_dwordx4 v{WG3}, {sq(R_WOUT if k < 14 else R_WO)}, s{sT2} offen lds", ("w3", c))
        return [op]
    def res_dma():
        e(f"s_add_u32 m0, s{S3_M0}, {K3_XS}")
        e.vm(f"buffer_load_dwordx4 v{RG3}, {sq(R_X)}, s{S3_R} offen lds", "res")
    def x3_read(c, p):
        d = XF + 8 * (c % 2) + 4 * p
        off = K3_X[c % 8]
        return lambda: e.ds(f"ds_read_b128 v[{d}:{d+3}], v{XA3 + 2 * (off >> 16) + p} offset:{off & 0xffff}", ("f3", c))
    def w3_read(c, p):
        ops = []
        off = K3_W[c % 10]
        for t in range(2):
            d = WF + 8 * (c % 2) + 4 * p + 2 * t
            ops.append(lambda d=d, t=t: e.ds(f"ds_read_b64_tr_b16 v[{d}:{d+1}], v{WA3 + 2 * (off >> 16) + p} offset:{(off & 0xffff) + t * 512}", ("f3", c)))
        return ops
    def mfma3(c, p):
        cin = "0" if (c == 0 and p == 0) else f"v[{ACC}:{ACC+15}]"
        b = 8 * (c % 2) + 4 * p
        e(f"v_mfma_f32_32x32x16_bf16 v[{ACC}:{ACC+15}], v[{WF+b}:{WF+b+3}], v[{XF+b}:{XF+b+3}], {cin}")
    pollO = Poll(e, 1, PA_, PD_, 50, "o")
    pollH = Poll(e, 14, PA_, PDS, 50, "h")

    a0, a1, a2 = T, T + 1, T + 2
    setup = late(e, f"""
    v_mov_b32 v{CK1}, {fbits(GELU_K1)}
    v_mov_b32 v{CK2}, {fbits(GELU_K2)}
    v_and_b32 v{a0}, 31, v{L}
    v_lshrrev_b32 v{a1}, 5, v{L}
    s_lshl_b32 s{sT3}, s{S_RG}, 5
    v_add_u32 v{a2}, s{sT3}, v{a0}
    v_lshlrev_b32 v{a2}, 7, v{a2}
    v_lshlrev_b32 v{a1}, 3, v{a1}
    v_add_u32 v{a2}, v{a2}, v{a1}
    v_add_u32 v{a2}, {HSTG}, v{a2}
    v_lshrrev_b32 v{a0}, 1, v{a0}
    v_and_b32 v{a0}, 7, v{a0}
    s_lshl_b32 s{sT3}, s{S_CH}, 2
    v_xor_b32 v{a0}, s{sT3}, v{a0}
    v_lshl_add_u32 v{STW}, v{a0}, 4, v{a2}
    v_lshrrev_b32 v{a0}, 3, v{L}
    v_and_b32 v{a1}, 7, v{L}
    v_lshlrev_b32 v{a2}, 4, v{a1}
    v_mul_u32_u24 v{GH}, {HP}, v{a0}
    v_add_u32 v{GH}, v{GH}, v{a2}
    s_lshl_b32 s{sT3}, s{S_W}, 4
    v_add_u32 v{a0}, s{sT3}, v{a0}
    v_lshrrev_b32 v{a2}, 4, v{L}
    v_xor_b32 v{a1}, v{a1}, v{a2}
    v_lshlrev_b32 v{a1}, 4, v{a1}
    v_lshl_add_u32 v{STR}, v{a0}, 7, v{a1}
    v_add_u32 v{STR}, {HSTG}, v{STR}
    v_xor_b32 v{T+3}, 64, v{STR}
    v_xor_b32 v{T}, 16, v{STW}
    v_xor_b32 v{T+1}, 32, v{STW}
    v_xor_b32 v{T+2}, 48, v{STW}
    """)
    gel = []
    for q in range(4):
        z = [ZF + 4 * q + i for i in range(4)]
        t = [GT + 4 * (q % 2) + i for i in range(4)]
        gel.append(lambda q=q: (e.need_v("u1"), e(f"v_lshlrev_b32 v{ZF+4*q}, 16, v{U1+2*q}")))
        gel += late(e, f"""
            v_and_b32 v{ZF+4*q+1}, 0xffff0000, v{U1+2*q}
            v_lshlrev_b32 v{ZF+4*q+2}, 16, v{U1+2*q+1}
            v_and_b32 v{ZF+4*q+3}, 0xffff0000, v{U1+2*q+1}
            """)
        for fmt in ("v_mul_f32 v{t}, v{a}, v{a}", f"v_fma_f32 v{{t}}, v{{t}}, v{CK2}, v{CK1}", "v_mul_f32 v{t}, v{a}, v{t}",
                    "v_exp_f32 v{t}, v{t}", "v_add_f32 v{t}, 1.0, v{t}", "v_rcp_f32 v{t}, v{t}", "v_mul_f32 v{a}, v{a}, v{t}"):
            for i in range(4):
                gel.append(lambda fmt=fmt, i=i, z=z, t=t: e(fmt.format(t=t[i], a=z[i])))
    gel.append(lambda: e(f"v_lshlrev_b32 v{BIAS}, 16, v{BIAS}"))
    gaps = {(c, p): [] for c in range(NCH) for p in range(4)}
    def spread_gaps(ops, a_, b_):
        slots = [(c, p) for c in range(a_[0], b_[0] + 1) for p in range(4) if (c, p) >= tuple(a_) and (c, p) <= tuple(b_)]
        for sl, s_ in zip(spread(ops, len(slots)), slots): gaps[s_] += sl
    spread_gaps(setup, (0, 0), (2, 3))
    spread_gaps(gel, (4, 0), (17, 3))
    spread_gaps(k3_setup, (18, 0), (20, 3))
    spread_gaps(k3_addr, (21, 0), (24, 3))
    spread_gaps(k3_epi_addr, (25, 0), (28, 3))
    gaps[(21, 1)].append(res_dma)
    olate = opt.get("olate")
    gaps[(31, 0) if olate else (24, 0)].append(lambda: pollO.issue(f"s_lshl_b32 s50, s{S3_TT}, 7\ns_add_u32 s50, s50, {F_O}"))
    pre3 = {27: w3_dma(0), 28: w3_dma(1), 29: x3_dma(0) + x3_dma(1) + w3_dma(2), 30: x3_dma(2) + x3_dma(3) + w3_dma(3),
            31: x3_dma(4) + x3_dma(5) + w3_dma(4) + w3_dma(6) + w3_dma(7)}
    if olate: pre3 = {27: w3_dma(0), 28: w3_dma(1), 29: w3_dma(2), 30: w3_dma(3), 31: w3_dma(4) + w3_dma(6) + w3_dma(7)}

    e.need_v([("x", 0), ("w", 0)]); e("s_waitcnt lgkmcnt(0)"); e("s_barrier")
    e.c("TS 3")
    for p in range(4):
        x_read(0, p)()
        for op in w_read(0, p): op()
    dpos = opt.get("dpos", (0, 2))
    tsl = opt.get("ts", (8, 27))
    for c in range(NCH):
        if c in tsl: e.c(f"TS {opt.get('tsb', 4) + tsl.index(c)}")
        if c + 1 < NCH: e.need_v([("x", c + 1), ("w", c + 1)])
        if c == 29 and not olate:
            pollO.check()
            if opt.get("inv"): e("buffer_inv sc1\ns_waitcnt vmcnt(0)")
        e("s_barrier")
        dl = [x_dma(k) + w_dma(k) for k in dsched[c]] + [[], []]
        if c in pre3: dl[0] = dl[0] + pre3[c][:len(pre3[c]) // 2]; dl[1] = dl[1] + pre3[c][len(pre3[c]) // 2:]
        for p in range(4):
            e.need_l(("f", c, p))
            mfma(c, p)
            if c + 1 < NCH:
                x_read(c + 1, p)()
                for f in w_read(c + 1, p): f()
            if p == dpos[0]:
                for f in dl[0]: f()
            if p == dpos[1]:
                for f in dl[1]: f()
            for f in gaps[(c, p)]: f()
    e.c("TS 6")
    BV = GT
    STWS = [STW, T, T + 1, T + 2]
    for q in range(4):
        a = ACC + 4 * q
        for i in range(4): e(f"v_add_f32 v{a+i}, v{a+i}, v{BIAS}")
        for i in range(4): e(f"v_mul_f32 v{a+i}, v{a+i}, v{ZF+4*q+i}")
        e(f"v_cvt_pk_bf16_f32 v{BV+2*q}, v{a}, v{a+1}")
        e(f"v_cvt_pk_bf16_f32 v{BV+2*q+1}, v{a+2}, v{a+3}")
        e.ds(f"ds_write_b64 v{STWS[q]}, v[{BV+2*q}:{BV+2*q+1}]", "stg")
    e(f"""
    s_lshl_b32 s{sT3}, s{S_W}, 4
    s_add_u32 s{sT3}, s{sT3}, s{S_ROW0}
    s_mul_i32 s{sT3}, s{sT3}, {HP}
    s_lshl_b32 s58, s{S_J}, {ZJ}
    s_add_u32 s{sT3}, s{sT3}, s58
    s_add_u32 s{sT3}, s{sT3}, {WS_HO}
    s_add_u32 s58, s{sT3}, {8*HP}
    """)
    if not olate: e.need_v([("x3", 0), ("w3", 0), ("x3", 1), ("w3", 1)])
    e.need_l("stg"); e("s_barrier")
    e.ds(f"ds_read_b128 v[{ZF}:{ZF+3}], v{STR}", ("rb", 0))
    e.ds(f"ds_read_b128 v[{ZF+4}:{ZF+7}], v{T+3} offset:1024", ("rb", 1))
    if not olate:
        for p in range(2):
            x3_read(0, p)()
            for op in w3_read(0, p): op()
    if opt.get("diag"): e("s_memrealtime s[64:65]")
    for i in range(2):
        e.need_l(("rb", i))
        e.vm(f"buffer_store_dwordx4 v[{ZF+4*i}:{ZF+4*i+3}], v{GH}, {sq(R_WS)}, s{(sT3, 58)[i]} offen {opt.get('stf', 'sc1')}", "st_h")
    if opt.get("rbk"):
        if opt["rbk"] == 1: e("s_waitcnt vmcnt(0)"); e.vq = []
        for i in range(2):
            e.vm(f"buffer_load_dword v{200+i}, v{GH}, {sq(R_WS)}, s{(sT3, 58)[i]} offen sc1", "st_h")
    for op in w3_dma(5) + w3_dma(8) + w3_dma(9): op()
    e.c("TS 7")
    if olate:
        e.need_v("st_h"); e("s_barrier")
        flag_store(e, f"s_lshl_b32 s62, s{S_MT}, 7\ns_lshl_b32 s63, s{S_J}, 2\ns_add_u32 s62, s62, s63", F_H, vt=(162, 163), wave=FW)
        e.c("TS 11")
        pollO.check()
        e("s_barrier")
        e.c("TS 12")
        for k in range(7):
            for op in x3_dma(k): op()
        pollH.issue(f"s_lshr_b32 s50, s{S3_TT}, 1\ns_lshl_b32 s50, s50, 7\ns_add_u32 s50, s50, {F_H}")
        e.need_v([("x3", 0), ("w3", 0), ("x3", 1), ("w3", 1)]); e("s_barrier")
        for p in range(2):
            x3_read(0, p)()
            for op in w3_read(0, p): op()
    cH = opt.get("ch", 3)
    cX6 = 1
    wq = list(range(10, N3))
    xq = list(range(14, N3))
    def reads3(c):
        rd = []
        for p in range(2): rd += [x3_read(c, p)] + w3_read(c, p)
        return rd
    for c in range(N3):
        dm = []
        if c == 6:
            if olate: pollH.check()
            else:
                pollH.issue(f"s_lshr_b32 s50, s{S3_TT}, 1\ns_lshl_b32 s50, s50, 7\ns_add_u32 s50, s50, {F_H}")
                pollH.check(wait=False)
            if opt.get("inv"): e("buffer_inv sc1\ns_waitcnt vmcnt(0)")
            e("s_barrier")
            e.c("TS 8")
            if opt.get("diag"): e("s_memrealtime s[68:69]")
            for k in range(7, 14):
                for f in x3_dma(k): f()
            while wq and wq[0] <= c + 9:
                for f in w3_dma(wq.pop(0)): f()
            e.need_l(("f3", c))
            mfma3(c, 0); mfma3(c, 1)
            x3_land(7)
            if opt.get("allv0"): e.wait_v0()
            e.need_v([("x3", 7), ("w3", 7)])
            e("s_barrier")
            e.c("TS 9")
            if opt.get("diag"): e("s_memrealtime s[70:71]")
            for f in reads3(7): f()
            continue
        if c >= 1 and c + 1 < N3:
            need = [("x3", c + 1), ("w3", c + 1)]
            if c == cH and not olate: need.append("st_h")
            x3_land(c + 1)
            if opt.get("allv0") and c >= 7: e.wait_v0()
            e.need_v(need)
            if c == cH and opt.get("hv0"): e.wait_v0()
            if c == cH and opt.get("diag"): e("s_memrealtime s[66:67]")
            e("s_barrier")
            if c == cH and not olate:
                if opt.get("fdelay"): e(f"s_sleep {opt['fdelay']}")
                if opt.get("wbl2"):
                    LW = e.label("wb")
                    e(f"s_cmp_lg_u32 s{S_W}, 0\ns_cbranch_scc1 {LW}\nbuffer_wbl2 sc1\ns_waitcnt vmcnt(0)\n{LW}:")
                flag_store(e, f"s_lshl_b32 s62, s{S_MT}, 7\ns_lshl_b32 s63, s{S_J}, 2\ns_add_u32 s62, s62, s63", F_H, vt=(162, 163), wave=FW)
                if opt.get("tsf"): e.c("TS 5")
        if c == cX6 and not olate: dm += x3_dma(6)
        if c >= 1:
            n = 0
            while wq and wq[0] <= c + 9 and n < 2: dm += w3_dma(wq.pop(0)); n += 1
        if c >= 7:
            n = 0
            while xq and xq[0] <= c + 7 and n < 2: dm += x3_dma(xq.pop(0)); n += 1
        e.need_l(("f3", c))
        rd = reads3(c + 1) if c + 1 < N3 else []
        mfma3(c, 0)
        for f in rd[:3] + dm[:1]: f()
        mfma3(c, 1)
        for f in rd[3:] + dm[1:]: f()
    assert not wq and not xq
    e.c("TS 10")
    e.need_v("res")
    e("s_barrier")
    L0, L1 = e.label("k3a"), e.label("k3b")
    e(f"s_cmp_lg_u32 s{S3_KH}, 0\ns_cbranch_scc1 {L0}")
    e(f"ds_write_b128 v{RW}, v[{ACC+8}:{ACC+11}] offset:{RED}\nds_write_b128 v{RW}, v[{ACC+12}:{ACC+15}] offset:{RED+1024}")
    e(f"s_branch {L1}\n{L0}:")
    e(f"ds_write_b128 v{RW}, v[{ACC}:{ACC+3}] offset:{RED}\nds_write_b128 v{RW}, v[{ACC+4}:{ACC+7}] offset:{RED+1024}")
    for i in range(8): e(f"v_mov_b32 v{ACC+i}, v{ACC+8+i}")
    e(f"{L1}:")
    e.ds(f"ds_read_b64 v[{XF}:{XF+1}], v{XRD}", "xr")
    e.ds(f"ds_read_b64 v[{XF+2}:{XF+3}], v{XRD2}", "xr")
    e("s_waitcnt lgkmcnt(0)"); e.lq = []
    e("s_barrier")
    e.ds(f"ds_read_b128 v[{WF}:{WF+3}], v{RA} offset:{RED}", "rd")
    e.ds(f"ds_read_b128 v[{WF+4}:{WF+7}], v{RA} offset:{RED+1024}", "rd")
    U = T3
    for i in range(4):
        e(f"v_lshlrev_b32 v{U+2*i}, 16, v{XF+i}\nv_and_b32 v{U+2*i+1}, 0xffff0000, v{XF+i}")
    for i in range(8): e(f"v_add_f32 v{ACC+i}, v{ACC+i}, v{U+i}")
    e.need_l("rd")
    for i in range(8): e(f"v_add_f32 v{ACC+i}, v{ACC+i}, v{WF+i}")
    for i in range(4): e(f"v_cvt_pk_bf16_f32 v{U+i}, v{ACC+2*i}, v{ACC+2*i+1}")
    e.ds(f"ds_write_b64 v{STW3}, v[{U}:{U+1}] offset:{STG}", "stg")
    e.ds(f"ds_write_b64 v{STW3}, v[{U+2}:{U+3}] offset:{STG+16}", "stg")
    e(f"""
    s_mul_i32 s{sT}, s{S3_T0}, 896
    s_lshl_b32 s{sT2}, s{S3_NT}, 7
    s_add_u32 s{sT}, s{sT}, s{sT2}
    """)
    e.need_l("stg"); e("s_barrier")
    e.ds(f"ds_read_b128 v[{XF}:{XF+3}], v{STR3} offset:{STG}", "rb")
    e.need_l("rb")
    e.vm(f"buffer_store_dwordx4 v[{XF}:{XF+3}], v{GO}, {sq(R_OUT)}, s{sT} offen", "st")
    if opt.get("diag"):
        e(f"""
        s_getreg_b32 s72, hwreg(HW_REG_XCC_ID)
        s_getreg_b32 s73, hwreg(HW_REG_HW_ID)
        s_waitcnt lgkmcnt(0)
        v_mov_b32 v8, s64
        v_mov_b32 v9, s66
        v_mov_b32 v10, s68
        v_mov_b32 v11, s70
        v_mov_b32 v12, s72
        v_mov_b32 v13, s73
        v_mov_b32 v14, 0
        v_mov_b32 v15, 0
        s_lshl_b32 s60, s2, 3
        s_add_u32 s60, s60, s{S_W}
        s_lshl_b32 s60, s60, 5
        s_add_u32 s60, s60, 0x1520000
        s_mov_b64 exec, 1
        buffer_store_dwordx4 v[8:11], v14, {sq(R_WS)}, s60 offen
        buffer_store_dwordx4 v[12:15], v14, {sq(R_WS)}, s60 offen offset:16
        s_mov_b64 exec, -1
        """)
```

```python
import sys
from g2common import *
import g3k1, g3k2, g4k23
from g3k1 import k1_main, k1_aux, K1_LDS
from g3k2 import k2_attn
from g4k23 import *
import hz

OPT = {}
NAME = "f_kernel"
def tsmap(e, m):
    base = e.__class__.c
    def c(t):
        if t.startswith("TS "):
            n = int(t.split()[1])
            if n in m: base(e, f"TS {m[n]}")
            return
        base(e, t)
    e.c = c

def aux_f(e, opt):
    late_wsp = k1_aux(e, opt=opt)
    if not opt.get("nocpf"):
        e(f"""
        s_getpc_b64 s[52:53]
        L_hp:
        s_sub_u32 s52, s52, L_hp-L_k2
        s_subb_u32 s53, s53, 0
        s_mov_b32 s54, L_end-L_k2-16
        s_sub_u32 s55, s2, 224
        s_lshr_b32 s55, s55, 3
        s_lshl_b32 s55, s55, 13
        v_lshlrev_b32 v3, 4, v0
        v_add_u32 v3, s55, v3
        L_hp_loop:
        v_cmp_ge_u32 vcc, s54, v3
        s_and_b64 exec, exec, vcc
        s_cbranch_execz L_hp_done
        global_load_dwordx4 v[28:31], v3, s[52:53]
        v_add_u32 v3, 32768, v3
        s_branch L_hp_loop
        L_hp_done:
        s_mov_b64 exec, -1
        """)
    if late_wsp: late_wsp()
    e.c("TS 14")
    e(f"""
    v_mov_b32 v2, 0
    s_mov_b32 s51, 0
    L_anon:
    global_load_dword v3, v2, s[{R_DBG}:{R_DBG+1}] sc1
    s_waitcnt vmcnt(0)
    v_readfirstlane_b32 s{S_NONCE}, v3
    s_cmp_lg_u32 s{S_NONCE}, 0
    s_cbranch_scc1 L_anon_ok
    s_add_u32 s51, s51, 1
    s_cmp_lt_u32 s51, 0x40000
    s_cbranch_scc1 L_anon
    L_anon_ok:
    """)
    fin_srds(e, ["ws"])
    e(f"""
    s_sub_u32 s48, s2, 224
    s_lshr_b32 s49, s48, 1
    s_lshl_b32 s48, s48, 6
    s_sub_i32 s48, s48, 14
    s_max_i32 s48, s48, 0
    s_lshr_b32 s48, s48, 7
    s_lshl_b32 s48, s48, 7
    s_lshl_b32 s49, s49, 7
    v_and_b32 v4, 15, v1
    v_lshlrev_b32 v4, 2, v4
    v_mov_b32 v8, s48
    v_mov_b32 v9, s49
    v_cmp_gt_u32 vcc, 16, v1
    v_cndmask_b32 v8, v8, v9, vcc
    v_add_u32 v4, v4, v8
    """)
    pq = Poll(e, 0, 4, [5, 6, 7][:opt.get("qd", 1)], 50, "q", mask=0x3FFF3FFF, sleep=opt.get("qsleep", 4))
    pq.issue(f"s_mov_b32 s50, {F_Q}")
    pq.check(limit=0x20000)
    e("s_barrier")
    e.c("TS 13")
    o = dict(opt); o["stage_o"] = 1
    k2_attn(e, fused=not opt.get("qplain"), opt=o)
    e("s_waitcnt vmcnt(0) lgkmcnt(0)\ns_barrier")
    flag_store(e, "s_sub_u32 s62, s2, 224\ns_lshl_b32 s62, s62, 7", F_O, vt=(28, 29))
    if not opt.get("nopf3"):
        e(f"""
        s_sub_u32 s60, s2, 224
        s_lshr_b32 s60, s60, 3
        v_lshlrev_b32 v2, 7, v0
        """)
        for srd, sz in ((R_WOUT, SZ_WOUT), (R_WO, SZ_WO)):
            q = sz // 4
            e(f"s_mul_i32 s61, s60, {q}")
            n = -(-q // 65536)
            for i in range(n):
                last = q - i * 65536
                if last < 65536: e(f"v_cmp_gt_u32 vcc, {last}, v2\ns_and_b64 exec, exec, vcc")
                e(f"buffer_load_dword v{30+i+(8 if srd == R_WO else 0)}, v2, {sq(srd)}, s61 offen")
                e(f"s_add_u32 s61, s61, 65536")
            e("s_mov_b64 exec, -1")
        e("s_waitcnt vmcnt(0)")

def gen_f():
    e = E(NAME, (256, 1, 1), (512, 1, 1), K23_LDS, vgpr=256, sgpr=102, accum=256)
    assert K1_LDS == K23_LDS
    e("s_cmp_ge_u32 s2, 256\ns_cbranch_scc1 L_end")
    e.c("TS_START")
    load_srds(e, ["x", "win", "wqkv", "ws", "wsp", "bsp", "wout", "wo", "out"], dbg=True)
    wave_ids(e)
    code_prefetch(e, e.name, "L_k2", 512, 64, 70)
    e("s_cmp_ge_u32 s2, 224\ns_cbranch_scc1 L_aux")
    tile_ids(e)
    tsmap(e, OPT.get("ts1", {4: 1, 6: 2, 8: 3} if OPT.get("k1", {}).get("v4") else {4: 1, 7: 2, 9: 3}))
    k1_main(e, fused=True, opt=OPT.get("k1", {}))
    e("L_k2:")
    tsmap(e, OPT.get("ts2", {1: 4, 2: 5, 3: 6, 6: 7, 7: 8, 8: 9, 10: 10}))
    k23_main(e, opt=OPT.get("k23", {}), entry="k1")
    e("s_branch L_fin_f")
    e("L_aux:")
    e.lq, e.vq = [], []
    tsmap(e, OPT.get("ts3", {14: 1, 13: 2, 1: 4, 2: 5, 3: 6, 4: 7, 5: 8, 6: 9}))
    aux_f(e, OPT.get("k23", {}))
    e("L_fin_f:")
    e("L_end:")
    e("s_endpgm")
    return e
def kernels():
    ks = [gen_f()]
    for k in ks:
        n, pend = hz.fix_kernel(k, verbose=OPT.get("hzv", False))
        print(k.name, "pads", n, "pend", len(pend), file=sys.stderr)
    return ks
if __name__ == "__main__":
    out = sys.argv[1] if len(sys.argv) > 1 else "f1.s"
    if len(sys.argv) > 2: OPT.update(eval(sys.argv[2]))
    open(out, "w").write(build(kernels(), header=HEADER))
    print("wrote", out)
```

```python
from g2common import *

K1_XR, K1_WR, K1_ST, K1_ST2, K1_TAB = 0, 65536, 131072, 149504, 159744
K1_NON = K1_TAB + 3072
K1_LDS = K1_NON + 64
V_Z1 = 96
WS_PART = 0x1400000
BARS = (0, 1, 2, 3, 4, 5, 6, 7, 9, 11, 13, 14, 16, 18, 20, 21, 23, 25, 27)


def k1_main(e, fused=False, opt=None):
    opt = opt or {}
    if "tsg" in opt:
        _c = e.c
        def c2(t):
            if t.startswith("TS ") and not t.endswith(" "): return
            _c(t)
        e.c = c2
    bars = opt.get("bars", BARS)
    XR, WR, ST, ST2, TAB, NON = K1_XR, K1_WR, K1_ST, K1_ST2, K1_TAB, K1_NON
    RS, CSP, ZSP = ST2, TAB, TAB + 1024
    XSLOT = (0, 16384, 32768, 49152, ST, 0, 16384)
    STZ = XR
    L = 1
    XG, WGI, WGQ, WGQ2 = 2, 4, 5, 6
    CSW = 7
    XA, WA = 8, 12
    WB = XA
    STWZ, STRZ = WA, WA + 1
    SEL, CSA = 16, 20
    S_, SS_, ONE, GA, GB, RINV, R_, CSPR = 24, 25, 26, 27, 28, 29, 30, 31
    WF, PK, PK2, T = 32, V_Z1, 104, 112
    v4 = opt.get("v4")
    KINDS = ("z2", "q2", "q", "z1") if v4 else ("z2", "z1", "q", "q2")
    ACCS = (64, 80, 48, 80)
    if v4: STWZ, STRZ = XA, XA + 1
    GRAM, SX = 48, T
    RB = 120
    STW, STR, GZ, GQ = 128, 129, 130, 131
    CB, CA = 132, 136
    RSR, RSW, PLA, ZA = 140, 141, 142, 143
    XA4 = PK
    PL = 64
    sX, sWz2, sWz1, sWq, sM0X, sM0W, sM0W2, sT, sT2, sT3 = 48, 49, 50, 51, 52, 53, 54, 55, 56, 57
    sU, sV = 60, 61
    t0, t1, t2, t3 = T, T + 1, T + 2, T + 3

    e(f"""
    v_lshrrev_b32 v{t0}, 3, v{L}
    v_lshrrev_b32 v{t1}, 4, v{L}
    v_and_b32 v{t2}, 7, v{L}
    v_mul_u32_u24 v{XG}, 896, v{t0}
    v_xor_b32 v{t3}, v{t2}, v{t1}
    v_lshlrev_b32 v{t3}, 4, v{t3}
    v_add_u32 v{XG+1}, {8*896-1024}, v{XG}
    v_add_u32 v{XG}, v{XG}, v{t3}
    v_xor_b32 v{t3}, 64, v{t3}
    v_add_u32 v{XG+1}, v{XG+1}, v{t3}
    v_and_b32 v{t3}, 1, v{t1}
    v_lshlrev_b32 v{t3}, 2, v{t3}
    v_xor_b32 v{t3}, v{t2}, v{t3}
    v_lshlrev_b32 v{t3}, 4, v{t3}
    v_mul_u32_u24 v{WGI}, 3584, v{t0}
    v_add_u32 v{WGI}, v{WGI}, v{t3}
    s_lshl_b32 s{sT}, s{S_W}, 4
    s_add_u32 s{sT}, s{sT}, s{S_ROW0}
    s_mul_i32 s{sX}, s{sT}, 896
    s_mul_i32 s{sT}, s{S_W}, {8*3584}
    s_lshl_b32 s{sT2}, s{S_J}, 7
    s_add_u32 s{sWz1}, s{sT}, s{sT2}
    s_add_u32 s{sWz2}, s{sWz1}, 1792
    s_lshl_b32 s{sM0X}, s{S_W}, 11
    s_add_u32 s{sM0X}, s{sM0X}, {XR}
    s_lshl_b32 s{sM0W}, s{S_W}, 10
    s_add_u32 s{sM0W}, s{sM0W}, {WR}
    s_waitcnt lgkmcnt(0)
    """)
    fin_srds(e, ["x", "win"])

    def x_dma(c):
        if c >= 7: return []
        def pre():
            e(f"s_add_u32 m0, s{sM0X}, {XSLOT[c]}")
            e(f"s_add_u32 s{sT}, s{sX}, {c * 128}")
        ops = [pre]
        for i in range(2):
            ops.append(lambda i=i: e.vm(f"buffer_load_dwordx4 v{XG+i}, {sq(R_X)}, s{sT} offen offset:{1024*i} lds", ("x", c)))
        return ops
    def w_dma(g):
        if g >= 28: return []
        ph, c = divmod(g, 7)
        slot = g % 8
        if KINDS[ph] != "q2":
            base, pitch, vo, srd = {"z2": (sWz2, 3584, WGI, R_WIN), "z1": (sWz1, 3584, WGI, R_WIN), "q": (sWq, 2688, WGQ, R_WQKV)}[KINDS[ph]]
            def op():
                e(f"s_add_u32 m0, s{sM0W}, {slot * 8192}")
                e(f"s_add_u32 s{sT2}, s{base}, {c * 64 * pitch}")
                e.vm(f"buffer_load_dwordx4 v{vo}, {sq(srd)}, s{sT2} offen lds", ("w", g))
        else:
            def op():
                e(f"s_add_u32 m0, s{sM0W2}, {slot * 8192}")
                e(f"s_add_u32 s{sT2}, s{sWq}, {c * 64 * 2688 + 128}")
                e("s_mov_b32 exec_hi, 0")
                e.vm(f"buffer_load_dwordx4 v{WGQ2}, {sq(R_WQKV)}, s{sT2} offen lds", ("w", g))
                e("s_mov_b32 exec_hi, -1")
        return [op]
    for op in x_dma(0) + w_dma(0) + x_dma(1) + w_dma(1): op()
    e.c("TS 1")
    fin_srds(e, ["wqkv", "ws"])
    LN = e.label("non")
    e(f"""
    s_lshl_b32 s{sT}, s2, 3
    s_add_u32 s{sT}, s{sT}, s{S_W}
    s_cmp_lg_u32 s{sT}, 1
    s_cbranch_scc1 {LN}
    s_memrealtime s[{sU}:{sU+1}]
    v_mov_b32 v{t1}, 0
    s_waitcnt lgkmcnt(0)
    s_or_b32 s{sU}, s{sU}, 1
    v_mov_b32 v{t0}, s{sU}
    s_mov_b64 exec, 1
    global_store_dword v{t1}, v{t0}, s[{R_DBG}:{R_DBG+1}] sc1
    s_mov_b64 exec, -1
    {LN}:
    """)
    n_, h_, r_, qd_, chf_, u_, v_ = T, T + 1, T + 2, T + 3, T + 4, T + 5, T + 6
    QW = RB + 7
    e(f"""
    v_and_b32 v{n_}, 31, v{L}
    v_lshrrev_b32 v{h_}, 5, v{L}
    v_and_b32 v{r_}, 15, v{L}
    v_and_b32 v{qd_}, 3, v{r_}
    v_lshlrev_b32 v{qd_}, 3, v{qd_}          ; quad*8
    v_lshrrev_b32 v{r_}, 2, v{r_}            ; r
    v_lshrrev_b32 v{chf_}, 4, v{L}
    v_and_b32 v{chf_}, 1, v{chf_}
    v_and_b32 v{u_}, 15, v{L}
    v_cmp_eq_u32 vcc, v{u_}, v{chf_}         ; selector: m == g&1
    v_mov_b32 v{ONE}, 0x3f803f80
    v_lshlrev_b32 v{chf_}, 5, v{chf_}
    v_add_u32 v{chf_}, v{chf_}, v{qd_}
    v_cndmask_b32 v{SEL}, 0, v{ONE}, vcc
    v_cndmask_b32 v{SEL+1}, 0, v{ONE}, vcc
    v_cndmask_b32 v{SEL+2}, 0, v{ONE}, vcc
    v_cndmask_b32 v{SEL+3}, 0, v{ONE}, vcc
    s_lshl_b32 s{sT}, s{S_CH}, 1
    s_add_u32 s{sT}, s{sT}, s{S_RG}          ; rotation
    v_lshlrev_b32 v{u_}, 3, v{h_}
    v_add_u32 v{u_}, v{u_}, v{r_}            ; 8h + r
    v_lshlrev_b32 v{QW}, 6, v{u_}
    v_add_u32 v{QW}, v{QW}, v{chf_}          ; q2: (8h+r)*64 + colhalf*32 + quad*8
    v_lshlrev_b32 v{u_}, 7, v{u_}
    v_add_u32 v{u_}, v{u_}, v{chf_}
    v_lshrrev_b32 v{r_}, 1, v{r_}
    v_xor_b32 v{r_}, s{S_CH}, v{r_}          ; ch ^ ((r>>1)&1)
    v_lshlrev_b32 v{r_}, 6, v{r_}
    v_add_u32 v{u_}, v{u_}, v{r_}
    v_lshrrev_b32 v{qd_}, 1, v{n_}
    v_and_b32 v{qd_}, 7, v{qd_}              ; (n>>1)&7
    v_lshlrev_b32 v{chf_}, 7, v{n_}          ; n*128
    s_lshl_b32 s{sT2}, s{S_RG}, 12
    s_add_u32 s{sT2}, s{sT2}, {XR}
    v_add_u32 v{chf_}, s{sT2}, v{chf_}
    """)
    for p in range(4):
        e(f"""
        s_add_u32 s{sT2}, s{sT}, {p}
        s_and_b32 s{sT2}, s{sT2}, 3              ; step
        s_lshl_b32 s{sT3}, s{sT2}, 1
        v_add_u32 v{r_}, s{sT3}, v{h_}
        v_xor_b32 v{r_}, v{r_}, v{qd_}
        v_lshlrev_b32 v{r_}, 4, v{r_}
        v_add_u32 v{XA+p}, v{chf_}, v{r_}
        s_lshl_b32 s{sT3}, s{sT2}, 11
        s_add_u32 s{sT3}, s{sT3}, {WR}
        v_add_u32 v{WA+p}, s{sT3}, v{u_}
        """)
    for op in x_dma(2) + w_dma(2) + x_dma(3) + x_dma(4): op()
    if opt.get("wpf"):
        LW, LX = e.label("wpfa"), e.label("wpfb")
        e(f"""
        s_and_b32 s{sT}, s{S_MT}, 3
        s_mul_i32 s{sT}, s{sT}, 112
        s_and_b32 s{sT2}, s{S_W}, 3
        s_lshl_b32 s{sT2}, s{sT2}, 5
        s_add_u32 s{sT}, s{sT}, s{sT2}
        v_lshrrev_b32 v{PK2+1}, 1, v{L}
        v_add_u32 v{PK2+1}, s{sT}, v{PK2+1}
        v_and_b32 v{PK2+2}, 1, v{L}
        s_cmp_ge_u32 s{S_W}, 4
        s_cbranch_scc1 {LW}
        v_mul_u32_u24 v{PK2+1}, 3584, v{PK2+1}
        v_mul_u32_u24 v{PK2+2}, 1792, v{PK2+2}
        v_add_u32 v{PK2+1}, v{PK2+1}, v{PK2+2}
        s_lshl_b32 s{sT}, s{S_J}, 7
        buffer_load_dword v{PK2}, v{PK2+1}, {sq(R_WIN)}, s{sT} offen
        s_branch {LX}
        {LW}:
        v_mul_u32_u24 v{PK2+1}, 2688, v{PK2+1}
        v_lshlrev_b32 v{PK2+2}, 7, v{PK2+2}
        v_add_u32 v{PK2+1}, v{PK2+1}, v{PK2+2}
        s_mul_i32 s{sT}, s{S_J}, 192
        buffer_load_dword v{PK2}, v{PK2+1}, {sq(R_WQKV)}, s{sT} offen
        {LX}:
        """)
        e.vq.append("wpf"); e.vcount += 1
    e.c("TS 2")

    def late(txt):
        return [lambda l=l: e(l) for l in txt.strip("\n").split("\n") if l.strip()]
    a0, a1, a2 = RB, RB + 1, RB + 2
    setup1 = late(f"""
    v_add_u32 v{XA4}, {ST}, v{XA}
    v_add_u32 v{XA4+1}, {ST}, v{XA+1}
    v_add_u32 v{XA4+2}, {ST}, v{XA+2}
    v_add_u32 v{XA4+3}, {ST}, v{XA+3}
    v_and_b32 v{a0}, 31, v{L}
    v_lshrrev_b32 v{a1}, 5, v{L}
    s_lshl_b32 s{sT3}, s{S_RG}, 5
    v_add_u32 v{a2}, s{sT3}, v{a0}
    v_lshlrev_b32 v{RSR}, 3, v{a2}
    v_lshl_add_u32 v{ZA}, v{a1}, 2, v{RSR}
    v_mul_u32_u24 v{PLA}, 144, v{a2}
    v_add_u32 v{RSR}, {RS}, v{RSR}
    s_lshl_b32 s{sT3}, s{S_CH}, 10
    v_add_u32 v{RSW}, s{sT3}, v{RSR}
    v_lshlrev_b32 v{a1}, 3, v{a1}
    s_lshl_b32 s{sT3}, s{S_CH}, 6
    s_add_u32 s{sT3}, s{sT3}, {ST}
    v_add3_u32 v{STW}, v{PLA}, v{a1}, s{sT3}
    v_lshlrev_b32 v{a0}, 2, v{a0}
    s_lshl_b32 s{sT3}, s{S_CH}, 7
    s_add_u32 s{sT3}, s{sT3}, {CSP}
    v_add_u32 v{CSPR}, s{sT3}, v{a0}
    s_lshl_b32 s58, s{S_RG}, 8
    s_add_u32 s{sT3}, s{sT3}, s58
    v_lshlrev_b32 v{a0}, 2, v{L}
    v_add_u32 v{CSW}, s{sT3}, v{a0}
    v_lshrrev_b32 v{a0}, 3, v{L}
    v_and_b32 v{a1}, 7, v{L}
    v_lshlrev_b32 v{a1}, 4, v{a1}
    v_mul_u32_u24 v{GZ}, {128 if opt.get("tm") else 1792}, v{a0}
    v_add_u32 v{GZ}, v{GZ}, v{a1}
    v_mul_u32_u24 v{GQ}, 2688, v{a0}
    v_add_u32 v{GQ}, v{GQ}, v{a1}
    s_lshl_b32 s{sT3}, s{S_W}, 4
    v_add_u32 v{a0}, s{sT3}, v{a0}
    v_mul_u32_u24 v{STR}, 144, v{a0}
    v_add_u32 v{STR}, v{STR}, v{a1}
    v_add_u32 v{STR}, {ST}, v{STR}
    v_mov_b32 v{CB+2}, 0
    v_mov_b32 v{CB+3}, 0
    v_mov_b32 v{CA+2}, 0
    v_mov_b32 v{CA+3}, 0
    v_mov_b32 v{S_}, 0
    v_mov_b32 v{SS_}, 0
    """)
    setup_q = late(f"""
    v_lshrrev_b32 v{a0}, 3, v{L}
    v_lshrrev_b32 v{a1}, 4, v{L}
    v_and_b32 v{a1}, 1, v{a1}
    v_lshlrev_b32 v{a1}, 2, v{a1}
    v_and_b32 v{a2}, 7, v{L}
    v_xor_b32 v{a1}, v{a2}, v{a1}
    v_lshlrev_b32 v{a1}, 4, v{a1}
    v_mul_u32_u24 v{WGQ}, 2688, v{a0}
    v_add_u32 v{WGQ}, v{WGQ}, v{a1}
    v_lshrrev_b32 v{WGQ2}, 2, v{L}
    v_mul_u32_u24 v{WGQ2}, 2688, v{WGQ2}
    v_and_b32 v{a0}, 3, v{L}
    v_lshlrev_b32 v{a0}, 4, v{a0}
    v_add_u32 v{WGQ2}, v{WGQ2}, v{a0}
    s_mul_i32 s{sT3}, s{S_W}, {8*2688}
    s_mul_i32 s58, s{S_J}, 192
    s_add_u32 s{sWq}, s{sT3}, s58
    s_lshl_b32 s{sM0W2}, s{S_W}, 9
    s_add_u32 s{sM0W2}, s{sM0W2}, {WR}
    """)
    def setup_wb(ps=range(4)):
        ops = []
        for p in ps:
            ops += late(f"""
            s_lshl_b32 s{sT3}, s{S_CH}, 1
            s_add_u32 s{sT3}, s{sT3}, s{S_RG}
            s_add_u32 s{sT3}, s{sT3}, {p}
            s_and_b32 s{sT3}, s{sT3}, 3
            s_lshl_b32 s{sT3}, s{sT3}, 10
            s_add_u32 s{sT3}, s{sT3}, {WR}
            v_add_u32 v{WB+p}, s{sT3}, v{QW}
            """)
        return ops

    def xfr(c, p):
        b = (4*c+p)*4
        return f"v[{144+b}:{144+b+3}]" if fused else f"a[{b}:{b+3}]"
    def x_read(c, p):
        if c == 4: return lambda: e.ds(f"ds_read_b128 {xfr(c, p)}, v{XA4+p}", ("xf", c, p))
        return lambda: e.ds(f"ds_read_b128 {xfr(c, p)}, v{XA+p} offset:{XSLOT[c]}", ("xf", c, p))
    def w_read(g, p):
        if g >= 28: return []
        q2 = KINDS[g // 7] == "q2"
        ops = []
        for t in range(2):
            d = WF + 4 * p + 2 * t
            a = (WB if q2 else WA) + p
            off = (g % 8) * 8192 + t * (256 if q2 else 512)
            ops.append(lambda d=d, a=a, off=off: e.ds(f"ds_read_b64_tr_b16 v[{d}:{d+1}], v{a} offset:{off}", ("wf", g, p)))
        return ops
    def mfma(g, p):
        ph, c = divmod(g, 7)
        acc = ACCS[ph]
        a = WF + 4 * p
        b = xfr(c, p)
        cin = "0" if (c == 0 and p == 0) else f"v[{acc}:{acc+15}]"
        e(f"v_mfma_f32_32x32x16_bf16 v[{acc}:{acc+15}], v[{a}:{a+3}], {b}, {cin}")
        if p == 0 and not opt.get("nocs"):
            cc = "0" if c == 0 else f"v[{CSA}:{CSA+3}]"
            e(f"v_mfma_f32_16x16x32_bf16 v[{CSA}:{CSA+3}], v[{SEL}:{SEL+3}], v[{a}:{a+3}], {cc}")
        if ph == 0 and p < 2 and not opt.get("nostats"):
            first = (c == 0 and p == 0)
            e(f"v_mfma_f32_32x32x16_bf16 v[{GRAM}:{GRAM+15}], {b}, {b}, {'0' if first else f'v[{GRAM}:{GRAM+15}]'}")
            e(f"v_mfma_f32_16x16x32_bf16 v[{SX}:{SX+3}], v[{SEL}:{SEL+3}], {b}, {'0' if first else f'v[{SX}:{SX+3}]'}")
    def cs_put():
        e("s_mov_b64 exec, 0xffff")
        e.ds(f"ds_write2_b32 v{CSW}, v{CSA}, v{CSA+1} offset0:0 offset1:16", "put")
        e("s_mov_b64 exec, -1")
    def mask(val32):
        e(f"s_mov_b32 vcc_lo, {val32}\ns_mov_b32 vcc_hi, {val32}")
    def rs_put():
        G = GRAM
        e("s_mov_b64 exec, 0xffff")
        e.ds(f"ds_write2_b32 v{RSW}, v{SX}, v{SX+1} offset0:0 offset1:32", "put")
        e("s_mov_b64 exec, -1")
        for lvl, m in enumerate((0xAAAAAAAA, 0xCCCCCCCC, 0xFF00FF00, 0xFFFF0000)):
            mask(m)
            st = 1 << lvl
            for j in range(0, 16, 2 * st):
                e(f"v_cndmask_b32 v{G+j}, v{G+j}, v{G+j+st}, vcc")
        e("s_mov_b32 exec_lo, 0x0F0F0F0F\ns_mov_b32 exec_hi, 0xF0F0F0F0")
        e.ds(f"ds_write_b32 v{RSW}, v{G} offset:4", "put")
        e("s_mov_b64 exec, -1")
    def hilo_A(src):
        return late(f"""
        v_cvt_pk_bf16_f32 v{CA}, v{src}, v{src}
        v_lshlrev_b32 v{CA+1}, 16, v{CA}
        v_sub_f32 v{CA+1}, v{src}, v{CA+1}
        v_cvt_pk_bf16_f32 v{CA+1}, v{CA+1}, v{CA+1}
        """)
    def cs_reduce(ph):
        r = RB
        g1 = [lambda: e.ds(f"ds_read2st64_b32 v[{r}:{r+1}], v{CSPR} offset0:0 offset1:1", ("cr", ph)),
              lambda: e.ds(f"ds_read2st64_b32 v[{r+2}:{r+3}], v{CSPR} offset0:2 offset1:3", ("cr", ph))]
        g2 = [lambda: (e.need_l(("cr", ph)), e(f"v_add_f32 v{r}, v{r}, v{r+1}")),
              lambda: e(f"v_add_f32 v{r+2}, v{r+2}, v{r+3}"),
              lambda: e(f"v_add_f32 v{r}, v{r}, v{r+2}")] + hilo_A(r)
        acc = ACCS[ph]
        corr = [lambda: e(f"v_mfma_f32_32x32x16_bf16 v[{acc}:{acc+15}], v[{CA}:{CA+3}], v[{CB}:{CB+3}], v[{acc}:{acc+15}]")]
        return g1, g2, corr
    def rowstat_ops():
        a, b = T, T + 1
        rd = [lambda: e.ds(f"ds_read_b64 v[{a}:{b}], v{RSR}", "rs"), lambda: e.ds(f"ds_read_b64 v[{a+2}:{b+2}], v{RSR} offset:1024", "rs")]
        seq = f"""
            v_add_f32 v{b}, v{b}, v{b+2}
            v_mul_f32 v{a}, {fbits(-1.0/448)}, v{a}
            v_mul_f32 v{b}, {fbits(1.0/448)}, v{b}
            v_fma_f32 v{b}, -v{a}, v{a}, v{b}
            v_max_f32 v{b}, 0, v{b}
            v_add_f32 v{b}, {fbits(1e-5)}, v{b}
            v_rsq_f32 v{R_}, v{b}
            v_cvt_pk_bf16_f32 v{CB}, v{a}, v{a}
            v_lshlrev_b32 v{CB}, 16, v{CB}
            v_sub_f32 v{CB}, v{a}, v{CB}
            v_cvt_pk_bf16_f32 v{CB}, v{a}, v{CB}
            s_mov_b32 vcc_lo, -1
            s_mov_b32 vcc_hi, 0
            v_cndmask_b32 v{CB}, 0, v{CB}, vcc
            v_mov_b32 v{CB+1}, v{CB}
            v_mul_f32 v{RINV}, v{b}, v{R_}
            v_mul_f32 v{GA}, {fbits(GELU_K1)}, v{R_}
            v_mul_f32 v{GB}, v{R_}, v{R_}
            v_mul_f32 v{GB}, v{GB}, v{R_}
            v_mul_f32 v{GB}, {fbits(GELU_K2)}, v{GB}
            """
        ops = [lambda: (e.need_l("rs"), e(f"v_add_f32 v{a}, v{a}, v{a+2}"))] + late(seq)
        return rd, ops
    def epi_ops(acc, gelu, pk):
        ops = []
        for q in range(4):
            a = [acc + 4 * q + i for i in range(4)]
            t = [T + 4 * (q % 2) + i for i in range(4)]
            if gelu:
                for fmt in ("v_mul_f32 v{t}, v{a}, v{a}", f"v_fma_f32 v{{t}}, v{{t}}, v{GB}, v{GA}", "v_mul_f32 v{t}, v{a}, v{t}",
                            "v_exp_f32 v{t}, v{t}", f"v_fma_f32 v{{t}}, v{{t}}, v{RINV}, v{RINV}", "v_rcp_f32 v{t}, v{t}",
                            "v_mul_f32 v{a}, v{a}, v{t}"):
                    for i in range(4):
                        ops.append(lambda fmt=fmt, i=i, a=a, t=t: e(fmt.format(t=t[i], a=a[i])))
            else:
                for i in range(4):
                    ops.append(lambda i=i, a=a: e(f"v_mul_f32 v{a[i]}, v{a[i]}, v{R_}"))
            ops.append(lambda a=a, q=q: e(f"v_cvt_pk_bf16_f32 v{pk+2*q}, v{a[0]}, v{a[1]}"))
            ops.append(lambda a=a, q=q: e(f"v_cvt_pk_bf16_f32 v{pk+2*q+1}, v{a[2]}, v{a[3]}"))
        return ops
    def stage_w(pk, addr, tag):
        return [lambda q=q: e.ds(f"ds_write_b64 v{addr}, v[{pk+2*q}:{pk+2*q+1}] offset:{q*16}", tag) for q in range(4)]
    def readback(straddr, rb, gaddr, pitch, base_imm, jmul, tag, sb, n=2, stp=144):
        rds = []
        for i in range(n):
            rds.append(lambda i=i: e.ds(f"ds_read_b128 v[{rb+4*i}:{rb+4*i+3}], v{straddr} offset:{i*8*stp}", (tag, i)))
        base = late(f"""
            s_lshl_b32 s{sb}, s{S_W}, 4
            s_add_u32 s{sb}, s{sb}, s{S_ROW0}
            s_mul_i32 s{sb}, s{sb}, {pitch}
            s_mul_i32 s{sT3}, s{S_J}, {jmul}
            s_add_u32 s{sb}, s{sb}, s{sT3}
            s_add_u32 s{sb}, s{sb}, {base_imm}
            """)
        def basef():
            for f in base: f()
        sts = [basef]
        sc = " sc1" if fused else ""
        for i in range(n):
            def st(i=i):
                e.need_l((tag, i))
                if i: e(f"s_add_u32 s{sb}, s{sb}, {8*pitch}")
                e.vm(f"buffer_store_dwordx4 v[{rb+4*i}:{rb+4*i+3}], v{gaddr}, {sq(R_WS)}, s{sb} offen{sc}", "st_" + tag)
            sts.append(st)
        return rds, sts

    NV, NA = RB + 4, RB + 5
    npos = [0]
    def non_load():
        LZ = e.label("nl")
        e(f"""
        v_mov_b32 v{NA}, 0
        s_cmp_lg_u32 s{S_W}, 0
        s_cbranch_scc1 {LZ}
        global_load_dword v{NV}, v{NA}, s[{R_DBG}:{R_DBG+1}] sc1
        {LZ}:
        """)
        npos[0] = e.vcount
    def non_put():
        LZ = e.label("np")
        e(f"s_cmp_lg_u32 s{S_W}, 0\ns_cbranch_scc1 {LZ}")
        e.wait_v_since(npos[0])
        e(f"""
        s_mov_b32 s{sU}, 0
        {LZ}_chk:
        v_readfirstlane_b32 s{S_NONCE}, v{NV}
        s_cmp_lg_u32 s{S_NONCE}, 0
        s_cbranch_scc1 {LZ}_ok
        s_add_u32 s{sU}, s{sU}, 1
        s_cmp_ge_u32 s{sU}, 0x40000
        s_cbranch_scc1 {LZ}_ok
        global_load_dword v{NV}, v{NA}, s[{R_DBG}:{R_DBG+1}] sc1
        s_waitcnt vmcnt(0)
        s_branch {LZ}_chk
        {LZ}_ok:
        v_mov_b32 v{NA}, {NON}
        ds_write_b32 v{NA}, v{NV}
        s_waitcnt lgkmcnt(0)
        {LZ}:
        """)
    non_get = [lambda: e(f"v_mov_b32 v{NA}, {NON}"), lambda: e.ds(f"ds_read_b32 v{NV}, v{NA}", "non")]
    non_fin = [lambda: (e.need_l("non"), e(f"v_readfirstlane_b32 s{S_NONCE}, v{NV}"))]

    Z0 = RB + 4
    def zs_local():
        ops = []
        for i in range(8):
            ops.append(lambda i=i: e(f"v_dot2c_f32_bf16 v{S_}, v{PK2+i}, v{ONE}"))
            ops.append(lambda i=i: e(f"v_dot2c_f32_bf16 v{SS_}, v{PK2+i}, v{PK2+i}"))
        ops += late(f"""
            s_lshl_b32 s{sU}, s{S_CH}, 10
            s_add_u32 s{sU}, s{sU}, {ZSP}
            v_add_u32 v{Z0}, s{sU}, v{ZA}
            v_permlane32_swap_b32 v{S_}, v{SS_}
            """)
        ops.append(lambda: (e(f"v_add_f32 v{S_}, v{S_}, v{SS_}"), e.ds(f"ds_write_b32 v{Z0}, v{S_}", "put")))
        return ops
    def zs_publish():
        rd = [lambda: e(f"v_add_u32 v{Z0}, {ZSP}, v{ZA}"),
              lambda: e.ds(f"ds_read2st64_b32 v[{Z0+2}:{Z0+3}], v{Z0} offset0:0 offset1:4", "zr")]
        def st():
            LZ = e.label("zs")
            e.need_l("zr")
            e(f"""
            v_add_f32 v{Z0+2}, v{Z0+2}, v{Z0+3}
            v_mov_b32 v{Z0+3}, s{S_NONCE}
            v_lshlrev_b32 v{Z0}, 1, v{ZA}
            s_mul_i32 s{sU}, s{S_MT}, 14
            s_add_u32 s{sU}, s{sU}, s{S_J}
            s_lshl_b32 s{sU}, s{sU}, 11
            s_add_u32 s{sU}, s{sU}, {WS_PART}
            s_cmp_lg_u32 s{S_CH}, 0
            s_cbranch_scc1 {LZ}
            buffer_store_dwordx2 v[{Z0+2}:{Z0+3}], v{Z0}, {sq(R_WS)}, s{sU} offen sc1
            {LZ}:
            """)
        return rd, [st]
    def pl_addr():
        return late(f"""
            v_and_b32 v{PLA}, 31, v{L}
            v_lshrrev_b32 v{Z0}, 4, v{PLA}
            v_and_b32 v{PLA}, 15, v{PLA}
            v_lshlrev_b32 v{PLA}, 4, v{PLA}
            v_lshl_add_u32 v{PLA}, v{Z0}, 3, v{PLA}
            v_lshrrev_b32 v{Z0}, 5, v{L}
            v_mul_u32_u24 v{Z0}, {7*2048}, v{Z0}
            v_add_u32 v{PLA}, v{PLA}, v{Z0}
            s_mul_i32 s{sV}, s{S_MT}, {14*2048}
            s_lshl_b32 s{sU}, s{S_W}, 8
            s_add_u32 s{sV}, s{sV}, s{sU}
            s_add_u32 s{sV}, s{sV}, {WS_PART}
            """)
    def pl_loads(track=True):
        ops = []
        for i in range(7):
            def ld(i=i):
                if i and i % 2 == 0: e(f"s_add_u32 s{sV}, s{sV}, 4096")
                s_ = f"buffer_load_dwordx2 v[{PL+2*i}:{PL+2*i+1}], v{PLA}, {sq(R_WS)}, s{sV} offen offset:{(i%2)*2048} sc1"
                if track: e.vm(s_, "pl")
                else: e(s_)
                if i == 6: e(f"s_sub_u32 s{sV}, s{sV}, {3*4096}")
            ops.append(ld)
        return ops
    def pl_check():
        LZ = e.label("pc")
        e.need_v("pl")
        e(f"s_mov_b32 s{sU}, 0\n{LZ}_chk:")
        for i in range(7):
            e(f"v_cmp_ne_u32 vcc, s{S_NONCE}, v{PL+2*i+1}")
            e("s_mov_b64 s[62:63], vcc" if i == 0 else "s_or_b64 s[62:63], s[62:63], vcc")
        e(f"""
        s_cmp_eq_u64 s[62:63], 0
        s_cbranch_scc1 {LZ}_ok
        s_add_u32 s{sU}, s{sU}, 1
        s_cmp_ge_u32 s{sU}, 0x10000
        s_cbranch_scc1 {LZ}_ok
        """)
        for f in pl_loads(False): f()
        e(f"s_waitcnt vmcnt(0)\ns_branch {LZ}_chk\n{LZ}_ok:")
        if opt.get("cnt"): e(f"s_add_u32 s{64+2*10}, s{sU}, s64\ns_add_u32 s{64+2*10}, s{64+2*10}, 1000")
    def pl_reduce():
        P = PL
        ops = late(f"""
            v_add_f32 v{P}, v{P}, v{P+2}
            v_add_f32 v{P+4}, v{P+4}, v{P+6}
            v_add_f32 v{P+8}, v{P+8}, v{P+10}
            v_add_f32 v{P}, v{P}, v{P+4}
            v_add_f32 v{P+8}, v{P+8}, v{P+12}
            v_add_f32 v{P}, v{P}, v{P+8}
            v_and_b32 v{P+2}, 31, v{L}
            v_mov_b32 v{P+1}, v{P}
            v_lshrrev_b32 v{P+3}, 4, v{P+2}
            v_and_b32 v{P+2}, 15, v{P+2}
            v_permlane32_swap_b32 v{P}, v{P+1}
            v_lshlrev_b32 v{P+2}, 3, v{P+2}
            v_lshl_add_u32 v{P+2}, v{P+3}, 2, v{P+2}
            v_add_f32 v{P}, v{P}, v{P+1}
            s_lshl_b32 s{sU}, s{S_W}, 7
            s_add_u32 s{sU}, s{sU}, {ZSP}
            v_add_u32 v{P+2}, s{sU}, v{P+2}
            """)
        def wr():
            e("s_mov_b32 exec_hi, 0")
            e.ds(f"ds_write_b32 v{P+2}, v{P}", "put")
            e("s_mov_b32 exec_hi, -1")
        return ops + [wr]
    RHO, NMR = PL + 4, PL + 5
    def zn_stats():
        a, b = PL, PL + 1
        rd = [lambda: e(f"v_add_u32 v{PL+2}, {ZSP - RS}, v{RSR}"), lambda: e.ds(f"ds_read_b64 v[{a}:{b}], v{PL+2}", "zt")]
        ops = [lambda: (e.need_l("zt"), e(f"v_mul_f32 v{a}, {fbits(1.0/896)}, v{a}"))] + late(f"""
            v_mul_f32 v{b}, {fbits(1.0/896)}, v{b}
            v_fma_f32 v{b}, -v{a}, v{a}, v{b}
            v_max_f32 v{b}, 0, v{b}
            v_add_f32 v{b}, {fbits(1e-5)}, v{b}
            v_rsq_f32 v{RHO}, v{b}
            v_subrev_u32 v{STWZ}, {ST - STZ}, v{STW}
            v_mul_f32 v{NMR}, v{a}, v{RHO}
            v_sub_f32 v{NMR}, 0, v{NMR}
            """)
        return rd, ops
    def zn_norm():
        ops = []
        for half in range(2):
            regs_ = [PK2 + 4 * half + i for i in range(4)]
            lo = [PL + 6 + i for i in range(4)]
            hi = [PL + 10 + i for i in range(4)]
            for i in range(4): ops.append(lambda i=i, r=regs_, lo=lo: e(f"v_lshlrev_b32 v{lo[i]}, 16, v{r[i]}"))
            for i in range(4): ops.append(lambda i=i, r=regs_, hi=hi: e(f"v_and_b32 v{hi[i]}, 0xffff0000, v{r[i]}"))
            for i in range(4): ops.append(lambda i=i, lo=lo: e(f"v_fma_f32 v{lo[i]}, v{lo[i]}, v{RHO}, v{NMR}"))
            for i in range(4): ops.append(lambda i=i, hi=hi: e(f"v_fma_f32 v{hi[i]}, v{hi[i]}, v{RHO}, v{NMR}"))
            for i in range(4): ops.append(lambda i=i, r=regs_, lo=lo, hi=hi: e(f"v_cvt_pk_bf16_f32 v{r[i]}, v{lo[i]}, v{hi[i]}"))
        return ops

    NG = 28
    gaps = {(g, p): [] for g in range(NG + 1) for p in range(4)}
    def put(g, p, ops): gaps[(g, p)] += list(ops)
    def spread_gaps(ops, a_, b_):
        slots = [(g, p) for g in range(a_[0], b_[0] + 1) for p in range(4) if (g, p) >= tuple(a_) and (g, p) <= tuple(b_)]
        for sl, s_ in zip(spread(ops, len(slots)), slots): gaps[s_] += sl
    if v4:
        sp = dict(z2=((8, 0), (11, 3)), zl=((12, 0), (12, 3)), pub=13, q2=((15, 0), (15, 2)), q=((22, 1), (23, 3)), pa=((14, 0), (15, 3)),
                  pl=((16, 2), (17, 3)), plc=(20, 0), zn=((21, 2), (22, 3)))
        sp.update(opt.get("sp", {}))
        spread_gaps(setup1, (0, 0), (2, 1))
        spread_gaps(setup_q, (2, 2), (3, 3))
        for p in range(4): put(5, p, setup_wb([p]))
        put(6, 3, [rs_put, cs_put])
        rd, ops = rowstat_ops()
        g1, g2, corr = cs_reduce(0)
        put(7, 0, rd + g1); spread_gaps(ops, (7, 1), (7, 2)); put(7, 2, g2); put(7, 3, corr + [non_load])
        spread_gaps(epi_ops(ACCS[0], True, PK2), *sp["z2"])
        put(9, 3, [non_put]); put(11, 0, non_get); put(12, 0, non_fin)
        spread_gaps(zs_local(), *sp["zl"])
        assert sp["pub"] in bars
        rd, st = zs_publish()
        put(sp["pub"], 0, rd); put(sp["pub"], 2, st)
        g1, g2, corr = cs_reduce(1)
        put(14, 0, g1); put(14, 2, g2); put(14, 3, corr)
        A2W, A2R = T + 7, T + 6
        def q2addr():
            LZ = e.label("q2a")
            e(f"""
            v_and_b32 v{T}, 31, v{L}
            s_lshl_b32 s{sT}, s{S_RG}, 5
            v_add_u32 v{T}, s{sT}, v{T}
            v_mul_u32_u24 v{T}, 80, v{T}
            v_lshrrev_b32 v{T+1}, 5, v{L}
            v_lshlrev_b32 v{T+1}, 3, v{T+1}
            v_add_u32 v{T}, v{T}, v{T+1}
            v_add_u32 v{A2W}, {ST2}, v{T}
            s_cmp_eq_u32 s{S_CH}, 0
            s_cbranch_scc1 {LZ}
            v_lshlrev_b32 v{A2W}, 3, v{L}
            v_add_u32 v{A2W}, {XR + 32768}, v{A2W}
            {LZ}:
            v_lshrrev_b32 v{T}, 2, v{L}
            s_lshl_b32 s{sT}, s{S_W}, 4
            v_add_u32 v{T}, s{sT}, v{T}
            v_mul_u32_u24 v{T}, 80, v{T}
            v_and_b32 v{T+1}, 3, v{L}
            v_lshlrev_b32 v{T+1}, 4, v{T+1}
            v_add_u32 v{T}, v{T}, v{T+1}
            v_add_u32 v{A2R}, {ST2}, v{T}
            """)
        put(14, 1, [q2addr])
        spread_gaps(epi_ops(ACCS[1], False, PK), *sp["q2"])
        put(15, 3, stage_w(PK, A2W, "stg"))
        rds2, sts2 = readback(A2R, T, WGQ2, 2688, WS_QKV + 128, 192, "q2", 58, n=1)
        put(16, 0, rds2); put(16, 2, sts2)
        spread_gaps(pl_addr(), *sp["pa"])
        spread_gaps(pl_loads(), *sp["pl"])
        plc = sp["plc"]
        put(*plc, [pl_check])
        spread_gaps(pl_reduce(), (plc[0], plc[1] + 1), (plc[0], 3))
        zb = min(b for b in bars if b > plc[0])
        rd, ops = zn_stats()
        put(zb, 0, rd); put(zb, 1, ops)
        spread_gaps(zn_norm(), *sp["zn"])
        zl = sp["zn"][1]
        put(*zl, stage_w(PK2, STWZ, "stg") + [lambda: e(f"v_subrev_u32 v{STRZ}, {ST - STZ}, v{STR}")])
        zr = min(b for b in bars if b > zl[0])
        rds, sts = readback(STRZ, PK2, GZ, 128, WS_Z2, 262144, "z2", 58) if opt.get("tm") else readback(STRZ, PK2, GZ, 1792, WS_Z2, 128, "z2", 58)
        put(zr, 0, rds); put(zr, 1, sts[:1]); put(zr, 2, sts[1:])
        put(20, 3, [cs_put])
        g1, g2, corr = cs_reduce(2)
        put(21, 0, g1); put(21, 2, g2); put(21, 3, corr)
        QPK = RB
        spread_gaps(epi_ops(ACCS[2], False, QPK), *sp["q"])
        put(24, 0, stage_w(QPK, STW, "stg"))
        rdq, stq = readback(STR, RB, GQ, 2688, WS_QKV, 192, "q", sT)
        put(25, 0, rdq); put(25, 2, stq)
        put(27, 3, [cs_put])
        if "spf" in opt:
            def spf():
                e(f"""
                s_lshl_b32 s{sU}, s2, 3
                s_add_u32 s{sU}, s{sU}, s{S_W}
                s_mul_i32 s{sU}, s{sU}, {37 * 128}
                v_lshlrev_b32 v{PK+4}, 7, v{L}
                s_mov_b32 exec_hi, 0x1f
                """)
                fin_srds(e, ["wsp"])
                e.vm(f"buffer_load_dword v{PK+5}, v{PK+4}, {sq(R_WSP)}, s{sU} offen", "spf")
                e("s_mov_b32 exec_hi, -1")
            put(*opt["spf"], [spf])
    else:
        sp = dict(z2=((8, 1), (14, 1)), z1=((15, 1), (16, 3)), q=((22, 1), (23, 3)), pl=((19, 0), (20, 2)), plc=(24, 0), zn=((25, 1), (26, 3)))
        sp.update(opt.get("sp", {}))
        spread_gaps(setup1, (0, 0), (2, 3))
        spread_gaps(setup_q, (3, 0), (5, 3))
        put(6, 3, [rs_put, cs_put])
        rd, ops = rowstat_ops()
        g1, g2, corr = cs_reduce(0)
        put(7, 0, rd + g1); spread_gaps(ops, (7, 1), (7, 2)); put(7, 2, g2); put(7, 3, corr + [non_load])
        spread_gaps(setup_wb(), (8, 0), (12, 3))
        spread_gaps(epi_ops(ACCS[0], True, PK2), *sp["z2"])
        put(9, 3, [non_put]); put(11, 0, non_get); put(12, 0, non_fin)
        put(13, 3, [cs_put])
        g1, g2, corr = cs_reduce(1)
        put(14, 0, g1); put(14, 2, g2); put(14, 3, corr)
        spread_gaps(zs_local(), (14, 2), (15, 2))
        rd, st = zs_publish()
        put(16, 0, rd)
        if not opt.get("nopub"): put(16, 2, st)
        spread_gaps(epi_ops(ACCS[1], False, PK), *sp["z1"])
        spread_gaps(pl_addr(), (17, 0), (18, 3))
        if not opt.get("nopl"): spread_gaps(pl_loads(), *sp["pl"])
        put(20, 3, [cs_put])
        g1, g2, corr = cs_reduce(2)
        put(21, 0, g1); put(21, 2, g2); put(21, 3, corr)
        if not fused and not opt.get("noz1s"):
            def z1save():
                e(f"""
                v_lshlrev_b32 v{T}, 5, v0
                s_lshl_b32 s{sT3}, s2, 14
                s_add_u32 s{sT3}, s{sT3}, {WS_Z1R}
                """)
                e.vm(f"buffer_store_dwordx4 v[{PK}:{PK+3}], v{T}, {sq(R_WS)}, s{sT3} offen", "st_z1")
                e.vm(f"buffer_store_dwordx4 v[{PK+4}:{PK+7}], v{T}, {sq(R_WS)}, s{sT3} offen offset:16", "st_z1")
            put(17, 1, [z1save])
        plc = sp["plc"]
        if not opt.get("nopl"): put(*plc, [pl_check])
        spread_gaps(pl_reduce(), (plc[0], plc[1] + 1), (plc[0], 3))
        QPK = RB
        spread_gaps(epi_ops(ACCS[2], False, QPK), *sp["q"])
        put(24, 0, stage_w(QPK, STW, "stg"))
        zb = min(b for b in bars if b > plc[0])
        rd, ops = zn_stats()
        put(zb, 0, rd); put(zb, 1, ops)
        spread_gaps(zn_norm(), *sp["zn"])
        zl = sp["zn"][1]
        put(*zl, stage_w(PK2, STWZ, "stg") + [lambda: e(f"v_subrev_u32 v{STRZ}, {ST - STZ}, v{STR}")])
        zr = min(b for b in bars if b > zl[0])
        if opt.get("tm"): rds, sts = readback(STRZ, PK2, GZ, 128, WS_Z2, 262144, "z2", 58)
        else: rds, sts = readback(STRZ, PK2, GZ, 1792, WS_Z2, 128, "z2", 58)
        rdq, stq = readback(STR, RB, GQ, 2688, WS_QKV, 192, "q", sT)
        put(25, 0, rdq); put(25, 2, stq)
        put(zr, 0, rds); put(zr, 1, sts[:1]); put(zr, 2, sts[1:])

    def lastbar(g): return max(b for b in bars if b <= g)
    wsched = {g: [] for g in range(NG)}
    nxt = 3
    for g in range(NG):
        n = 2 if 4 <= g <= 7 or g >= 8 else 1
        if g >= 8: n = opt.get("wn", 1) if (g not in bars or g + 1 not in bars) else 1
        for _ in range(n):
            if nxt < 28 and nxt <= lastbar(g) + 7: wsched[g].append(nxt); nxt += 1
    assert nxt == 28, wsched
    issued = {k: g for g in wsched for k in wsched[g]}
    for b in bars:
        nb = min([x for x in bars if x > b] + [27])
        for k in range(b + 1, min(nb, 27) + 1): assert issued.get(k, -1) < b, (b, k, wsched)
    if opt.get("show"): print(wsched)

    e.c("TS 3")
    e.need_v([("x", 0), ("w", 0)]); e("s_barrier")
    e.c("TS 4")
    for p in range(4):
        x_read(0, p)()
        for op in w_read(0, p): op()

    def iteration(g, active=True):
        ph, c = divmod(g, 7)
        if "tsg" in opt and 0 <= g - opt["tsg"] < 10: e.c(f"TS {g - opt['tsg'] + 1}" + " ")
        if g in bars:
            nb = min([x for x in bars if x > g] + [27])
            e.need_l(["put", "stg"])
            e.need_v([("w", k) for k in range(g + 1, nb + 1)] + [("x", g + 1)])
            if not opt.get("nobar"): e("s_barrier")
        nxt_active = g + 1 < 28 and (active or (v4 and KINDS[(g + 1) // 7] != "q2"))
        xd = x_dma(g + 4) if g >= 1 else []
        wd = [w_dma(k) for k in wsched[g]]
        if opt.get("nodma"): xd, wd = [], []
        dpos = opt.get("dpos", (1, 3))
        for p in range(4):
            if active:
                e.need_l([("wf", g, p), ("xf", c, p) if ph == 0 else ("wf", g, p)])
                mfma(g, p)
            if ph == 0 and c < 6: x_read(c + 1, p)()
            if nxt_active:
                for f in w_read(g + 1, p): f()
            if p == dpos[0] and wd:
                for f in wd[0]: f()
            if p == dpos[1] and len(wd) > 1:
                for f in wd[1]: f()
            if p == 2 and xd:
                for f in xd[:2]: f()
            if p == 3 and xd:
                for f in xd[2:]: f()
            if not opt.get("noextra"):
                for f in gaps[(g, p)]: f()
            if active and p == 3 and g == (13 if v4 else 27): cs_put()

    if v4:
        for g in range(7): iteration(g)
        e.c("TS 5")
        L1, LJ = e.label("p1c1"), e.label("p1j")
        e(f"s_cmp_lg_u32 s{S_CH}, 0\ns_cbranch_scc1 {L1}")
        e.c("HZ_SAVE p1")
        sv = e.save()
        for g in range(7, 14): iteration(g, True)
        e.wait_l0()
        e.c("HZ_SAVE p1j")
        e(f"s_branch {LJ}")
        stA = e.save()
        e(f"{L1}:")
        e.c("HZ_RESTORE p1")
        e.restore(sv)
        for g in range(7, 14): iteration(g, False)
        e.wait_l0()
        e("s_nop 7")
        e(f"{LJ}:")
        e.c("HZ_RESTORE p1j")
        assert stA[1] == e.vq and stA[2] == e.vcount
        e.c("TS 6")
        for g in range(14, 28):
            if g == 21: e.c("TS 7")
            iteration(g)
        e.c("TS 8")
        e.need_l("put"); e.need_v("st_z2"); e("s_barrier")
        g1, g2, corr = cs_reduce(3)
        e.k1_tail = g1 + g2 + corr + epi_ops(ACCS[3], False, PK)
        e.c("TS 9")
        return
    for g in range(21):
        if g in (7, 14): e.c(f"TS {5 + g // 7 - 1}")
        iteration(g)
    e.c("TS 7")
    L1, LJ = e.label("p4c1"), e.label("p4j")
    e(f"s_cmp_lg_u32 s{S_CH}, 0\ns_cbranch_scc1 {L1}")
    e.c("HZ_SAVE p4")
    sv = e.save()
    for g in range(21, 28): iteration(g, True)
    e.c("TS 8")
    e.need_l("put"); e("s_barrier")
    g1, g2, corr = cs_reduce(3)
    for op in g1: op()
    e(f"""
    v_and_b32 v{RB+4}, 31, v{L}
    s_lshl_b32 s{sT}, s{S_RG}, 5
    v_add_u32 v{RB+4}, s{sT}, v{RB+4}
    v_mul_u32_u24 v{RB+4}, 80, v{RB+4}
    v_lshrrev_b32 v{RB+5}, 5, v{L}
    v_lshlrev_b32 v{RB+5}, 3, v{RB+5}
    v_add_u32 v{RB+4}, v{RB+4}, v{RB+5}
    v_add_u32 v{STW}, {ST2}, v{RB+4}
    """)
    for op in g2 + corr: op()
    for op in epi_ops(ACCS[3], False, WF): op()
    for op in stage_w(WF, STW, "stg"): op()
    e.need_l("stg")
    e(f"s_branch {LJ}")
    stA = e.save()
    e(f"{L1}:")
    e.c("HZ_RESTORE p4")
    e.restore(sv)
    for g in range(21, 28): iteration(g, False)
    e.wait_l0()
    e("s_barrier")
    e(f"{LJ}:")
    e.lq = []
    e.vq = ["unk"] * max(len(stA[1]), len(e.vq))
    assert stA[2] == e.vcount
    e("s_barrier")
    e.pos_join = e.vcount
    e(f"""
    v_lshrrev_b32 v{T}, 2, v{L}
    s_lshl_b32 s{sT}, s{S_W}, 4
    v_add_u32 v{T}, s{sT}, v{T}
    v_mul_u32_u24 v{T}, 80, v{T}
    v_and_b32 v{T+1}, 3, v{L}
    v_lshlrev_b32 v{T+1}, 4, v{T+1}
    v_add_u32 v{T}, v{T}, v{T+1}
    v_add_u32 v{STR}, {ST2}, v{T}
    """)
    rds, sts = readback(STR, RB, WGQ2, 2688, WS_QKV + 128, 192, "q2", 58, n=1)
    for op in rds + sts: op()
    e.pos_q2 = e.vcount
    e.c("TS 9")

def k1_aux(e, fused=False, opt={}):
    h = 48
    if opt.get("apf"):
        e(f"""
        s_sub_u32 s{h}, s2, 224
        s_and_b32 s49, s{h}, 1
        s_lshr_b32 s50, s{h}, 3
        s_lshl_b32 s50, s50, 9
        v_add_u32 v2, s50, v0
        s_waitcnt lgkmcnt(0)
        """)
        fin_srds(e, ["win", "wqkv"])
        regs_ = [8, 9, 10, 11, 12, 13, 14, 15]
        k = 0
        r0 = opt.get("apf_r0", 192)
        regions = ((R_WIN, 3584, 7, 9363, 16, r0, 1792, 896), (R_WQKV, 2688, 11, 5958, 16, 0, 0, 1280), (R_WIN, 3584, 7, 9363, 16, 0, 0, 896))
        for srd, pitch, nl, M, S, row0, colb, jm in [regions[i] for i in opt.get("apf_reg", (0, 1, 2))]:
            N = (448 - row0) * nl
            e(f"s_mul_i32 s51, s49, {jm}\ns_add_u32 s51, s51, {row0 * pitch + colb}")
            for i in range(-(-N // 2048)):
                e(f"""
                v_add_u32 v3, {i * 2048}, v2
                v_min_u32 v3, {N - 1}, v3
                v_mul_u32_u24 v4, {M}, v3
                v_lshrrev_b32 v4, {S}, v4            ; row
                v_mul_u32_u24 v5, {nl}, v4
                v_sub_u32 v3, v3, v5                 ; line
                v_mul_u32_u24 v4, {pitch}, v4
                v_lshl_add_u32 v3, v3, 7, v4
                buffer_load_dword v{16 + k}, v3, {sq(srd)}, s51 offen
                """)
                k += 1
    e(f"""
    s_load_dwordx2 s[{R_WSP}:{R_WSP+1}], s[0:1], {K_WSP}
    s_load_dwordx2 s[{R_WOUT}:{R_WOUT+1}], s[0:1], {K_WOUT}
    s_load_dwordx2 s[{R_WO}:{R_WO+1}], s[0:1], {K_WO}
    s_sub_u32 s{h}, s2, 224
    s_waitcnt lgkmcnt(0)
    """)
    fin_srds(e, ["wsp", "wout", "wo"])
    def small():
        e(f"v_lshlrev_b32 v2, 7, v0")
        e(f"s_mul_i32 s49, s{h}, {SZ_WOUT//32}")
        e(f"v_cmp_gt_u32 vcc, {SZ_WOUT//32}, v2")
        e(f"s_and_b64 exec, exec, vcc")
        e(f"buffer_load_dword v24, v2, {sq(R_WOUT)}, s49 offen")
        e(f"s_mul_i32 s49, s{h}, {SZ_WO//32}")
        e(f"v_cmp_gt_u32 vcc, {SZ_WO//32}, v2")
        e(f"s_and_b64 exec, exec, vcc")
        e(f"buffer_load_dword v25, v2, {sq(R_WO)}, s49 offen")
        e("s_mov_b64 exec, -1")
    R = opt.get("wspr")
    if R:
        if not opt.get("smalllate"): small()
        def late_wsp():
            npl = 256 // R
            e(f"""
            s_mul_i32 s49, s{S_W}, {npl}
            v_add_u32 v2, s49, v1
            v_lshlrev_b32 v2, 7, v2
            s_sub_u32 s49, s2, 224
            s_lshl_b32 s49, s49, 18
            s_waitcnt vmcnt({opt.get("wspw", 0)})
            """)
            e.c("TS 20")
            if npl == 32: e("s_mov_b32 exec_hi, 0")
            elif npl < 32: e(f"s_mov_b64 exec, {hex((1 << npl) - 1)}")
            for r in range(R):
                e(f"buffer_load_dword v{8 + r % 8}, v2, {sq(R_WSP)}, s49 offen")
                if r < R - 1:
                    e(f"s_add_u32 s49, s49, {npl * 8 * 128}")
                    e(f"s_waitcnt vmcnt({opt.get('wspd', 1) - 1})")
                    e.c(f"TS {21 + r}")
            e("s_mov_b64 exec, -1")
            if opt.get("smalllate") == 1: small()
        return late_wsp
    e(f"""
    v_lshlrev_b32 v2, 7, v0
    s_lshl_b32 s49, s{h}, 18
    """)
    stride = 512 * 128
    k = 0
    for i in range((256 * 1024) // stride if not opt.get("nowsp") else 0):
        e(f"s_add_u32 s50, s49, {i*stride}")
        e(f"buffer_load_dword v{8+k%16}, v2, {sq(R_WSP)}, s50 offen"); k += 1
    small()
    return None
```

```python
from g2common import *

K1_XR, K1_WR, K1_ST, K1_ST2, K1_TAB = 0, 65536, 131072, 149504, 159744
K1_NON = K1_TAB + 3072
K1_LDS = K1_NON + 64
V_Z1 = 96
WS_PART = 0x1400000
BARS = (0, 1, 2, 3, 4, 5, 6, 7, 9, 11, 13, 14, 16, 18, 20, 21, 23, 25, 27)


def k1_main(e, fused=False, opt=None):
    opt = opt or {}
    if "tsg" in opt:
        _c = e.c
        def c2(t):
            if t.startswith("TS ") and not t.endswith(" "): return
            _c(t)
        e.c = c2
    bars = opt.get("bars", BARS)
    XR, WR, ST, ST2, TAB, NON = K1_XR, K1_WR, K1_ST, K1_ST2, K1_TAB, K1_NON
    RS, CSP, ZSP = ST2, TAB, TAB + 1024
    XSLOT = (0, 16384, 32768, 49152, ST, 0, 16384)
    STZ = XR
    L = 1
    XG, WGI, WGQ, WGQ2 = 2, 4, 5, 6
    CSW = 7
    XA, WA = 8, 12
    WB = XA
    STWZ, STRZ = WA, WA + 1
    SEL, CSA = 16, 20
    S_, SS_, ONE, GA, GB, RINV, R_, CSPR = 24, 25, 26, 27, 28, 29, 30, 31
    WF, PK, PK2, T = 32, V_Z1, 104, 112
    v4 = opt.get("v4")
    KINDS = ("z2", "q2", "q", "z1") if v4 else ("z2", "z1", "q", "q2")
    ACCS = (64, 80, 48, 80)
    if v4: STWZ, STRZ = XA, XA + 1
    GRAM, SX = 48, T
    RB = 120
    STW, STR, GZ, GQ = 128, 129, 130, 131
    CB, CA = 132, 136
    RSR, RSW, PLA, ZA = 140, 141, 142, 143
    XA4 = PK
    PL = 64
    sX, sWz2, sWz1, sWq, sM0X, sM0W, sM0W2, sT, sT2, sT3 = 48, 49, 50, 51, 52, 53, 54, 55, 56, 57
    sU, sV = 60, 61
    t0, t1, t2, t3 = T, T + 1, T + 2, T + 3

    e(f"""
    v_lshrrev_b32 v{t0}, 3, v{L}
    v_lshrrev_b32 v{t1}, 4, v{L}
    v_and_b32 v{t2}, 7, v{L}
    v_mul_u32_u24 v{XG}, 896, v{t0}
    v_xor_b32 v{t3}, v{t2}, v{t1}
    v_lshlrev_b32 v{t3}, 4, v{t3}
    v_add_u32 v{XG+1}, {8*896-1024}, v{XG}
    v_add_u32 v{XG}, v{XG}, v{t3}
    v_xor_b32 v{t3}, 64, v{t3}
    v_add_u32 v{XG+1}, v{XG+1}, v{t3}
    v_and_b32 v{t3}, 1, v{t1}
    v_lshlrev_b32 v{t3}, 2, v{t3}
    v_xor_b32 v{t3}, v{t2}, v{t3}
    v_lshlrev_b32 v{t3}, 4, v{t3}
    v_mul_u32_u24 v{WGI}, 3584, v{t0}
    v_add_u32 v{WGI}, v{WGI}, v{t3}
    s_lshl_b32 s{sT}, s{S_W}, 4
    s_add_u32 s{sT}, s{sT}, s{S_ROW0}
    s_mul_i32 s{sX}, s{sT}, 896
    s_mul_i32 s{sT}, s{S_W}, {8*3584}
    s_lshl_b32 s{sT2}, s{S_J}, 7
    s_add_u32 s{sWz1}, s{sT}, s{sT2}
    s_add_u32 s{sWz2}, s{sWz1}, 1792
    s_lshl_b32 s{sM0X}, s{S_W}, 11
    s_add_u32 s{sM0X}, s{sM0X}, {XR}
    s_lshl_b32 s{sM0W}, s{S_W}, 10
    s_add_u32 s{sM0W}, s{sM0W}, {WR}
    s_waitcnt lgkmcnt(0)
    """)
    fin_srds(e, ["x", "win"])

    def x_dma(c):
        if c >= 7: return []
        def pre():
            e(f"s_add_u32 m0, s{sM0X}, {XSLOT[c]}")
            e(f"s_add_u32 s{sT}, s{sX}, {c * 128}")
        ops = [pre]
        for i in range(2):
            ops.append(lambda i=i: e.vm(f"buffer_load_dwordx4 v{XG+i}, {sq(R_X)}, s{sT} offen offset:{1024*i} lds", ("x", c)))
        return ops
    def w_dma(g):
        if g >= 28: return []
        ph, c = divmod(g, 7)
        slot = g % 8
        if KINDS[ph] != "q2":
            base, pitch, vo, srd = {"z2": (sWz2, 3584, WGI, R_WIN), "z1": (sWz1, 3584, WGI, R_WIN), "q": (sWq, 2688, WGQ, R_WQKV)}[KINDS[ph]]
            def op():
                e(f"s_add_u32 m0, s{sM0W}, {slot * 8192}")
                e(f"s_add_u32 s{sT2}, s{base}, {c * 64 * pitch}")
                e.vm(f"buffer_load_dwordx4 v{vo}, {sq(srd)}, s{sT2} offen lds", ("w", g))
        else:
            def op():
                e(f"s_add_u32 m0, s{sM0W2}, {slot * 8192}")
                e(f"s_add_u32 s{sT2}, s{sWq}, {c * 64 * 2688 + 128}")
                e("s_mov_b32 exec_hi, 0")
                e.vm(f"buffer_load_dwordx4 v{WGQ2}, {sq(R_WQKV)}, s{sT2} offen lds", ("w", g))
                e("s_mov_b32 exec_hi, -1")
        return [op]
    for op in x_dma(0) + w_dma(0) + x_dma(1) + w_dma(1): op()
    e.c("TS 1")
    fin_srds(e, ["wqkv", "ws"])
    LN = e.label("non")
    e(f"""
    s_lshl_b32 s{sT}, s2, 3
    s_add_u32 s{sT}, s{sT}, s{S_W}
    s_cmp_lg_u32 s{sT}, 1
    s_cbranch_scc1 {LN}
    s_memrealtime s[{sU}:{sU+1}]
    v_mov_b32 v{t1}, 0
    s_waitcnt lgkmcnt(0)
    s_or_b32 s{sU}, s{sU}, 1
    v_mov_b32 v{t0}, s{sU}
    s_mov_b64 exec, 1
    global_store_dword v{t1}, v{t0}, s[{R_DBG}:{R_DBG+1}] sc1
    s_mov_b64 exec, -1
    {LN}:
    """)
    n_, h_, r_, qd_, chf_, u_, v_ = T, T + 1, T + 2, T + 3, T + 4, T + 5, T + 6
    QW = RB + 7
    e(f"""
    v_and_b32 v{n_}, 31, v{L}
    v_lshrrev_b32 v{h_}, 5, v{L}
    v_and_b32 v{r_}, 15, v{L}
    v_and_b32 v{qd_}, 3, v{r_}
    v_lshlrev_b32 v{qd_}, 3, v{qd_}          ; quad*8
    v_lshrrev_b32 v{r_}, 2, v{r_}            ; r
    v_lshrrev_b32 v{chf_}, 4, v{L}
    v_and_b32 v{chf_}, 1, v{chf_}
    v_and_b32 v{u_}, 15, v{L}
    v_cmp_eq_u32 vcc, v{u_}, v{chf_}         ; selector: m == g&1
    v_mov_b32 v{ONE}, 0x3f803f80
    v_lshlrev_b32 v{chf_}, 5, v{chf_}
    v_add_u32 v{chf_}, v{chf_}, v{qd_}
    v_cndmask_b32 v{SEL}, 0, v{ONE}, vcc
    v_cndmask_b32 v{SEL+1}, 0, v{ONE}, vcc
    v_cndmask_b32 v{SEL+2}, 0, v{ONE}, vcc
    v_cndmask_b32 v{SEL+3}, 0, v{ONE}, vcc
    s_lshl_b32 s{sT}, s{S_CH}, 1
    s_add_u32 s{sT}, s{sT}, s{S_RG}          ; rotation
    v_lshlrev_b32 v{u_}, 3, v{h_}
    v_add_u32 v{u_}, v{u_}, v{r_}            ; 8h + r
    v_lshlrev_b32 v{QW}, 6, v{u_}
    v_add_u32 v{QW}, v{QW}, v{chf_}          ; q2: (8h+r)*64 + colhalf*32 + quad*8
    v_lshlrev_b32 v{u_}, 7, v{u_}
    v_add_u32 v{u_}, v{u_}, v{chf_}
    v_lshrrev_b32 v{r_}, 1, v{r_}
    v_xor_b32 v{r_}, s{S_CH}, v{r_}          ; ch ^ ((r>>1)&1)
    v_lshlrev_b32 v{r_}, 6, v{r_}
    v_add_u32 v{u_}, v{u_}, v{r_}
    v_lshrrev_b32 v{qd_}, 1, v{n_}
    v_and_b32 v{qd_}, 7, v{qd_}              ; (n>>1)&7
    v_lshlrev_b32 v{chf_}, 7, v{n_}          ; n*128
    s_lshl_b32 s{sT2}, s{S_RG}, 12
    s_add_u32 s{sT2}, s{sT2}, {XR}
    v_add_u32 v{chf_}, s{sT2}, v{chf_}
    """)
    for p in range(4):
        e(f"""
        s_add_u32 s{sT2}, s{sT}, {p}
        s_and_b32 s{sT2}, s{sT2}, 3              ; step
        s_lshl_b32 s{sT3}, s{sT2}, 1
        v_add_u32 v{r_}, s{sT3}, v{h_}
        v_xor_b32 v{r_}, v{r_}, v{qd_}
        v_lshlrev_b32 v{r_}, 4, v{r_}
        v_add_u32 v{XA+p}, v{chf_}, v{r_}
        s_lshl_b32 s{sT3}, s{sT2}, 11
        s_add_u32 s{sT3}, s{sT3}, {WR}
        v_add_u32 v{WA+p}, s{sT3}, v{u_}
        """)
    for op in x_dma(2) + w_dma(2) + x_dma(3) + x_dma(4): op()
    if opt.get("wpf"):
        LW, LX = e.label("wpfa"), e.label("wpfb")
        e(f"""
        s_and_b32 s{sT}, s{S_MT}, 3
        s_mul_i32 s{sT}, s{sT}, 112
        s_and_b32 s{sT2}, s{S_W}, 3
        s_lshl_b32 s{sT2}, s{sT2}, 5
        s_add_u32 s{sT}, s{sT}, s{sT2}
        v_lshrrev_b32 v{PK2+1}, 1, v{L}
        v_add_u32 v{PK2+1}, s{sT}, v{PK2+1}
        v_and_b32 v{PK2+2}, 1, v{L}
        s_cmp_ge_u32 s{S_W}, 4
        s_cbranch_scc1 {LW}
        v_mul_u32_u24 v{PK2+1}, 3584, v{PK2+1}
        v_mul_u32_u24 v{PK2+2}, 1792, v{PK2+2}
        v_add_u32 v{PK2+1}, v{PK2+1}, v{PK2+2}
        s_lshl_b32 s{sT}, s{S_J}, 7
        buffer_load_dword v{PK2}, v{PK2+1}, {sq(R_WIN)}, s{sT} offen
        s_branch {LX}
        {LW}:
        v_mul_u32_u24 v{PK2+1}, 2688, v{PK2+1}
        v_lshlrev_b32 v{PK2+2}, 7, v{PK2+2}
        v_add_u32 v{PK2+1}, v{PK2+1}, v{PK2+2}
        s_mul_i32 s{sT}, s{S_J}, 192
        buffer_load_dword v{PK2}, v{PK2+1}, {sq(R_WQKV)}, s{sT} offen
        {LX}:
        """)
        e.vq.append("wpf"); e.vcount += 1
    e.c("TS 2")

    def late(txt):
        return [lambda l=l: e(l) for l in txt.strip("\n").split("\n") if l.strip()]
    a0, a1, a2 = RB, RB + 1, RB + 2
    setup1 = late(f"""
    v_add_u32 v{XA4}, {ST}, v{XA}
    v_add_u32 v{XA4+1}, {ST}, v{XA+1}
    v_add_u32 v{XA4+2}, {ST}, v{XA+2}
    v_add_u32 v{XA4+3}, {ST}, v{XA+3}
    v_and_b32 v{a0}, 31, v{L}
    v_lshrrev_b32 v{a1}, 5, v{L}
    s_lshl_b32 s{sT3}, s{S_RG}, 5
    v_add_u32 v{a2}, s{sT3}, v{a0}
    v_lshlrev_b32 v{RSR}, 3, v{a2}
    v_lshl_add_u32 v{ZA}, v{a1}, 2, v{RSR}
    v_mul_u32_u24 v{PLA}, 144, v{a2}
    v_add_u32 v{RSR}, {RS}, v{RSR}
    s_lshl_b32 s{sT3}, s{S_CH}, 10
    v_add_u32 v{RSW}, s{sT3}, v{RSR}
    v_lshlrev_b32 v{a1}, 3, v{a1}
    s_lshl_b32 s{sT3}, s{S_CH}, 6
    s_add_u32 s{sT3}, s{sT3}, {ST}
    v_add3_u32 v{STW}, v{PLA}, v{a1}, s{sT3}
    v_lshlrev_b32 v{a0}, 2, v{a0}
    s_lshl_b32 s{sT3}, s{S_CH}, 7
    s_add_u32 s{sT3}, s{sT3}, {CSP}
    v_add_u32 v{CSPR}, s{sT3}, v{a0}
    s_lshl_b32 s58, s{S_RG}, 8
    s_add_u32 s{sT3}, s{sT3}, s58
    v_lshlrev_b32 v{a0}, 2, v{L}
    v_add_u32 v{CSW}, s{sT3}, v{a0}
    v_lshrrev_b32 v{a0}, 3, v{L}
    v_and_b32 v{a1}, 7, v{L}
    v_lshlrev_b32 v{a1}, 4, v{a1}
    v_mul_u32_u24 v{GZ}, {128 if opt.get("tm") else 1792}, v{a0}
    v_add_u32 v{GZ}, v{GZ}, v{a1}
    v_mul_u32_u24 v{GQ}, 2688, v{a0}
    v_add_u32 v{GQ}, v{GQ}, v{a1}
    s_lshl_b32 s{sT3}, s{S_W}, 4
    v_add_u32 v{a0}, s{sT3}, v{a0}
    v_mul_u32_u24 v{STR}, 144, v{a0}
    v_add_u32 v{STR}, v{STR}, v{a1}
    v_add_u32 v{STR}, {ST}, v{STR}
    v_mov_b32 v{CB+2}, 0
    v_mov_b32 v{CB+3}, 0
    v_mov_b32 v{CA+2}, 0
    v_mov_b32 v{CA+3}, 0
    v_mov_b32 v{S_}, 0
    v_mov_b32 v{SS_}, 0
    """)
    setup_q = late(f"""
    v_lshrrev_b32 v{a0}, 3, v{L}
    v_lshrrev_b32 v{a1}, 4, v{L}
    v_and_b32 v{a1}, 1, v{a1}
    v_lshlrev_b32 v{a1}, 2, v{a1}
    v_and_b32 v{a2}, 7, v{L}
    v_xor_b32 v{a1}, v{a2}, v{a1}
    v_lshlrev_b32 v{a1}, 4, v{a1}
    v_mul_u32_u24 v{WGQ}, 2688, v{a0}
    v_add_u32 v{WGQ}, v{WGQ}, v{a1}
    v_lshrrev_b32 v{WGQ2}, 2, v{L}
    v_mul_u32_u24 v{WGQ2}, 2688, v{WGQ2}
    v_and_b32 v{a0}, 3, v{L}
    v_lshlrev_b32 v{a0}, 4, v{a0}
    v_add_u32 v{WGQ2}, v{WGQ2}, v{a0}
    s_mul_i32 s{sT3}, s{S_W}, {8*2688}
    s_mul_i32 s58, s{S_J}, 192
    s_add_u32 s{sWq}, s{sT3}, s58
    s_lshl_b32 s{sM0W2}, s{S_W}, 9
    s_add_u32 s{sM0W2}, s{sM0W2}, {WR}
    """)
    def setup_wb(ps=range(4)):
        ops = []
        for p in ps:
            ops += late(f"""
            s_lshl_b32 s{sT3}, s{S_CH}, 1
            s_add_u32 s{sT3}, s{sT3}, s{S_RG}
            s_add_u32 s{sT3}, s{sT3}, {p}
            s_and_b32 s{sT3}, s{sT3}, 3
            s_lshl_b32 s{sT3}, s{sT3}, 10
            s_add_u32 s{sT3}, s{sT3}, {WR}
            v_add_u32 v{WB+p}, s{sT3}, v{QW}
            """)
        return ops

    def xfr(c, p):
        b = (4*c+p)*4
        return f"v[{144+b}:{144+b+3}]" if fused else f"a[{b}:{b+3}]"
    def x_read(c, p):
        if c == 4: return lambda: e.ds(f"ds_read_b128 {xfr(c, p)}, v{XA4+p}", ("xf", c, p))
        return lambda: e.ds(f"ds_read_b128 {xfr(c, p)}, v{XA+p} offset:{XSLOT[c]}", ("xf", c, p))
    def w_read(g, p):
        if g >= 28: return []
        q2 = KINDS[g // 7] == "q2"
        ops = []
        for t in range(2):
            d = WF + 4 * p + 2 * t
            a = (WB if q2 else WA) + p
            off = (g % 8) * 8192 + t * (256 if q2 else 512)
            ops.append(lambda d=d, a=a, off=off: e.ds(f"ds_read_b64_tr_b16 v[{d}:{d+1}], v{a} offset:{off}", ("wf", g, p)))
        return ops
    def mfma(g, p):
        ph, c = divmod(g, 7)
        acc = ACCS[ph]
        a = WF + 4 * p
        b = xfr(c, p)
        cin = "0" if (c == 0 and p == 0) else f"v[{acc}:{acc+15}]"
        e(f"v_mfma_f32_32x32x16_bf16 v[{acc}:{acc+15}], v[{a}:{a+3}], {b}, {cin}")
        if p == 0 and not opt.get("nocs"):
            cc = "0" if c == 0 else f"v[{CSA}:{CSA+3}]"
            e(f"v_mfma_f32_16x16x32_bf16 v[{CSA}:{CSA+3}], v[{SEL}:{SEL+3}], v[{a}:{a+3}], {cc}")
        if ph == 0 and p < 2 and not opt.get("nostats"):
            first = (c == 0 and p == 0)
            e(f"v_mfma_f32_32x32x16_bf16 v[{GRAM}:{GRAM+15}], {b}, {b}, {'0' if first else f'v[{GRAM}:{GRAM+15}]'}")
            e(f"v_mfma_f32_16x16x32_bf16 v[{SX}:{SX+3}], v[{SEL}:{SEL+3}], {b}, {'0' if first else f'v[{SX}:{SX+3}]'}")
    def cs_put():
        e("s_mov_b64 exec, 0xffff")
        e.ds(f"ds_write2_b32 v{CSW}, v{CSA}, v{CSA+1} offset0:0 offset1:16", "put")
        e("s_mov_b64 exec, -1")
    def mask(val32):
        e(f"s_mov_b32 vcc_lo, {val32}\ns_mov_b32 vcc_hi, {val32}")
    def rs_put():
        G = GRAM
        e("s_mov_b64 exec, 0xffff")
        e.ds(f"ds_write2_b32 v{RSW}, v{SX}, v{SX+1} offset0:0 offset1:32", "put")
        e("s_mov_b64 exec, -1")
        for lvl, m in enumerate((0xAAAAAAAA, 0xCCCCCCCC, 0xFF00FF00, 0xFFFF0000)):
            mask(m)
            st = 1 << lvl
            for j in range(0, 16, 2 * st):
                e(f"v_cndmask_b32 v{G+j}, v{G+j}, v{G+j+st}, vcc")
        e("s_mov_b32 exec_lo, 0x0F0F0F0F\ns_mov_b32 exec_hi, 0xF0F0F0F0")
        e.ds(f"ds_write_b32 v{RSW}, v{G} offset:4", "put")
        e("s_mov_b64 exec, -1")
    def hilo_A(src):
        return late(f"""
        v_cvt_pk_bf16_f32 v{CA}, v{src}, v{src}
        v_lshlrev_b32 v{CA+1}, 16, v{CA}
        v_sub_f32 v{CA+1}, v{src}, v{CA+1}
        v_cvt_pk_bf16_f32 v{CA+1}, v{CA+1}, v{CA+1}
        """)
    def cs_reduce(ph):
        r = RB
        g1 = [lambda: e.ds(f"ds_read2st64_b32 v[{r}:{r+1}], v{CSPR} offset0:0 offset1:1", ("cr", ph)),
              lambda: e.ds(f"ds_read2st64_b32 v[{r+2}:{r+3}], v{CSPR} offset0:2 offset1:3", ("cr", ph))]
        g2 = [lambda: (e.need_l(("cr", ph)), e(f"v_add_f32 v{r}, v{r}, v{r+1}")),
              lambda: e(f"v_add_f32 v{r+2}, v{r+2}, v{r+3}"),
              lambda: e(f"v_add_f32 v{r}, v{r}, v{r+2}")] + hilo_A(r)
        acc = ACCS[ph]
        corr = [lambda: e(f"v_mfma_f32_32x32x16_bf16 v[{acc}:{acc+15}], v[{CA}:{CA+3}], v[{CB}:{CB+3}], v[{acc}:{acc+15}]")]
        return g1, g2, corr
    def rowstat_ops():
        a, b = T, T + 1
        rd = [lambda: e.ds(f"ds_read_b64 v[{a}:{b}], v{RSR}", "rs"), lambda: e.ds(f"ds_read_b64 v[{a+2}:{b+2}], v{RSR} offset:1024", "rs")]
        seq = f"""
            v_add_f32 v{b}, v{b}, v{b+2}
            v_mul_f32 v{a}, {fbits(-1.0/448)}, v{a}
            v_mul_f32 v{b}, {fbits(1.0/448)}, v{b}
            v_fma_f32 v{b}, -v{a}, v{a}, v{b}
            v_max_f32 v{b}, 0, v{b}
            v_add_f32 v{b}, {fbits(1e-5)}, v{b}
            v_rsq_f32 v{R_}, v{b}
            v_cvt_pk_bf16_f32 v{CB}, v{a}, v{a}
            v_lshlrev_b32 v{CB}, 16, v{CB}
            v_sub_f32 v{CB}, v{a}, v{CB}
            v_cvt_pk_bf16_f32 v{CB}, v{a}, v{CB}
            s_mov_b32 vcc_lo, -1
            s_mov_b32 vcc_hi, 0
            v_cndmask_b32 v{CB}, 0, v{CB}, vcc
            v_mov_b32 v{CB+1}, v{CB}
            v_mul_f32 v{RINV}, v{b}, v{R_}
            v_mul_f32 v{GA}, {fbits(GELU_K1)}, v{R_}
            v_mul_f32 v{GB}, v{R_}, v{R_}
            v_mul_f32 v{GB}, v{GB}, v{R_}
            v_mul_f32 v{GB}, {fbits(GELU_K2)}, v{GB}
            """
        ops = [lambda: (e.need_l("rs"), e(f"v_add_f32 v{a}, v{a}, v{a+2}"))] + late(seq)
        return rd, ops
    def epi_ops(acc, gelu, pk):
        ops = []
        for q in range(4):
            a = [acc + 4 * q + i for i in range(4)]
            t = [T + 4 * (q % 2) + i for i in range(4)]
            if gelu:
                for fmt in ("v_mul_f32 v{t}, v{a}, v{a}", f"v_fma_f32 v{{t}}, v{{t}}, v{GB}, v{GA}", "v_mul_f32 v{t}, v{a}, v{t}",
                            "v_exp_f32 v{t}, v{t}", f"v_fma_f32 v{{t}}, v{{t}}, v{RINV}, v{RINV}", "v_rcp_f32 v{t}, v{t}",
                            "v_mul_f32 v{a}, v{a}, v{t}"):
                    for i in range(4):
                        ops.append(lambda fmt=fmt, i=i, a=a, t=t: e(fmt.format(t=t[i], a=a[i])))
            else:
                for i in range(4):
                    ops.append(lambda i=i, a=a: e(f"v_mul_f32 v{a[i]}, v{a[i]}, v{R_}"))
            ops.append(lambda a=a, q=q: e(f"v_cvt_pk_bf16_f32 v{pk+2*q}, v{a[0]}, v{a[1]}"))
            ops.append(lambda a=a, q=q: e(f"v_cvt_pk_bf16_f32 v{pk+2*q+1}, v{a[2]}, v{a[3]}"))
        return ops
    def stage_w(pk, addr, tag):
        return [lambda q=q: e.ds(f"ds_write_b64 v{addr}, v[{pk+2*q}:{pk+2*q+1}] offset:{q*16}", tag) for q in range(4)]
    def readback(straddr, rb, gaddr, pitch, base_imm, jmul, tag, sb, n=2, stp=144):
        rds = []
        for i in range(n):
            rds.append(lambda i=i: e.ds(f"ds_read_b128 v[{rb+4*i}:{rb+4*i+3}], v{straddr} offset:{i*8*stp}", (tag, i)))
        base = late(f"""
            s_lshl_b32 s{sb}, s{S_W}, 4
            s_add_u32 s{sb}, s{sb}, s{S_ROW0}
            s_mul_i32 s{sb}, s{sb}, {pitch}
            s_mul_i32 s{sT3}, s{S_J}, {jmul}
            s_add_u32 s{sb}, s{sb}, s{sT3}
            s_add_u32 s{sb}, s{sb}, {base_imm}
            """)
        def basef():
            for f in base: f()
        sts = [basef]
        sc = " sc1" if fused else ""
        for i in range(n):
            def st(i=i):
                e.need_l((tag, i))
                if i: e(f"s_add_u32 s{sb}, s{sb}, {8*pitch}")
                e.vm(f"buffer_store_dwordx4 v[{rb+4*i}:{rb+4*i+3}], v{gaddr}, {sq(R_WS)}, s{sb} offen{sc}", "st_" + tag)
            sts.append(st)
        return rds, sts

    NV, NA = RB + 4, RB + 5
    npos = [0]
    def non_load():
        LZ = e.label("nl")
        e(f"""
        v_mov_b32 v{NA}, 0
        s_cmp_lg_u32 s{S_W}, 0
        s_cbranch_scc1 {LZ}
        global_load_dword v{NV}, v{NA}, s[{R_DBG}:{R_DBG+1}] sc1
        {LZ}:
        """)
        npos[0] = e.vcount
    def non_put():
        LZ = e.label("np")
        e(f"s_cmp_lg_u32 s{S_W}, 0\ns_cbranch_scc1 {LZ}")
        e.wait_v_since(npos[0])
        e(f"""
        s_mov_b32 s{sU}, 0
        {LZ}_chk:
        v_readfirstlane_b32 s{S_NONCE}, v{NV}
        s_cmp_lg_u32 s{S_NONCE}, 0
        s_cbranch_scc1 {LZ}_ok
        s_add_u32 s{sU}, s{sU}, 1
        s_cmp_ge_u32 s{sU}, 0x40000
        s_cbranch_scc1 {LZ}_ok
        global_load_dword v{NV}, v{NA}, s[{R_DBG}:{R_DBG+1}] sc1
        s_waitcnt vmcnt(0)
        s_branch {LZ}_chk
        {LZ}_ok:
        v_mov_b32 v{NA}, {NON}
        ds_write_b32 v{NA}, v{NV}
        s_waitcnt lgkmcnt(0)
        {LZ}:
        """)
    non_get = [lambda: e(f"v_mov_b32 v{NA}, {NON}"), lambda: e.ds(f"ds_read_b32 v{NV}, v{NA}", "non")]
    non_fin = [lambda: (e.need_l("non"), e(f"v_readfirstlane_b32 s{S_NONCE}, v{NV}"))]

    Z0 = RB + 4
    def zs_local():
        ops = []
        for i in range(8):
            ops.append(lambda i=i: e(f"v_dot2c_f32_bf16 v{S_}, v{PK2+i}, v{ONE}"))
            ops.append(lambda i=i: e(f"v_dot2c_f32_bf16 v{SS_}, v{PK2+i}, v{PK2+i}"))
        ops += late(f"""
            s_lshl_b32 s{sU}, s{S_CH}, 10
            s_add_u32 s{sU}, s{sU}, {ZSP}
            v_add_u32 v{Z0}, s{sU}, v{ZA}
            v_permlane32_swap_b32 v{S_}, v{SS_}
            """)
        ops.append(lambda: (e(f"v_add_f32 v{S_}, v{S_}, v{SS_}"), e.ds(f"ds_write_b32 v{Z0}, v{S_}", "put")))
        return ops
    def zs_publish():
        rd = [lambda: e(f"v_add_u32 v{Z0}, {ZSP}, v{ZA}"),
              lambda: e.ds(f"ds_read2st64_b32 v[{Z0+2}:{Z0+3}], v{Z0} offset0:0 offset1:4", "zr")]
        def st():
            LZ = e.label("zs")
            e.need_l("zr")
            e(f"""
            v_add_f32 v{Z0+2}, v{Z0+2}, v{Z0+3}
            v_mov_b32 v{Z0+3}, s{S_NONCE}
            v_lshlrev_b32 v{Z0}, 1, v{ZA}
            s_mul_i32 s{sU}, s{S_MT}, 14
            s_add_u32 s{sU}, s{sU}, s{S_J}
            s_lshl_b32 s{sU}, s{sU}, 11
            s_add_u32 s{sU}, s{sU}, {WS_PART}
            s_cmp_lg_u32 s{S_CH}, 0
            s_cbranch_scc1 {LZ}
            buffer_store_dwordx2 v[{Z0+2}:{Z0+3}], v{Z0}, {sq(R_WS)}, s{sU} offen sc1
            {LZ}:
            """)
        return rd, [st]
    def pl_addr():
        return late(f"""
            v_and_b32 v{PLA}, 31, v{L}
            v_lshrrev_b32 v{Z0}, 4, v{PLA}
            v_and_b32 v{PLA}, 15, v{PLA}
            v_lshlrev_b32 v{PLA}, 4, v{PLA}
            v_lshl_add_u32 v{PLA}, v{Z0}, 3, v{PLA}
            v_lshrrev_b32 v{Z0}, 5, v{L}
            v_mul_u32_u24 v{Z0}, {7*2048}, v{Z0}
            v_add_u32 v{PLA}, v{PLA}, v{Z0}
            s_mul_i32 s{sV}, s{S_MT}, {14*2048}
            s_lshl_b32 s{sU}, s{S_W}, 8
            s_add_u32 s{sV}, s{sV}, s{sU}
            s_add_u32 s{sV}, s{sV}, {WS_PART}
            """)
    def pl_loads(track=True):
        ops = []
        for i in range(7):
            def ld(i=i):
                if i and i % 2 == 0: e(f"s_add_u32 s{sV}, s{sV}, 4096")
                s_ = f"buffer_load_dwordx2 v[{PL+2*i}:{PL+2*i+1}], v{PLA}, {sq(R_WS)}, s{sV} offen offset:{(i%2)*2048} sc1"
                if track: e.vm(s_, "pl")
                else: e(s_)
                if i == 6: e(f"s_sub_u32 s{sV}, s{sV}, {3*4096}")
            ops.append(ld)
        return ops
    def pl_check():
        LZ = e.label("pc")
        e.need_v("pl")
        e(f"s_mov_b32 s{sU}, 0\n{LZ}_chk:")
        for i in range(7):
            e(f"v_cmp_ne_u32 vcc, s{S_NONCE}, v{PL+2*i+1}")
            e("s_mov_b64 s[62:63], vcc" if i == 0 else "s_or_b64 s[62:63], s[62:63], vcc")
        e(f"""
        s_cmp_eq_u64 s[62:63], 0
        s_cbranch_scc1 {LZ}_ok
        s_add_u32 s{sU}, s{sU}, 1
        s_cmp_ge_u32 s{sU}, 0x10000
        s_cbranch_scc1 {LZ}_ok
        """)
        for f in pl_loads(False): f()
        e(f"s_waitcnt vmcnt(0)\ns_branch {LZ}_chk\n{LZ}_ok:")
        if opt.get("cnt"): e(f"s_add_u32 s{64+2*10}, s{sU}, s64\ns_add_u32 s{64+2*10}, s{64+2*10}, 1000")
    def pl_reduce():
        P = PL
        ops = late(f"""
            v_add_f32 v{P}, v{P}, v{P+2}
            v_add_f32 v{P+4}, v{P+4}, v{P+6}
            v_add_f32 v{P+8}, v{P+8}, v{P+10}
            v_add_f32 v{P}, v{P}, v{P+4}
            v_add_f32 v{P+8}, v{P+8}, v{P+12}
            v_add_f32 v{P}, v{P}, v{P+8}
            v_and_b32 v{P+2}, 31, v{L}
            v_mov_b32 v{P+1}, v{P}
            v_lshrrev_b32 v{P+3}, 4, v{P+2}
            v_and_b32 v{P+2}, 15, v{P+2}
            v_permlane32_swap_b32 v{P}, v{P+1}
            v_lshlrev_b32 v{P+2}, 3, v{P+2}
            v_lshl_add_u32 v{P+2}, v{P+3}, 2, v{P+2}
            v_add_f32 v{P}, v{P}, v{P+1}
            s_lshl_b32 s{sU}, s{S_W}, 7
            s_add_u32 s{sU}, s{sU}, {ZSP}
            v_add_u32 v{P+2}, s{sU}, v{P+2}
            """)
        def wr():
            e("s_mov_b32 exec_hi, 0")
            e.ds(f"ds_write_b32 v{P+2}, v{P}", "put")
            e("s_mov_b32 exec_hi, -1")
        return ops + [wr]
    RHO, NMR = PL + 4, PL + 5
    def zn_stats():
        a, b = PL, PL + 1
        rd = [lambda: e(f"v_add_u32 v{PL+2}, {ZSP - RS}, v{RSR}"), lambda: e.ds(f"ds_read_b64 v[{a}:{b}], v{PL+2}", "zt")]
        ops = [lambda: (e.need_l("zt"), e(f"v_mul_f32 v{a}, {fbits(1.0/896)}, v{a}"))] + late(f"""
            v_mul_f32 v{b}, {fbits(1.0/896)}, v{b}
            v_fma_f32 v{b}, -v{a}, v{a}, v{b}
            v_max_f32 v{b}, 0, v{b}
            v_add_f32 v{b}, {fbits(1e-5)}, v{b}
            v_rsq_f32 v{RHO}, v{b}
            v_subrev_u32 v{STWZ}, {ST - STZ}, v{STW}
            v_mul_f32 v{NMR}, v{a}, v{RHO}
            v_sub_f32 v{NMR}, 0, v{NMR}
            """)
        return rd, ops
    def zn_norm():
        ops = []
        for half in range(2):
            regs_ = [PK2 + 4 * half + i for i in range(4)]
            lo = [PL + 6 + i for i in range(4)]
            hi = [PL + 10 + i for i in range(4)]
            for i in range(4): ops.append(lambda i=i, r=regs_, lo=lo: e(f"v_lshlrev_b32 v{lo[i]}, 16, v{r[i]}"))
            for i in range(4): ops.append(lambda i=i, r=regs_, hi=hi: e(f"v_and_b32 v{hi[i]}, 0xffff0000, v{r[i]}"))
            for i in range(4): ops.append(lambda i=i, lo=lo: e(f"v_fma_f32 v{lo[i]}, v{lo[i]}, v{RHO}, v{NMR}"))
            for i in range(4): ops.append(lambda i=i, hi=hi: e(f"v_fma_f32 v{hi[i]}, v{hi[i]}, v{RHO}, v{NMR}"))
            for i in range(4): ops.append(lambda i=i, r=regs_, lo=lo, hi=hi: e(f"v_cvt_pk_bf16_f32 v{r[i]}, v{lo[i]}, v{hi[i]}"))
        return ops

    NG = 28
    gaps = {(g, p): [] for g in range(NG + 1) for p in range(4)}
    def put(g, p, ops): gaps[(g, p)] += list(ops)
    def spread_gaps(ops, a_, b_):
        slots = [(g, p) for g in range(a_[0], b_[0] + 1) for p in range(4) if (g, p) >= tuple(a_) and (g, p) <= tuple(b_)]
        for sl, s_ in zip(spread(ops, len(slots)), slots): gaps[s_] += sl
    if v4:
        sp = dict(z2=((8, 0), (11, 3)), zl=((12, 0), (12, 3)), pub=13, q2=((15, 0), (15, 2)), q=((22, 1), (23, 3)), pa=((14, 0), (15, 3)),
                  pl=((16, 2), (17, 3)), plc=(20, 0), zn=((21, 2), (22, 3)))
        sp.update(opt.get("sp", {}))
        spread_gaps(setup1, (0, 0), (2, 1))
        spread_gaps(setup_q, (2, 2), (3, 3))
        for p in range(4): put(5, p, setup_wb([p]))
        put(6, 3, [rs_put, cs_put])
        rd, ops = rowstat_ops()
        g1, g2, corr = cs_reduce(0)
        early = opt.get("early")
        put(7, 0, rd + g1); spread_gaps(ops, (7, 1), (7, 2)); put(7, 2, g2); put(7, 3, corr + ([] if early else [non_load]))
        spread_gaps(epi_ops(ACCS[0], True, PK2), *sp["z2"])
        if early: put(2, 0, [non_load]); put(5, 3, [non_put]); put(6, 0, non_get); put(7, 0, non_fin)
        else: put(9, 3, [non_put]); put(11, 0, non_get); put(12, 0, non_fin)
        spread_gaps(zs_local(), *sp["zl"])
        assert sp["pub"] in bars
        rd, st = zs_publish()
        put(sp["pub"], 0, rd); put(sp["pub"], 2, st)
        g1, g2, corr = cs_reduce(1)
        put(14, 0, g1); put(14, 2, g2); put(14, 3, corr)
        A2W, A2R = T + 7, T + 6
        def q2addr():
            LZ = e.label("q2a")
            e(f"""
            v_and_b32 v{T}, 31, v{L}
            s_lshl_b32 s{sT}, s{S_RG}, 5
            v_add_u32 v{T}, s{sT}, v{T}
            v_mul_u32_u24 v{T}, 80, v{T}
            v_lshrrev_b32 v{T+1}, 5, v{L}
            v_lshlrev_b32 v{T+1}, 3, v{T+1}
            v_add_u32 v{T}, v{T}, v{T+1}
            v_add_u32 v{A2W}, {ST2}, v{T}
            s_cmp_eq_u32 s{S_CH}, 0
            s_cbranch_scc1 {LZ}
            v_lshlrev_b32 v{A2W}, 3, v{L}
            v_add_u32 v{A2W}, {XR + 32768}, v{A2W}
            {LZ}:
            v_lshrrev_b32 v{T}, 2, v{L}
            s_lshl_b32 s{sT}, s{S_W}, 4
            v_add_u32 v{T}, s{sT}, v{T}
            v_mul_u32_u24 v{T}, 80, v{T}
            v_and_b32 v{T+1}, 3, v{L}
            v_lshlrev_b32 v{T+1}, 4, v{T+1}
            v_add_u32 v{T}, v{T}, v{T+1}
            v_add_u32 v{A2R}, {ST2}, v{T}
            """)
        put(14, 1, [q2addr])
        spread_gaps(epi_ops(ACCS[1], False, PK), *sp["q2"])
        put(15, 3, stage_w(PK, A2W, "stg"))
        rds2, sts2 = readback(A2R, T, WGQ2, 2688, WS_QKV + 128, 192, "q2", 58, n=1)
        put(16, 0, rds2); put(16, 2, sts2)
        spread_gaps(pl_addr(), *sp["pa"])
        spread_gaps(pl_loads(), *sp["pl"])
        plc = sp["plc"]
        put(*plc, [pl_check])
        spread_gaps(pl_reduce(), (plc[0], plc[1] + 1), (plc[0], 3))
        zb = min(b for b in bars if b > plc[0])
        rd, ops = zn_stats()
        put(zb, 0, rd); put(zb, 1, ops)
        spread_gaps(zn_norm(), *sp["zn"])
        zl = sp["zn"][1]
        put(*zl, stage_w(PK2, STWZ, "stg") + [lambda: e(f"v_subrev_u32 v{STRZ}, {ST - STZ}, v{STR}")])
        zr = min(b for b in bars if b > zl[0])
        rds, sts = readback(STRZ, PK2, GZ, 128, WS_Z2, 262144, "z2", 58) if opt.get("tm") else readback(STRZ, PK2, GZ, 1792, WS_Z2, 128, "z2", 58)
        put(zr, 0, rds); put(zr, 1, sts[:1]); put(zr, 2, sts[1:])
        put(20, 3, [cs_put])
        g1, g2, corr = cs_reduce(2)
        put(21, 0, g1); put(21, 2, g2); put(21, 3, corr)
        QPK = RB
        spread_gaps(epi_ops(ACCS[2], False, QPK), *sp["q"])
        put(24, 0, stage_w(QPK, STW, "stg"))
        rdq, stq = readback(STR, RB, GQ, 2688, WS_QKV, 192, "q", sT)
        put(25, 0, rdq); put(25, 2, stq)
        put(27, 3, [cs_put])
        if opt.get("xk2"):
            k0, k1_, k2_, k3_ = RB + 4, RB + 5, RB + 6, RB + 7
            def xk2_addr():
                e(f"""
                v_lshrrev_b32 v{k0}, 3, v{L}
                v_lshrrev_b32 v{k1_}, 4, v{L}
                v_and_b32 v{k2_}, 7, v{L}
                v_lshlrev_b32 v{XG}, 12, v{k0}
                v_xor_b32 v{k3_}, v{k2_}, v{k1_}
                v_lshlrev_b32 v{k3_}, 4, v{k3_}
                v_add_u32 v{XG+1}, {8*4096-1024}, v{XG}
                v_add_u32 v{XG}, v{XG}, v{k3_}
                v_xor_b32 v{k3_}, 64, v{k3_}
                v_add_u32 v{XG+1}, v{XG+1}, v{k3_}
                s_lshl_b32 s{sX}, s{S_W}, 4
                s_add_u32 s{sX}, s{sX}, s{S_ROW0}
                s_lshl_b32 s{sX}, s{sX}, 12
                """)
                fin_srds(e, ["wsp"])
            def xk2_dma(c):
                def op():
                    e(f"s_add_u32 m0, s{sM0X}, {c * 16384}")
                    e(f"s_add_u32 s{sT}, s{sX}, {c * 128}")
                    for i in range(2):
                        e.vm(f"buffer_load_dwordx4 v{XG+i}, {sq(R_WSP)}, s{sT} offen offset:{1024*i} lds", ("x", c))
                return op
            put(14, 2, [xk2_addr])
            for c, pos in zip((2, 3, 0, 1), opt["xk2"]): put(*pos, [xk2_dma(c)])
        if "spf" in opt:
            def spf():
                e(f"""
                s_lshl_b32 s{sU}, s2, 3
                s_add_u32 s{sU}, s{sU}, s{S_W}
                s_mul_i32 s{sU}, s{sU}, {37 * 128}
                v_lshlrev_b32 v{PK+4}, 7, v{L}
                s_mov_b32 exec_hi, 0x1f
                """)
                fin_srds(e, ["wsp"])
                e.vm(f"buffer_load_dword v{PK+5}, v{PK+4}, {sq(R_WSP)}, s{sU} offen", "spf")
                e("s_mov_b32 exec_hi, -1")
            put(*opt["spf"], [spf])
    else:
        sp = dict(z2=((8, 1), (14, 1)), z1=((15, 1), (16, 3)), q=((22, 1), (23, 3)), pl=((19, 0), (20, 2)), plc=(24, 0), zn=((25, 1), (26, 3)))
        sp.update(opt.get("sp", {}))
        spread_gaps(setup1, (0, 0), (2, 3))
        spread_gaps(setup_q, (3, 0), (5, 3))
        put(6, 3, [rs_put, cs_put])
        rd, ops = rowstat_ops()
        g1, g2, corr = cs_reduce(0)
        put(7, 0, rd + g1); spread_gaps(ops, (7, 1), (7, 2)); put(7, 2, g2); put(7, 3, corr + [non_load])
        spread_gaps(setup_wb(), (8, 0), (12, 3))
        spread_gaps(epi_ops(ACCS[0], True, PK2), *sp["z2"])
        put(9, 3, [non_put]); put(11, 0, non_get); put(12, 0, non_fin)
        put(13, 3, [cs_put])
        g1, g2, corr = cs_reduce(1)
        put(14, 0, g1); put(14, 2, g2); put(14, 3, corr)
        spread_gaps(zs_local(), (14, 2), (15, 2))
        rd, st = zs_publish()
        put(16, 0, rd)
        if not opt.get("nopub"): put(16, 2, st)
        spread_gaps(epi_ops(ACCS[1], False, PK), *sp["z1"])
        spread_gaps(pl_addr(), (17, 0), (18, 3))
        if not opt.get("nopl"): spread_gaps(pl_loads(), *sp["pl"])
        put(20, 3, [cs_put])
        g1, g2, corr = cs_reduce(2)
        put(21, 0, g1); put(21, 2, g2); put(21, 3, corr)
        if not fused and not opt.get("noz1s"):
            def z1save():
                e(f"""
                v_lshlrev_b32 v{T}, 5, v0
                s_lshl_b32 s{sT3}, s2, 14
                s_add_u32 s{sT3}, s{sT3}, {WS_Z1R}
                """)
                e.vm(f"buffer_store_dwordx4 v[{PK}:{PK+3}], v{T}, {sq(R_WS)}, s{sT3} offen", "st_z1")
                e.vm(f"buffer_store_dwordx4 v[{PK+4}:{PK+7}], v{T}, {sq(R_WS)}, s{sT3} offen offset:16", "st_z1")
            put(17, 1, [z1save])
        plc = sp["plc"]
        if not opt.get("nopl"): put(*plc, [pl_check])
        spread_gaps(pl_reduce(), (plc[0], plc[1] + 1), (plc[0], 3))
        QPK = RB
        spread_gaps(epi_ops(ACCS[2], False, QPK), *sp["q"])
        put(24, 0, stage_w(QPK, STW, "stg"))
        zb = min(b for b in bars if b > plc[0])
        rd, ops = zn_stats()
        put(zb, 0, rd); put(zb, 1, ops)
        spread_gaps(zn_norm(), *sp["zn"])
        zl = sp["zn"][1]
        put(*zl, stage_w(PK2, STWZ, "stg") + [lambda: e(f"v_subrev_u32 v{STRZ}, {ST - STZ}, v{STR}")])
        zr = min(b for b in bars if b > zl[0])
        if opt.get("tm"): rds, sts = readback(STRZ, PK2, GZ, 128, WS_Z2, 262144, "z2", 58)
        else: rds, sts = readback(STRZ, PK2, GZ, 1792, WS_Z2, 128, "z2", 58)
        rdq, stq = readback(STR, RB, GQ, 2688, WS_QKV, 192, "q", sT)
        put(25, 0, rdq); put(25, 2, stq)
        put(zr, 0, rds); put(zr, 1, sts[:1]); put(zr, 2, sts[1:])

    def lastbar(g): return max(b for b in bars if b <= g)
    wsched = {g: [] for g in range(NG)}
    nxt = 3
    for g in range(NG):
        n = 2 if 4 <= g <= 7 or g >= 8 else 1
        if g >= 8: n = opt.get("wn", 1) if (g not in bars or g + 1 not in bars) else 1
        for _ in range(n):
            if nxt < 28 and nxt <= lastbar(g) + 7: wsched[g].append(nxt); nxt += 1
    assert nxt == 28, wsched
    issued = {k: g for g in wsched for k in wsched[g]}
    for b in bars:
        nb = min([x for x in bars if x > b] + [27])
        for k in range(b + 1, min(nb, 27) + 1): assert issued.get(k, -1) < b, (b, k, wsched)
    if opt.get("show"): print(wsched)

    e.c("TS 3")
    e.need_v([("x", 0), ("w", 0)]); e("s_barrier")
    e.c("TS 4")
    for p in range(4):
        x_read(0, p)()
        for op in w_read(0, p): op()

    def iteration(g, active=True):
        ph, c = divmod(g, 7)
        if "tsg" in opt and 0 <= g - opt["tsg"] < 10: e.c(f"TS {g - opt['tsg'] + 1}" + " ")
        if g == 27 and opt.get("zpoll"): opt["zpoll"](e)
        if g in bars:
            nb = min([x for x in bars if x > g] + [27])
            e.need_l(["put", "stg"])
            e.need_v([("w", k) for k in range(g + 1, nb + 1)] + [("x", g + 1)] + (["st_z2"] if g == opt.get("zfb") else []))
            if not opt.get("nobar"): e("s_barrier")
            if g == opt.get("zfb"): opt["zflag"](e)
        nxt_active = g + 1 < 28 and (active or (v4 and KINDS[(g + 1) // 7] != "q2"))
        xd = x_dma(g + 4) if g >= 1 else []
        wd = [w_dma(k) for k in wsched[g]]
        if opt.get("nodma"): xd, wd = [], []
        dpos = opt.get("dpos", (1, 3))
        for p in range(4):
            if active:
                e.need_l([("wf", g, p), ("xf", c, p) if ph == 0 else ("wf", g, p)])
                mfma(g, p)
            if ph == 0 and c < 6: x_read(c + 1, p)()
            if nxt_active:
                for f in w_read(g + 1, p): f()
            if p == dpos[0] and wd:
                for f in wd[0]: f()
            if p == dpos[1] and len(wd) > 1:
                for f in wd[1]: f()
            if p == 2 and xd:
                for f in xd[:2]: f()
            if p == 3 and xd:
                for f in xd[2:]: f()
            if not opt.get("noextra"):
                for f in gaps[(g, p)]: f()
            if active and p == 3 and g == (13 if v4 else 27): cs_put()

    if v4:
        for g in range(7): iteration(g)
        e.c("TS 5")
        L1, LJ = e.label("p1c1"), e.label("p1j")
        e(f"s_cmp_lg_u32 s{S_CH}, 0\ns_cbranch_scc1 {L1}")
        e.c("HZ_SAVE p1")
        sv = e.save()
        for g in range(7, 14): iteration(g, True)
        e.wait_l0()
        e.c("HZ_SAVE p1j")
        e(f"s_branch {LJ}")
        stA = e.save()
        e(f"{L1}:")
        e.c("HZ_RESTORE p1")
        e.restore(sv)
        for g in range(7, 14): iteration(g, False)
        e.wait_l0()
        e("s_nop 7")
        e(f"{LJ}:")
        e.c("HZ_RESTORE p1j")
        assert stA[1] == e.vq and stA[2] == e.vcount
        e.c("TS 6")
        for g in range(14, 28):
            if g == 21: e.c("TS 7")
            iteration(g)
        e.c("TS 8")
        e.need_l("put"); e.need_v("st_z2"); e("s_barrier")
        g1, g2, corr = cs_reduce(3)
        e.k1_tail = g1 + g2 + corr + epi_ops(ACCS[3], False, PK)
        e.c("TS 9")
        return
    for g in range(21):
        if g in (7, 14): e.c(f"TS {5 + g // 7 - 1}")
        iteration(g)
    e.c("TS 7")
    L1, LJ = e.label("p4c1"), e.label("p4j")
    e(f"s_cmp_lg_u32 s{S_CH}, 0\ns_cbranch_scc1 {L1}")
    e.c("HZ_SAVE p4")
    sv = e.save()
    for g in range(21, 28): iteration(g, True)
    e.c("TS 8")
    e.need_l("put"); e("s_barrier")
    g1, g2, corr = cs_reduce(3)
    for op in g1: op()
    e(f"""
    v_and_b32 v{RB+4}, 31, v{L}
    s_lshl_b32 s{sT}, s{S_RG}, 5
    v_add_u32 v{RB+4}, s{sT}, v{RB+4}
    v_mul_u32_u24 v{RB+4}, 80, v{RB+4}
    v_lshrrev_b32 v{RB+5}, 5, v{L}
    v_lshlrev_b32 v{RB+5}, 3, v{RB+5}
    v_add_u32 v{RB+4}, v{RB+4}, v{RB+5}
    v_add_u32 v{STW}, {ST2}, v{RB+4}
    """)
    for op in g2 + corr: op()
    for op in epi_ops(ACCS[3], False, WF): op()
    for op in stage_w(WF, STW, "stg"): op()
    e.need_l("stg")
    e(f"s_branch {LJ}")
    stA = e.save()
    e(f"{L1}:")
    e.c("HZ_RESTORE p4")
    e.restore(sv)
    for g in range(21, 28): iteration(g, False)
    e.wait_l0()
    e("s_barrier")
    e(f"{LJ}:")
    e.lq = []
    e.vq = ["unk"] * max(len(stA[1]), len(e.vq))
    assert stA[2] == e.vcount
    e("s_barrier")
    e.pos_join = e.vcount
    e(f"""
    v_lshrrev_b32 v{T}, 2, v{L}
    s_lshl_b32 s{sT}, s{S_W}, 4
    v_add_u32 v{T}, s{sT}, v{T}
    v_mul_u32_u24 v{T}, 80, v{T}
    v_and_b32 v{T+1}, 3, v{L}
    v_lshlrev_b32 v{T+1}, 4, v{T+1}
    v_add_u32 v{T}, v{T}, v{T+1}
    v_add_u32 v{STR}, {ST2}, v{T}
    """)
    rds, sts = readback(STR, RB, WGQ2, 2688, WS_QKV + 128, 192, "q2", 58, n=1)
    for op in rds + sts: op()
    e.pos_q2 = e.vcount
    e.c("TS 9")

def k1_aux(e, fused=False, opt={}):
    h = 48
    if opt.get("apf"):
        e(f"""
        s_sub_u32 s{h}, s2, 224
        s_and_b32 s49, s{h}, 1
        s_lshr_b32 s50, s{h}, 3
        s_lshl_b32 s50, s50, 9
        v_add_u32 v2, s50, v0
        s_waitcnt lgkmcnt(0)
        """)
        fin_srds(e, ["win", "wqkv"])
        regs_ = [8, 9, 10, 11, 12, 13, 14, 15]
        k = 0
        r0 = opt.get("apf_r0", 192)
        regions = ((R_WIN, 3584, 7, 9363, 16, r0, 1792, 896), (R_WQKV, 2688, 11, 5958, 16, 0, 0, 1280), (R_WIN, 3584, 7, 9363, 16, 0, 0, 896))
        for srd, pitch, nl, M, S, row0, colb, jm in [regions[i] for i in opt.get("apf_reg", (0, 1, 2))]:
            N = (448 - row0) * nl
            e(f"s_mul_i32 s51, s49, {jm}\ns_add_u32 s51, s51, {row0 * pitch + colb}")
            for i in range(-(-N // 2048)):
                e(f"""
                v_add_u32 v3, {i * 2048}, v2
                v_min_u32 v3, {N - 1}, v3
                v_mul_u32_u24 v4, {M}, v3
                v_lshrrev_b32 v4, {S}, v4            ; row
                v_mul_u32_u24 v5, {nl}, v4
                v_sub_u32 v3, v3, v5                 ; line
                v_mul_u32_u24 v4, {pitch}, v4
                v_lshl_add_u32 v3, v3, 7, v4
                buffer_load_dword v{16 + k}, v3, {sq(srd)}, s51 offen
                """)
                k += 1
    e(f"""
    s_load_dwordx2 s[{R_WSP}:{R_WSP+1}], s[0:1], {K_WSP}
    s_load_dwordx2 s[{R_WOUT}:{R_WOUT+1}], s[0:1], {K_WOUT}
    s_load_dwordx2 s[{R_WO}:{R_WO+1}], s[0:1], {K_WO}
    s_sub_u32 s{h}, s2, 224
    s_waitcnt lgkmcnt(0)
    """)
    fin_srds(e, ["wsp", "wout", "wo"])
    def small():
        e(f"v_lshlrev_b32 v2, 7, v0")
        e(f"s_mul_i32 s49, s{h}, {SZ_WOUT//32}")
        e(f"v_cmp_gt_u32 vcc, {SZ_WOUT//32}, v2")
        e(f"s_and_b64 exec, exec, vcc")
        e(f"buffer_load_dword v24, v2, {sq(R_WOUT)}, s49 offen")
        e(f"s_mul_i32 s49, s{h}, {SZ_WO//32}")
        e(f"v_cmp_gt_u32 vcc, {SZ_WO//32}, v2")
        e(f"s_and_b64 exec, exec, vcc")
        e(f"buffer_load_dword v25, v2, {sq(R_WO)}, s49 offen")
        e("s_mov_b64 exec, -1")
    R = opt.get("wspr")
    if R:
        if not opt.get("smalllate"): small()
        def late_wsp():
            npl = 256 // R
            e(f"""
            s_mul_i32 s49, s{S_W}, {npl}
            v_add_u32 v2, s49, v1
            v_lshlrev_b32 v2, 7, v2
            s_sub_u32 s49, s2, 224
            s_lshl_b32 s49, s49, 18
            s_waitcnt vmcnt({opt.get("wspw", 0)})
            """)
            e.c("TS 20")
            if npl == 32: e("s_mov_b32 exec_hi, 0")
            elif npl < 32: e(f"s_mov_b64 exec, {hex((1 << npl) - 1)}")
            for r in range(R):
                e(f"buffer_load_dword v{8 + r % 8}, v2, {sq(R_WSP)}, s49 offen")
                if r < R - 1:
                    e(f"s_add_u32 s49, s49, {npl * 8 * 128}")
                    e(f"s_waitcnt vmcnt({opt.get('wspd', 1) - 1})")
                    e.c(f"TS {21 + r}")
            e("s_mov_b64 exec, -1")
            if opt.get("smalllate") == 1: small()
        return late_wsp
    e(f"""
    v_lshlrev_b32 v2, 7, v0
    s_lshl_b32 s49, s{h}, 18
    """)
    stride = 512 * 128
    k = 0
    for i in range((256 * 1024) // stride if not opt.get("nowsp") else 0):
        e(f"s_add_u32 s50, s49, {i*stride}")
        e(f"buffer_load_dword v{8+k%16}, v2, {sq(R_WSP)}, s50 offen"); k += 1
    small()
    return None
```

```python
from g2common import *

F_H  = WS_FLG
F_O  = WS_FLG + 0x1000
F_Z2 = WS_FLG + 0x2000
F_Q  = WS_FLG + 0x3000
F_N  = WS_FLG + 0x4000

K2_XR, K2_WR, K2_NS = 0, 98304, 6
K23_LDS = 160 * 1024 - 960
K3_W = [114688, 122880, 131072, 139264, 98304, 106496, 0, 8192, 16384, 24576]
K3_X = [65536, 73728, 81920, 90112, 49152, 57344, 32768, 40960]
HSTG = 32768
K3_XS = 147456
S3_TT, S3_NT, S3_KH, S3_TB, S3_DB, S3_T0, S3_X, S3_WW, S3_R, S3_M0 = 92, 93, 94, 95, 96, 97, 98, 99, 100, 101
V_Z1 = 96

def late(e, txt):
    return [lambda l=l: e(l) for l in txt.strip("\n").split("\n") if l.strip()]

def flag_store(e, off_sgpr_txt, base, vt=(28, 29), stmp=62, wave=0):
    LZ = e.label("fs")
    e(f"s_cmp_lg_u32 s{S_W}, {wave}\ns_cbranch_scc1 {LZ}")
    e(off_sgpr_txt)
    e(f"""
    s_add_u32 s{stmp}, s{stmp}, {base}
    v_mov_b32 v{vt[0]}, 0
    v_mov_b32 v{vt[1]}, s{S_NONCE}
    s_mov_b64 exec, 1
    buffer_store_dword v{vt[1]}, v{vt[0]}, {sq(R_WS)}, s{stmp} offen sc1
    s_mov_b64 exec, -1
    {LZ}:
    """)

class Poll:
    def __init__(self, e, n, va, vd, soff, tag, mask=None, sleep=0, gap=2):
        self.e, self.va, self.soff, self.tag = e, va, soff, tag
        self.vds = list(vd) if isinstance(vd, (list, tuple)) else [vd]
        self.m = mask if mask is not None else (1 << n) - 1
        self.sleep, self.gap = sleep, gap
    def load(self, vd):
        e = self.e
        e(f"s_mov_b32 exec_lo, {self.m}\ns_mov_b32 exec_hi, 0")
        e(f"buffer_load_dword v{vd}, v{self.va}, {sq(R_WS)}, s{self.soff} offen sc1")
        e("s_mov_b64 exec, -1")
    def issue(self, pre=""):
        e = self.e
        LZ = e.label("pi")
        e(f"s_cmp_lg_u32 s{S_W}, 0\ns_cbranch_scc1 {LZ}")
        if pre: e(pre)
        self.load(self.vds[0])
        e(f"{LZ}:")
        self.pos = e.vcount
    def test(self, vd, ok):
        e = self.e
        e(f"s_mov_b32 exec_lo, {self.m}\ns_mov_b32 exec_hi, 0")
        e(f"v_cmp_ne_u32 vcc, s{S_NONCE}, v{vd}")
        e("s_mov_b64 exec, -1")
        e(f"s_cmp_eq_u64 vcc, 0\ns_cbranch_scc1 {ok}")
    def check(self, stmp=51, limit=0x8000, wait=True):
        e = self.e
        LZ = e.label("pc")
        D = len(self.vds)
        e(f"s_cmp_lg_u32 s{S_W}, 0\ns_cbranch_scc1 {LZ}_ok")
        if wait: e.wait_v_since(self.pos)
        else: e("s_waitcnt vmcnt(0)")
        self.test(self.vds[0], f"{LZ}_ok")
        for vd in self.vds[1:]:
            self.load(vd)
            if self.gap: e(f"s_sleep {self.gap}")
        e(f"s_mov_b32 s{stmp}, 0\n{LZ}_chk:")
        for k in range(D):
            if self.sleep: e(f"s_sleep {self.sleep}")
            self.load(self.vds[k])
            e(f"s_waitcnt vmcnt({D - 1})")
            self.test(self.vds[(k + 1) % D], f"{LZ}_ok")
        e(f"""
        s_add_u32 s{stmp}, s{stmp}, 1
        s_cmp_lt_u32 s{stmp}, {limit // D}
        s_cbranch_scc1 {LZ}_chk
        {LZ}_ok:
        """)

def k3_ids(e):
    return late(e, f"""
    s_and_b32 s62, s2, 7
    s_lshr_b32 s63, s2, 3
    s_lshl_b32 s62, s62, 2
    s_and_b32 s{S3_TT}, s63, 3
    s_add_u32 s{S3_TT}, s{S3_TT}, s62
    s_lshr_b32 s{S3_NT}, s63, 2
    s_lshl_b32 s{S3_T0}, s{S3_TT}, 6
    s_and_b32 s{S3_TB}, s{S_W}, 1
    s_lshr_b32 s{S3_DB}, s{S_W}, 1
    s_and_b32 s{S3_DB}, s{S3_DB}, 1
    s_lshr_b32 s{S3_KH}, s{S_W}, 2
    """)

def k23_main(e, opt=None, entry="cold"):
    opt = opt or {}
    XR, WR, NS = K2_XR, K2_WR, K2_NS
    L = 1
    XG, WGI = 2, 4
    XA, XH, WA = 8, 12, 16
    BIAS, STW, STR, GH, CK1, CK2 = 20, 21, 22, 23, 24, 25
    T = 26
    XF, WF, ACC, ZF, U1, GT = 32, 48, 64, 80, V_Z1, 104
    sX, sW, sM0X, sM0W, sT, sT2, sT3 = 48, 49, 52, 53, 55, 56, 57
    t0, t1, t2, t3 = GT, GT + 1, GT + 2, GT + 3
    NCH = 32
    tm = opt.get("tm")
    zsc = " sc1" if (entry == "k1" and not opt.get("zplain")) else ""
    hsc = "" if opt.get("hplain") else " sc1"
    ZP, ZJ = (128, 18) if tm else (1792, 7)
    HP = 128 if tm else 2688
    def hoff(k): return k * (262144 if tm else 128)
    PDS = [151, 200, 201, 202][:opt.get("pd", 4)]
    FW = opt.get("fw", 1)
    if entry == "k1" and getattr(e, "k1_tail", None) is not None:
        if not opt.get("zearly"): flag_store(e, f"s_lshl_b32 s62, s{S_J}, 7\ns_lshl_b32 s63, s{S_MT}, 2\ns_add_u32 s62, s62, s63", F_Z2, vt=(142, 143), wave=FW)
        if getattr(e, "pollZ", None) is not None: pollZ = e.pollZ
        else:
            e(f"v_lshlrev_b32 v141, 2, v{L}")
            pollZ = Poll(e, 16, 141, PDS, 50, "z")
            if not opt.get("zlate") or opt.get("zearly"): pollZ.issue(f"s_lshl_b32 s50, s{S_J}, 7\ns_add_u32 s50, s50, {F_Z2}")
    e(f"""
    v_lshrrev_b32 v{t0}, 3, v{L}
    v_lshrrev_b32 v{t1}, 4, v{L}
    v_and_b32 v{t2}, 7, v{L}
    v_lshlrev_b32 v{XG}, 12, v{t0}
    v_xor_b32 v{t3}, v{t2}, v{t1}
    v_lshlrev_b32 v{t3}, 4, v{t3}
    v_add_u32 v{XG+1}, {8*4096-1024}, v{XG}
    v_add_u32 v{XG}, v{XG}, v{t3}
    v_xor_b32 v{t3}, 64, v{t3}
    v_add_u32 v{XG+1}, v{XG+1}, v{t3}
    v_and_b32 v{t3}, 1, v{t1}
    v_lshlrev_b32 v{t3}, 2, v{t3}
    v_xor_b32 v{t3}, v{t2}, v{t3}
    v_lshlrev_b32 v{t3}, 4, v{t3}
    v_mul_u32_u24 v{WGI}, {ZP}, v{t0}
    v_add_u32 v{WGI}, v{WGI}, v{t3}
    s_lshl_b32 s{sT}, s{S_W}, 4
    s_add_u32 s{sT}, s{sT}, s{S_ROW0}
    s_lshl_b32 s{sX}, s{sT}, 12
    s_mul_i32 s{sT}, s{S_W}, {8*ZP}
    s_lshl_b32 s{sT2}, s{S_J}, {ZJ}
    s_add_u32 s{sW}, s{sT}, s{sT2}
    s_add_u32 s{sW}, s{sW}, {WS_Z2}
    s_lshl_b32 s{sM0X}, s{S_W}, 11
    s_add_u32 s{sM0X}, s{sM0X}, {XR}
    s_lshl_b32 s{sM0W}, s{S_W}, 10
    s_add_u32 s{sM0W}, s{sM0W}, {WR}
    """)
    k1e = entry == "k1"
    if k1e:
        fin_srds(e, ["wsp", "bsp", "wout", "wo", "out"])
    else:
        e(f"s_mov_b32 s60, {F_N}\ns_waitcnt lgkmcnt(0)")
        fin_srds(e, ["wsp", "ws", "bsp", "wout", "wo", "x", "out"])
        e(f"s_load_dword s{S_NONCE}, s[{R_WS}:{R_WS+1}], s60")
    def x_dma(c):
        if c >= NCH: return []
        def pre():
            e(f"s_add_u32 m0, s{sM0X}, {(c % NS) * 16384}")
            e(f"s_add_u32 s{sT}, s{sX}, {(c % opt.get('k2xs', 99)) * 128}")
        ops = [pre]
        for i in range(2):
            ops.append(lambda i=i: e.vm(f"buffer_load_dwordx4 v{XG+i}, {sq(R_WSP)}, s{sT} offen offset:{1024*i} lds", ("x", c)))
        return ops
    def w_dma(c):
        if c >= NCH: return []
        def op():
            e(f"s_add_u32 m0, s{sM0W}, {(c % NS) * 8192}")
            e(f"s_add_u32 s{sT2}, s{sW}, {(c % opt.get('k2ws', 99)) * 64 * ZP}")
            e.vm(f"buffer_load_dwordx4 v{WGI}, {sq(R_WS)}, s{sT2} offen{zsc} lds", ("w", c))
        return [op]
    npro = opt.get("npro", 5)
    zfirst = k1e and opt.get("zearly") == 2
    if zfirst:
        xpre = opt.get("xpre", 1)
        xk = opt.get("xk", 0)
        for c in range(xk, max(xk, xpre)):
            for op in x_dma(c): op()
        xpre = max(xk, xpre)
        pollZ.check()
        e("s_barrier")
        e.c("TS 2")
        for c in range(npro):
            for op in w_dma(c) + (x_dma(c) if c >= xpre else []): op()
            if c in opt.get("pbz", (0, 1)): e("s_barrier")
    else:
        for op in x_dma(0) + ([] if k1e else w_dma(0)): op()
    if not k1e: e.c("TS 1")
    e(f"""
    v_lshlrev_b32 v{t0}, 5, v0
    v_and_b32 v{t1}, 31, v{L}
    v_lshlrev_b32 v{t1}, 1, v{t1}
    s_lshl_b32 s58, s{S_RG}, 5
    s_add_u32 s58, s58, s{S_ROW0}
    s_lshl_b32 s58, s58, 1
    """)
    def u1_load():
        if not k1e:
            e.vm(f"buffer_load_dwordx4 v[{U1}:{U1+3}], v{t0}, {sq(R_WS)}, s{sT3} offen", "u1")
            e.vm(f"buffer_load_dwordx4 v[{U1+4}:{U1+7}], v{t0}, {sq(R_WS)}, s{sT3} offen offset:16", "u1")
        e.vm(f"buffer_load_ushort v{BIAS}, v{t1}, {sq(R_BSP)}, s58 offen", "u1")
    def frag_addr(rot_txt, xrow_txt, xbase, wbase, XAr, WAr, nstep, step_txt, chreg):
        pass
    n_, h_, r_, qd_, chf_, u_ = GT + 4, GT + 5, GT + 6, GT + 7, GT + 8, GT + 9
    e(f"""
    v_and_b32 v{n_}, 31, v{L}
    v_lshrrev_b32 v{h_}, 5, v{L}
    v_and_b32 v{r_}, 15, v{L}
    v_and_b32 v{qd_}, 3, v{r_}
    v_lshlrev_b32 v{qd_}, 3, v{qd_}
    v_lshrrev_b32 v{r_}, 2, v{r_}
    v_lshrrev_b32 v{chf_}, 4, v{L}
    v_and_b32 v{chf_}, 1, v{chf_}
    v_lshlrev_b32 v{chf_}, 5, v{chf_}
    v_add_u32 v{chf_}, v{chf_}, v{qd_}
    s_lshl_b32 s{sT}, s{S_CH}, 1
    s_add_u32 s{sT}, s{sT}, s{S_RG}
    v_lshlrev_b32 v{u_}, 3, v{h_}
    v_add_u32 v{u_}, v{u_}, v{r_}
    v_lshlrev_b32 v{u_}, 7, v{u_}
    v_add_u32 v{u_}, v{u_}, v{chf_}
    v_lshrrev_b32 v{r_}, 1, v{r_}
    v_xor_b32 v{r_}, s{S_CH}, v{r_}
    v_lshlrev_b32 v{r_}, 6, v{r_}
    v_add_u32 v{u_}, v{u_}, v{r_}
    v_lshrrev_b32 v{qd_}, 1, v{n_}
    v_and_b32 v{qd_}, 7, v{qd_}
    v_lshlrev_b32 v{chf_}, 7, v{n_}
    s_lshl_b32 s{sT2}, s{S_RG}, 12
    s_add_u32 s{sT2}, s{sT2}, {XR}
    v_add_u32 v{chf_}, s{sT2}, v{chf_}
    """)
    for p in range(4):
        e(f"""
        s_add_u32 s{sT2}, s{sT}, {p}
        s_and_b32 s{sT2}, s{sT2}, 3
        s_lshl_b32 s{sT3}, s{sT2}, 1
        v_add_u32 v{r_}, s{sT3}, v{h_}
        v_xor_b32 v{r_}, v{r_}, v{qd_}
        v_lshlrev_b32 v{r_}, 4, v{r_}
        v_add_u32 v{XA+p}, v{chf_}, v{r_}
        s_lshl_b32 s{sT3}, s{sT2}, 11
        s_add_u32 s{sT3}, s{sT3}, {WR}
        v_add_u32 v{WA+p}, s{sT3}, v{u_}
        v_add_u32 v{XH+p}, 0x10000, v{XA+p}
        """)
    if not k1e:
        e("s_barrier")
        for c in range(1, npro):
            for op in x_dma(c) + w_dma(c): op()
            if c in opt.get("pb", (1, 2, 3)): e("s_barrier")
        e(f"s_lshl_b32 s{sT3}, s2, 14\ns_add_u32 s{sT3}, s{sT3}, {WS_Z1R}")
        u1_load()
        e.c("TS 2")
    else:
        tail = getattr(e, "k1_tail", None)
        for c in range(1, npro if not zfirst else 0):
            for op in x_dma(c): op()
        u1_load()
        if tail is None:
            e(f"v_lshlrev_b32 v150, 2, v{L}")
            pollZ = Poll(e, 16, 150, PDS, 50, "z")
            e.wait_v_since(e.pos_join)
            e("s_barrier")
            flag_store(e, f"s_lshl_b32 s62, s{S_J}, 7\ns_lshl_b32 s63, s{S_MT}, 2\ns_add_u32 s62, s62, s63", F_Z2, vt=(162, 163), wave=FW)
            pollZ.issue(f"s_lshl_b32 s50, s{S_J}, 7\ns_add_u32 s50, s50, {F_Z2}")
            e.c("TS 1")
            e.wait_v_since(e.pos_q2)
        elif zfirst:
            for op in tail: op()
            e.c("TS 1")
            e.need_v("st_q")
        elif opt.get("zearly"):
            nt0 = opt.get("ztail", 0)
            for op in tail[:nt0]: op()
            pollZ.check()
            e("s_barrier")
            e.c("TS 2")
            for c in range(npro):
                for op in w_dma(c): op()
                if c in opt.get("pbz", (0, 1)): e("s_barrier")
            for op in tail[nt0:]: op()
            e.c("TS 1")
            e.need_v("st_q")
        else:
            for op in tail: op()
            if opt.get("zlate"): pollZ.issue(f"s_lshl_b32 s50, s{S_J}, 7\ns_add_u32 s50, s50, {F_Z2}")
            e.c("TS 1")
            e.need_v("st_q")
        e("s_barrier")
        flag_store(e, f"s_lshl_b32 s62, s{S_MT}, 7\ns_lshl_b32 s63, s{S_J}, 2\ns_add_u32 s62, s62, s63", F_Q, vt=(162, 163), wave=FW + 1)
        if not opt.get("zearly"):
            pollZ.check()
            e("s_barrier")
            e.c("TS 2")
            for c in range(npro):
                for op in w_dma(c): op()
                if c in opt.get("pbz", (0, 1)): e("s_barrier")
    dsched = {c: [] for c in range(NCH)}
    nxt = npro
    for c in range(NCH):
        for _ in range(opt.get("dn", 2)):
            if nxt < NCH and nxt <= c + NS - (0 if opt.get("k2deep") else 1): dsched[c].append(nxt); nxt += 1
    assert nxt == NCH

    def x_read(c, p):
        s = c % NS
        a = (XA if s < 4 else XH) + p
        return lambda: e.ds(f"ds_read_b128 v[{XF+4*p}:{XF+4*p+3}], v{a} offset:{(s % 4) * 16384}", ("f", c, p))
    def w_read(c, p):
        ops = []
        for t in range(2):
            d = WF + 4 * p + 2 * t
            ops.append(lambda d=d, t=t: e.ds(f"ds_read_b64_tr_b16 v[{d}:{d+1}], v{WA+p} offset:{(c % NS) * 8192 + t * 512}", ("f", c, p)))
        return ops
    def mfma(c, p):
        cin = "0" if (c == 0 and p == 0) else f"v[{ACC}:{ACC+15}]"
        e(f"v_mfma_f32_32x32x16_bf16 v[{ACC}:{ACC+15}], v[{WF+4*p}:{WF+4*p+3}], v[{XF+4*p}:{XF+4*p+3}], {cin}")

    XG3, WG3, RG3 = 128, 129, 130
    XA3, WA3 = 132, 136
    RA, RW, XRD, XRD2, STW3, STR3, GO = 142, 143, 144, 145, 146, 147, 148
    PA_, PD_ = 150, 151
    T3 = 152
    order = [14 + i for i in range(7)] + list(range(14))
    if opt.get('swap'): order = order[:7] + [k ^ 1 for k in range(14)]
    N3 = 21
    u0, u1_, u2, u3 = T3, T3 + 1, T3 + 2, T3 + 3
    k3_setup = k3_ids(e) + late(e, f"""
    v_lshrrev_b32 v{u0}, 3, v{L}
    v_lshrrev_b32 v{u1_}, 4, v{L}
    v_and_b32 v{u2}, 7, v{L}
    v_and_b32 v{u3}, 1, v{u1_}
    v_lshlrev_b32 v{u3}, 2, v{u3}
    v_xor_b32 v{u3}, v{u2}, v{u3}
    v_lshlrev_b32 v{u3}, 4, v{u3}
    v_mul_u32_u24 v{WG3}, 896, v{u0}
    v_add_u32 v{WG3}, v{WG3}, v{u3}
    s_lshl_b32 s62, s{S3_TB}, 2
    v_add_u32 v{u1_}, s62, v{u1_}
    v_xor_b32 v{u3}, v{u2}, v{u1_}
    v_lshlrev_b32 v{u3}, 4, v{u3}
    v_mul_u32_u24 v{XG3}, {HP}, v{u0}
    v_add_u32 v{XG3}, v{XG3}, v{u3}
    v_mul_u32_u24 v{RG3}, 896, v{u0}
    v_add_u32 v{RG3}, v{RG3}, v{u3}
    s_lshl_b32 s62, s{S_W}, 3
    s_add_u32 s63, s62, s{S3_T0}
    s_mul_i32 s{S3_X}, s63, {HP}
    s_add_u32 s{S3_X}, s{S3_X}, {WS_HO}
    s_mul_i32 s{S3_R}, s63, 896
    s_mul_i32 s{S3_WW}, s62, 896
    s_lshl_b32 s63, s{S3_NT}, 7
    s_add_u32 s{S3_WW}, s{S3_WW}, s63
    s_add_u32 s{S3_R}, s{S3_R}, s63
    s_lshl_b32 s{S3_M0}, s{S_W}, 10
    v_lshlrev_b32 v{PA_}, 2, v{L}
    v_lshlrev_b32 v196, 4, v0
    v_add_u32 v197, 0x10000, v196
    """)
    n3, h3, r3, qd3, chf3, w3 = T3 + 4, T3 + 5, T3 + 6, T3 + 7, T3 + 8, T3 + 9
    k3_addr = late(e, f"""
    v_and_b32 v{n3}, 31, v{L}
    v_lshrrev_b32 v{h3}, 5, v{L}
    v_and_b32 v{r3}, 15, v{L}
    v_and_b32 v{qd3}, 3, v{r3}
    v_lshlrev_b32 v{qd3}, 3, v{qd3}
    v_lshrrev_b32 v{r3}, 2, v{r3}
    v_lshrrev_b32 v{chf3}, 4, v{L}
    v_and_b32 v{chf3}, 1, v{chf3}
    v_lshlrev_b32 v{chf3}, 5, v{chf3}
    v_add_u32 v{chf3}, v{chf3}, v{qd3}
    v_lshlrev_b32 v{w3}, 3, v{h3}
    v_add_u32 v{w3}, v{w3}, v{r3}
    v_lshlrev_b32 v{w3}, 7, v{w3}
    v_add_u32 v{w3}, v{w3}, v{chf3}
    v_lshrrev_b32 v{r3}, 1, v{r3}
    v_xor_b32 v{r3}, s{S3_DB}, v{r3}
    v_lshlrev_b32 v{r3}, 6, v{r3}
    v_add_u32 v{w3}, v{w3}, v{r3}
    v_lshrrev_b32 v{qd3}, 1, v{n3}
    v_and_b32 v{qd3}, 7, v{qd3}
    s_lshl_b32 s62, s{S3_TB}, 5
    v_add_u32 v{n3}, s62, v{n3}
    v_lshlrev_b32 v{chf3}, 7, v{n3}
    """)
    for p in range(2):
        k3_addr += late(e, f"""
        s_lshl_b32 s62, s{S3_KH}, 1
        s_add_u32 s62, s62, {p}
        s_lshl_b32 s63, s62, 1
        v_add_u32 v{r3}, s63, v{h3}
        v_xor_b32 v{r3}, v{r3}, v{qd3}
        v_lshlrev_b32 v{r3}, 4, v{r3}
        v_add_u32 v{XA3+p}, v{chf3}, v{r3}
        v_add_u32 v{XA3+2+p}, 0x10000, v{XA3+p}
        s_lshl_b32 s63, s62, 11
        v_add_u32 v{WA3+p}, s63, v{w3}
        v_add_u32 v{WA3+2+p}, 0x10000, v{WA3+p}
        v_add_u32 v{WA3+4+p}, 0x20000, v{WA3+p}
        """)
    RED, STG = 0, 16384
    a0, a1, a2 = T3, T3 + 1, T3 + 2
    k3_epi_addr = late(e, f"""
    s_and_b32 s62, s{S_W}, 3
    s_lshl_b32 s62, s62, 12
    s_lshl_b32 s63, s{S3_KH}, 11
    s_add_u32 s60, s62, s63
    s_xor_b32 s63, s63, 2048
    s_add_u32 s61, s62, s63
    v_lshlrev_b32 v{a0}, 4, v{L}
    v_add_u32 v{RA}, s60, v{a0}
    v_add_u32 v{RW}, s61, v{a0}
    v_and_b32 v{a0}, 31, v{L}
    v_lshrrev_b32 v{a1}, 5, v{L}
    s_lshl_b32 s62, s{S3_TB}, 5
    v_add_u32 v{a2}, s62, v{a0}
    v_lshlrev_b32 v{a1}, 3, v{a1}
    s_lshl_b32 s63, s{S3_DB}, 6
    s_lshl_b32 s60, s{S3_KH}, 5
    s_add_u32 s63, s63, s60
    v_lshrrev_b32 v{a0}, 1, v{a0}
    v_and_b32 v{a0}, 7, v{a0}
    v_lshlrev_b32 v{a0}, 4, v{a0}
    v_xor_b32 v{a0}, s63, v{a0}
    v_lshl_add_u32 v{XRD}, v{a2}, 7, v{a0}
    v_add_u32 v{XRD}, v{XRD}, v{a1}
    v_add_u32 v{XRD}, {K3_XS}, v{XRD}
    v_xor_b32 v{XRD2}, 16, v{XRD}
    v_mul_u32_u24 v{STW3}, 144, v{a2}
    v_add3_u32 v{STW3}, v{STW3}, v{a1}, s63
    v_lshrrev_b32 v{a0}, 3, v0
    v_and_b32 v{a1}, 7, v0
    v_lshlrev_b32 v{a1}, 4, v{a1}
    v_mul_u32_u24 v{STR3}, 144, v{a0}
    v_add_u32 v{STR3}, v{STR3}, v{a1}
    v_mul_u32_u24 v{GO}, 896, v{a0}
    v_add_u32 v{GO}, v{GO}, v{a1}
    """)
    XR3, LW3 = 164, 196
    def x3_land(c):
        if not (opt.get("xreg") and c >= 7): return
        off = K3_X[c % 8]
        e.need_v(("x3", c))
        r = XR3 + 4 * (c % 8)
        e.ds(f"ds_write_b128 v{LW3 + (off >> 16)}, v[{r}:{r+3}] offset:{off & 0xffff}", ("xw", c))
        e.need_l(("xw", c))
    def x3_dma(c):
        if opt.get("xreg") and c >= 7:
            def opr():
                r = XR3 + 4 * (c % 8)
                e(f"s_add_u32 s{sT}, s{S3_X}, {hoff(order[c])}")
                e.vm(f"buffer_load_dwordx4 v[{r}:{r+3}], v{XG3}, {sq(R_WS)}, s{sT} offen sc1", ("x3", c))
            return [opr]
        def op():
            e(f"s_add_u32 m0, s{S3_M0}, {K3_X[c % 8]}")
            e(f"s_add_u32 s{sT}, s{S3_X}, {hoff(order[c])}")
            e.vm(f"buffer_load_dwordx4 v{XG3}, {sq(R_WS)}, s{sT} offen{hsc} lds", ("x3", c))
        return [op]
    def w3_dma(c):
        k = order[c]
        def op():
            e(f"s_add_u32 m0, s{S3_M0}, {K3_W[c % 10]}")
            e(f"s_add_u32 s{sT2}, s{S3_WW}, {(k if k < 14 else k - 14) * 64 * 896}")
            e.vm(f"buffer_load_dwordx4 v{WG3}, {sq(R_WOUT if k < 14 else R_WO)}, s{sT2} offen lds", ("w3", c))
        return [op]
    def res_dma():
        e(f"s_add_u32 m0, s{S3_M0}, {K3_XS}")
        e.vm(f"buffer_load_dwordx4 v{RG3}, {sq(R_X)}, s{S3_R} offen lds", "res")
    def x3_read(c, p):
        d = XF + 8 * (c % 2) + 4 * p
        off = K3_X[c % 8]
        return lambda: e.ds(f"ds_read_b128 v[{d}:{d+3}], v{XA3 + 2 * (off >> 16) + p} offset:{off & 0xffff}", ("f3", c))
    def w3_read(c, p):
        ops = []
        off = K3_W[c % 10]
        for t in range(2):
            d = WF + 8 * (c % 2) + 4 * p + 2 * t
            ops.append(lambda d=d, t=t: e.ds(f"ds_read_b64_tr_b16 v[{d}:{d+1}], v{WA3 + 2 * (off >> 16) + p} offset:{(off & 0xffff) + t * 512}", ("f3", c)))
        return ops
    def mfma3(c, p):
        cin = "0" if (c == 0 and p == 0) else f"v[{ACC}:{ACC+15}]"
        b = 8 * (c % 2) + 4 * p
        e(f"v_mfma_f32_32x32x16_bf16 v[{ACC}:{ACC+15}], v[{WF+b}:{WF+b+3}], v[{XF+b}:{XF+b+3}], {cin}")
    pollO = Poll(e, 1, PA_, PD_, 50, "o")
    pollH = Poll(e, 14, PA_, PDS, 50, "h")

    a0, a1, a2 = T, T + 1, T + 2
    setup = late(e, f"""
    v_mov_b32 v{CK1}, {fbits(GELU_K1)}
    v_mov_b32 v{CK2}, {fbits(GELU_K2)}
    v_and_b32 v{a0}, 31, v{L}
    v_lshrrev_b32 v{a1}, 5, v{L}
    s_lshl_b32 s{sT3}, s{S_RG}, 5
    v_add_u32 v{a2}, s{sT3}, v{a0}
    v_lshlrev_b32 v{a2}, 7, v{a2}
    v_lshlrev_b32 v{a1}, 3, v{a1}
    v_add_u32 v{a2}, v{a2}, v{a1}
    v_add_u32 v{a2}, {HSTG}, v{a2}
    v_lshrrev_b32 v{a0}, 1, v{a0}
    v_and_b32 v{a0}, 7, v{a0}
    s_lshl_b32 s{sT3}, s{S_CH}, 2
    v_xor_b32 v{a0}, s{sT3}, v{a0}
    v_lshl_add_u32 v{STW}, v{a0}, 4, v{a2}
    v_lshrrev_b32 v{a0}, 3, v{L}
    v_and_b32 v{a1}, 7, v{L}
    v_lshlrev_b32 v{a2}, 4, v{a1}
    v_mul_u32_u24 v{GH}, {HP}, v{a0}
    v_add_u32 v{GH}, v{GH}, v{a2}
    s_lshl_b32 s{sT3}, s{S_W}, 4
    v_add_u32 v{a0}, s{sT3}, v{a0}
    v_lshrrev_b32 v{a2}, 4, v{L}
    v_xor_b32 v{a1}, v{a1}, v{a2}
    v_lshlrev_b32 v{a1}, 4, v{a1}
    v_lshl_add_u32 v{STR}, v{a0}, 7, v{a1}
    v_add_u32 v{STR}, {HSTG}, v{STR}
    v_xor_b32 v{T+3}, 64, v{STR}
    v_xor_b32 v{T}, 16, v{STW}
    v_xor_b32 v{T+1}, 32, v{STW}
    v_xor_b32 v{T+2}, 48, v{STW}
    """)
    gel = []
    for q in range(4):
        z = [ZF + 4 * q + i for i in range(4)]
        t = [GT + 4 * (q % 2) + i for i in range(4)]
        gel.append(lambda q=q: (e.need_v("u1"), e(f"v_lshlrev_b32 v{ZF+4*q}, 16, v{U1+2*q}")))
        gel += late(e, f"""
            v_and_b32 v{ZF+4*q+1}, 0xffff0000, v{U1+2*q}
            v_lshlrev_b32 v{ZF+4*q+2}, 16, v{U1+2*q+1}
            v_and_b32 v{ZF+4*q+3}, 0xffff0000, v{U1+2*q+1}
            """)
        for fmt in ("v_mul_f32 v{t}, v{a}, v{a}", f"v_fma_f32 v{{t}}, v{{t}}, v{CK2}, v{CK1}", "v_mul_f32 v{t}, v{a}, v{t}",
                    "v_exp_f32 v{t}, v{t}", "v_add_f32 v{t}, 1.0, v{t}", "v_rcp_f32 v{t}, v{t}", "v_mul_f32 v{a}, v{a}, v{t}"):
            for i in range(4):
                gel.append(lambda fmt=fmt, i=i, z=z, t=t: e(fmt.format(t=t[i], a=z[i])))
    gel.append(lambda: e(f"v_lshlrev_b32 v{BIAS}, 16, v{BIAS}"))
    gaps = {(c, p): [] for c in range(NCH) for p in range(4)}
    def spread_gaps(ops, a_, b_):
        slots = [(c, p) for c in range(a_[0], b_[0] + 1) for p in range(4) if (c, p) >= tuple(a_) and (c, p) <= tuple(b_)]
        for sl, s_ in zip(spread(ops, len(slots)), slots): gaps[s_] += sl
    spread_gaps(setup, (0, 0), (2, 3))
    spread_gaps(gel, (4, 0), (17, 3))
    spread_gaps(k3_setup, (18, 0), (20, 3))
    spread_gaps(k3_addr, (21, 0), (24, 3))
    spread_gaps(k3_epi_addr, (25, 0), (28, 3))
    gaps[(21, 1)].append(res_dma)
    olate = opt.get("olate")
    gaps[(31, 0) if olate else (24, 0)].append(lambda: pollO.issue(f"s_lshl_b32 s50, s{S3_TT}, 7\ns_add_u32 s50, s50, {F_O}"))
    pre3 = {27: w3_dma(0), 28: w3_dma(1), 29: x3_dma(0) + x3_dma(1) + w3_dma(2), 30: x3_dma(2) + x3_dma(3) + w3_dma(3),
            31: x3_dma(4) + x3_dma(5) + w3_dma(4) + w3_dma(6) + w3_dma(7)}
    if olate: pre3 = {27: w3_dma(0), 28: w3_dma(1), 29: w3_dma(2), 30: w3_dma(3), 31: w3_dma(4) + w3_dma(6) + w3_dma(7)}

    e.need_v([("x", 0), ("w", 0)]); e("s_waitcnt lgkmcnt(0)"); e("s_barrier")
    e.c("TS 3")
    for p in range(4):
        x_read(0, p)()
        for op in w_read(0, p): op()
    dpos = opt.get("dpos", (0, 2))
    tsl = opt.get("ts", (8, 27))
    for c in range(NCH):
        if c in tsl: e.c(f"TS {opt.get('tsb', 4) + tsl.index(c)}")
        if c + 1 < NCH: e.need_v([t_ for t_ in [("x", c + 1), ("w", c + 1)] if c + 1 < npro or not opt.get("k2no" + t_[0])])
        if c == 29 and not olate:
            pollO.check()
            if opt.get("inv"): e("buffer_inv sc1\ns_waitcnt vmcnt(0)")
        if opt.get("k2deep"): e.wait_l0()
        e("s_barrier")
        dl = [([] if opt.get("k2nox") else x_dma(k)) + ([] if opt.get("k2now") else w_dma(k)) for k in dsched[c]] + [[], []]
        if c in pre3: dl[0] = dl[0] + pre3[c][:len(pre3[c]) // 2]; dl[1] = dl[1] + pre3[c][len(pre3[c]) // 2:]
        for p in range(4):
            e.need_l(("f", c, p))
            mfma(c, p)
            if c + 1 < NCH:
                if opt.get("k2nord") and p % 2: e.lq_fake = 1
                else: x_read(c + 1, p)()
                for f in w_read(c + 1, p): f()
            if p == dpos[0]:
                for f in dl[0]: f()
            if p == dpos[1]:
                for f in dl[1]: f()
            for f in gaps[(c, p)]: f()
    e.c("TS 6")
    BV = GT
    STWS = [STW, T, T + 1, T + 2]
    for q in range(4):
        a = ACC + 4 * q
        for i in range(4): e(f"v_add_f32 v{a+i}, v{a+i}, v{BIAS}")
        for i in range(4): e(f"v_mul_f32 v{a+i}, v{a+i}, v{ZF+4*q+i}")
        e(f"v_cvt_pk_bf16_f32 v{BV+2*q}, v{a}, v{a+1}")
        e(f"v_cvt_pk_bf16_f32 v{BV+2*q+1}, v{a+2}, v{a+3}")
        e.ds(f"ds_write_b64 v{STWS[q]}, v[{BV+2*q}:{BV+2*q+1}]", "stg")
    e(f"""
    s_lshl_b32 s{sT3}, s{S_W}, 4
    s_add_u32 s{sT3}, s{sT3}, s{S_ROW0}
    s_mul_i32 s{sT3}, s{sT3}, {HP}
    s_lshl_b32 s58, s{S_J}, {ZJ}
    s_add_u32 s{sT3}, s{sT3}, s58
    s_add_u32 s{sT3}, s{sT3}, {WS_HO}
    s_add_u32 s58, s{sT3}, {8*HP}
    """)
    if not olate: e.need_v([("x3", 0), ("w3", 0), ("x3", 1), ("w3", 1)])
    e.need_l("stg"); e("s_barrier")
    e.ds(f"ds_read_b128 v[{ZF}:{ZF+3}], v{STR}", ("rb", 0))
    e.ds(f"ds_read_b128 v[{ZF+4}:{ZF+7}], v{T+3} offset:1024", ("rb", 1))
    if not olate:
        for p in range(2):
            x3_read(0, p)()
            for op in w3_read(0, p): op()
    if opt.get("diag"): e("s_memrealtime s[64:65]")
    for i in range(2):
        e.need_l(("rb", i))
        e.vm(f"buffer_store_dwordx4 v[{ZF+4*i}:{ZF+4*i+3}], v{GH}, {sq(R_WS)}, s{(sT3, 58)[i]} offen {opt.get('stf', 'sc1')}", "st_h")
    if opt.get("rbk"):
        if opt["rbk"] == 1: e("s_waitcnt vmcnt(0)"); e.vq = []
        for i in range(2):
            e.vm(f"buffer_load_dword v{200+i}, v{GH}, {sq(R_WS)}, s{(sT3, 58)[i]} offen sc1", "st_h")
    for op in w3_dma(5) + w3_dma(8) + w3_dma(9): op()
    e.c("TS 7")
    if olate:
        e.need_v("st_h"); e("s_barrier")
        flag_store(e, f"s_lshl_b32 s62, s{S_MT}, 7\ns_lshl_b32 s63, s{S_J}, 2\ns_add_u32 s62, s62, s63", F_H, vt=(162, 163), wave=FW)
        e.c("TS 11")
        pollO.check()
        e("s_barrier")
        e.c("TS 12")
        for k in range(7):
            for op in x3_dma(k): op()
        pollH.issue(f"s_lshr_b32 s50, s{S3_TT}, 1\ns_lshl_b32 s50, s50, 7\ns_add_u32 s50, s50, {F_H}")
        e.need_v([("x3", 0), ("w3", 0), ("x3", 1), ("w3", 1)]); e("s_barrier")
        for p in range(2):
            x3_read(0, p)()
            for op in w3_read(0, p): op()
    cH = opt.get("ch", 3)
    cX6 = 1
    wq = list(range(10, N3))
    xq = list(range(14, N3))
    def reads3(c):
        rd = []
        for p in range(2): rd += [x3_read(c, p)] + w3_read(c, p)
        return rd
    for c in range(N3):
        dm = []
        if c == 6:
            if olate: pollH.check()
            else:
                pollH.issue(f"s_lshr_b32 s50, s{S3_TT}, 1\ns_lshl_b32 s50, s50, 7\ns_add_u32 s50, s50, {F_H}")
                pollH.check(wait=False)
            if opt.get("inv"): e("buffer_inv sc1\ns_waitcnt vmcnt(0)")
            e("s_barrier")
            e.c("TS 8")
            if opt.get("diag"): e("s_memrealtime s[68:69]")
            for k in range(7, 14):
                for f in x3_dma(k): f()
            while wq and wq[0] <= c + 9:
                for f in w3_dma(wq.pop(0)): f()
            e.need_l(("f3", c))
            mfma3(c, 0); mfma3(c, 1)
            x3_land(7)
            if opt.get("allv0"): e.wait_v0()
            e.need_v([("x3", 7), ("w3", 7)])
            e("s_barrier")
            e.c("TS 9")
            if opt.get("diag"): e("s_memrealtime s[70:71]")
            for f in reads3(7): f()
            continue
        if c >= 1 and c + 1 < N3:
            need = [("x3", c + 1), ("w3", c + 1)]
            if c == cH and not olate: need.append("st_h")
            x3_land(c + 1)
            if opt.get("allv0") and c >= 7: e.wait_v0()
            e.need_v(need)
            if c == cH and opt.get("hv0"): e.wait_v0()
            if c == cH and opt.get("diag"): e("s_memrealtime s[66:67]")
            e("s_barrier")
            if c == cH and not olate:
                if opt.get("fdelay"): e(f"s_sleep {opt['fdelay']}")
                if opt.get("wbl2"):
                    LW = e.label("wb")
                    e(f"s_cmp_lg_u32 s{S_W}, 0\ns_cbranch_scc1 {LW}\nbuffer_wbl2 sc1\ns_waitcnt vmcnt(0)\n{LW}:")
                flag_store(e, f"s_lshl_b32 s62, s{S_MT}, 7\ns_lshl_b32 s63, s{S_J}, 2\ns_add_u32 s62, s62, s63", F_H, vt=(162, 163), wave=FW)
                if opt.get("tsf"): e.c("TS 5")
        if c == cX6 and not olate: dm += x3_dma(6)
        if c >= 1:
            n = 0
            while wq and wq[0] <= c + 9 and n < 2: dm += w3_dma(wq.pop(0)); n += 1
        if c >= 7:
            n = 0
            while xq and xq[0] <= c + 7 and n < 2: dm += x3_dma(xq.pop(0)); n += 1
        e.need_l(("f3", c))
        rd = reads3(c + 1) if c + 1 < N3 else []
        mfma3(c, 0)
        for f in rd[:3] + dm[:1]: f()
        mfma3(c, 1)
        for f in rd[3:] + dm[1:]: f()
    assert not wq and not xq
    e.c("TS 10")
    e.need_v("res")
    e("s_barrier")
    L0, L1 = e.label("k3a"), e.label("k3b")
    e(f"s_cmp_lg_u32 s{S3_KH}, 0\ns_cbranch_scc1 {L0}")
    e(f"ds_write_b128 v{RW}, v[{ACC+8}:{ACC+11}] offset:{RED}\nds_write_b128 v{RW}, v[{ACC+12}:{ACC+15}] offset:{RED+1024}")
    e(f"s_branch {L1}\n{L0}:")
    e(f"ds_write_b128 v{RW}, v[{ACC}:{ACC+3}] offset:{RED}\nds_write_b128 v{RW}, v[{ACC+4}:{ACC+7}] offset:{RED+1024}")
    for i in range(8): e(f"v_mov_b32 v{ACC+i}, v{ACC+8+i}")
    e(f"{L1}:")
    e.ds(f"ds_read_b64 v[{XF}:{XF+1}], v{XRD}", "xr")
    e.ds(f"ds_read_b64 v[{XF+2}:{XF+3}], v{XRD2}", "xr")
    e("s_waitcnt lgkmcnt(0)"); e.lq = []
    e("s_barrier")
    e.ds(f"ds_read_b128 v[{WF}:{WF+3}], v{RA} offset:{RED}", "rd")
    e.ds(f"ds_read_b128 v[{WF+4}:{WF+7}], v{RA} offset:{RED+1024}", "rd")
    U = T3
    for i in range(4):
        e(f"v_lshlrev_b32 v{U+2*i}, 16, v{XF+i}\nv_and_b32 v{U+2*i+1}, 0xffff0000, v{XF+i}")
    for i in range(8): e(f"v_add_f32 v{ACC+i}, v{ACC+i}, v{U+i}")
    e.need_l("rd")
    for i in range(8): e(f"v_add_f32 v{ACC+i}, v{ACC+i}, v{WF+i}")
    for i in range(4): e(f"v_cvt_pk_bf16_f32 v{U+i}, v{ACC+2*i}, v{ACC+2*i+1}")
    e.ds(f"ds_write_b64 v{STW3}, v[{U}:{U+1}] offset:{STG}", "stg")
    e.ds(f"ds_write_b64 v{STW3}, v[{U+2}:{U+3}] offset:{STG+16}", "stg")
    e(f"""
    s_mul_i32 s{sT}, s{S3_T0}, 896
    s_lshl_b32 s{sT2}, s{S3_NT}, 7
    s_add_u32 s{sT}, s{sT}, s{sT2}
    """)
    e.need_l("stg"); e("s_barrier")
    e.ds(f"ds_read_b128 v[{XF}:{XF+3}], v{STR3} offset:{STG}", "rb")
    e.need_l("rb")
    e.vm(f"buffer_store_dwordx4 v[{XF}:{XF+3}], v{GO}, {sq(R_OUT)}, s{sT} offen", "st")
    if opt.get("diag"):
        e(f"""
        s_getreg_b32 s72, hwreg(HW_REG_XCC_ID)
        s_getreg_b32 s73, hwreg(HW_REG_HW_ID)
        s_waitcnt lgkmcnt(0)
        v_mov_b32 v8, s64
        v_mov_b32 v9, s66
        v_mov_b32 v10, s68
        v_mov_b32 v11, s70
        v_mov_b32 v12, s72
        v_mov_b32 v13, s73
        v_mov_b32 v14, 0
        v_mov_b32 v15, 0
        s_lshl_b32 s60, s2, 3
        s_add_u32 s60, s60, s{S_W}
        s_lshl_b32 s60, s60, 5
        s_add_u32 s60, s60, 0x1520000
        s_mov_b64 exec, 1
        buffer_store_dwordx4 v[8:11], v14, {sq(R_WS)}, s60 offen
        buffer_store_dwordx4 v[12:15], v14, {sq(R_WS)}, s60 offen offset:16
        s_mov_b64 exec, -1
        """)
```

```python
import sys
from g2common import *
import g3k1, g3k2, g4k23
from g3k1 import k1_main, k1_aux, K1_LDS
from g3k2 import k2_attn
from g4k23 import *
import hz

OPT = {}
NAME = "f_kernel"
def tsmap(e, m):
    base = e.__class__.c
    def c(t):
        if t.startswith("TS "):
            n = int(t.split()[1])
            if n in m: base(e, f"TS {m[n]}")
            return
        base(e, t)
    e.c = c

def aux_f(e, opt):
    late_wsp = k1_aux(e, opt=opt)
    if not opt.get("nocpf"):
        e(f"""
        s_getpc_b64 s[52:53]
        L_hp:
        s_sub_u32 s52, s52, L_hp-L_k2
        s_subb_u32 s53, s53, 0
        s_mov_b32 s54, L_end-L_k2-16
        s_sub_u32 s55, s2, 224
        s_lshr_b32 s55, s55, 3
        s_lshl_b32 s55, s55, 13
        v_lshlrev_b32 v3, 4, v0
        v_add_u32 v3, s55, v3
        L_hp_loop:
        v_cmp_ge_u32 vcc, s54, v3
        s_and_b64 exec, exec, vcc
        s_cbranch_execz L_hp_done
        global_load_dwordx4 v[28:31], v3, s[52:53]
        v_add_u32 v3, 32768, v3
        s_branch L_hp_loop
        L_hp_done:
        s_mov_b64 exec, -1
        """)
    if late_wsp: late_wsp()
    e.c("TS 14")
    e(f"""
    v_mov_b32 v2, 0
    s_mov_b32 s51, 0
    L_anon:
    global_load_dword v3, v2, s[{R_DBG}:{R_DBG+1}] sc1
    s_waitcnt vmcnt(0)
    v_readfirstlane_b32 s{S_NONCE}, v3
    s_cmp_lg_u32 s{S_NONCE}, 0
    s_cbranch_scc1 L_anon_ok
    s_add_u32 s51, s51, 1
    s_cmp_lt_u32 s51, 0x40000
    s_cbranch_scc1 L_anon
    L_anon_ok:
    """)
    fin_srds(e, ["ws"])
    e(f"""
    s_sub_u32 s48, s2, 224
    s_lshr_b32 s49, s48, 1
    s_lshl_b32 s48, s48, 6
    s_sub_i32 s48, s48, 14
    s_max_i32 s48, s48, 0
    s_lshr_b32 s48, s48, 7
    s_lshl_b32 s48, s48, 7
    s_lshl_b32 s49, s49, 7
    v_and_b32 v4, 15, v1
    v_lshlrev_b32 v4, 2, v4
    v_mov_b32 v8, s48
    v_mov_b32 v9, s49
    v_cmp_gt_u32 vcc, 16, v1
    v_cndmask_b32 v8, v8, v9, vcc
    v_add_u32 v4, v4, v8
    """)
    pq = Poll(e, 0, 4, [5, 6, 7][:opt.get("qd", 1)], 50, "q", mask=0x3FFF3FFF, sleep=opt.get("qsleep", 4))
    pq.issue(f"s_mov_b32 s50, {F_Q}")
    pq.check(limit=0x20000)
    e("s_barrier")
    e.c("TS 13")
    o = dict(opt); o["stage_o"] = 1
    k2_attn(e, fused=not opt.get("qplain"), opt=o)
    e("s_waitcnt vmcnt(0) lgkmcnt(0)\ns_barrier")
    flag_store(e, "s_sub_u32 s62, s2, 224\ns_lshl_b32 s62, s62, 7", F_O, vt=(28, 29))
    if not opt.get("nopf3"):
        e(f"""
        s_sub_u32 s60, s2, 224
        s_lshr_b32 s60, s60, 3
        v_lshlrev_b32 v2, 7, v0
        """)
        for srd, sz in ((R_WOUT, SZ_WOUT), (R_WO, SZ_WO)):
            q = sz // 4
            e(f"s_mul_i32 s61, s60, {q}")
            n = -(-q // 65536)
            for i in range(n):
                last = q - i * 65536
                if last < 65536: e(f"v_cmp_gt_u32 vcc, {last}, v2\ns_and_b64 exec, exec, vcc")
                e(f"buffer_load_dword v{30+i+(8 if srd == R_WO else 0)}, v2, {sq(srd)}, s61 offen")
                e(f"s_add_u32 s61, s61, 65536")
            e("s_mov_b64 exec, -1")
        e("s_waitcnt vmcnt(0)")

def gen_f():
    e = E(NAME, (256, 1, 1), (512, 1, 1), K23_LDS, vgpr=256, sgpr=102, accum=256)
    assert K1_LDS == K23_LDS
    e("s_cmp_ge_u32 s2, 256\ns_cbranch_scc1 L_end")
    e.c("TS_START")
    load_srds(e, ["x", "win", "wqkv", "ws", "wsp", "bsp", "wout", "wo", "out"], dbg=True)
    wave_ids(e)
    code_prefetch(e, e.name, "L_k2", 512, 64, 70)
    e("s_cmp_ge_u32 s2, 224\ns_cbranch_scc1 L_aux")
    tile_ids(e)
    tsmap(e, OPT.get("ts1", {4: 1, 6: 2, 8: 3} if OPT.get("k1", {}).get("v4") else {4: 1, 7: 2, 9: 3}))
    o1 = dict(OPT.get("k1", {}))
    o23 = OPT.get("k23", {})
    if o23.get("zearly"):
        zoff = f"s_lshl_b32 s62, s{S_J}, 7\ns_lshl_b32 s63, s{S_MT}, 2\ns_add_u32 s62, s62, s63"
        o1["zflag"] = lambda e_: flag_store(e_, zoff, F_Z2, vt=(142, 143), wave=o23.get("fw", 1))
        if o23.get("zpk1"):
            def zpoll(e_):
                e_("v_lshlrev_b32 v141, 2, v1")
                e_.pollZ = Poll(e_, 16, 141, [70, 200, 201, 202][:o23.get("pd", 4)], 50, "z")
                e_.pollZ.issue(f"s_lshl_b32 s50, s{S_J}, 7\ns_add_u32 s50, s50, {F_Z2}")
            o1["zpoll"] = zpoll
    k1_main(e, fused=True, opt=o1)
    e("L_k2:")
    tsmap(e, OPT.get("ts2", {1: 4, 2: 5, 3: 6, 6: 7, 7: 8, 8: 9, 10: 10}))
    k23_main(e, opt=OPT.get("k23", {}), entry="k1")
    e("s_branch L_fin_f")
    e("L_aux:")
    e.lq, e.vq = [], []
    tsmap(e, OPT.get("ts3", {14: 1, 13: 2, 1: 4, 2: 5, 3: 6, 4: 7, 5: 8, 6: 9}))
    aux_f(e, OPT.get("k23", {}))
    e("L_fin_f:")
    e("L_end:")
    e("s_endpgm")
    return e
def kernels():
    ks = [gen_f()]
    for k in ks:
        n, pend = hz.fix_kernel(k, verbose=OPT.get("hzv", False))
        print(k.name, "pads", n, "pend", len(pend), file=sys.stderr)
    return ks
if __name__ == "__main__":
    out = sys.argv[1] if len(sys.argv) > 1 else "f1.s"
    if len(sys.argv) > 2: OPT.update(eval(sys.argv[2]))
    open(out, "w").write(build(kernels(), header=HEADER))
    print("wrote", out)
```
